```python
import torch

def _softmax(x, axis=-1):
    return torch.softmax(x, dim=axis)
def _gelu(x):
    return torch.nn.functional.gelu(x, approximate="tanh")
def _silu(x):
    return torch.nn.functional.silu(x)
def _sigmoid(x):
    return torch.sigmoid(x)
def _layernorm(x, axis=-1, eps=1e-5):
    m = x.mean(dim=axis, keepdim=True)
    v = x.var(dim=axis, keepdim=True, unbiased=False)
    return (x - m) / torch.sqrt(v + eps)
def _scatter_add(tgt, idx, src, axis=0):
    return tgt.clone().index_add_(axis, idx, src)
def _segment_sum(src, seg, n):
    out = torch.zeros((n,) + src.shape[1:], dtype=src.dtype)
    return out.index_add_(0, seg, src)
def _pad(x, pw):
    flat = tuple(v for pair in reversed(pw) for v in pair)
    return torch.nn.functional.pad(x, flat)

kernel_name = 'parallel_sum__compressed_kv_cla__glu_gated_bilinear__prompt'

def setup_inputs():

    _w = (lambda a: (lambda t: t.to(torch.bfloat16) if t.is_floating_point() else t)(torch.as_tensor(a)))
    def _A_setup():
        B, H, Sq, Sk, D, M = 1, 16, 2048, 2048, 256, 448
        Dc = 4 * D
        return {
            "x": _w((lambda *s: torch.randn(*s, dtype=torch.bfloat16) * 0.05)(B, Sq, M)),
            "c_kv": _w((lambda *s: torch.randn(*s, dtype=torch.bfloat16) * 0.2)(B, Sk, Dc)),
            "w_q": _w((lambda *s: torch.randn(*s, dtype=torch.bfloat16) * 6.4)(M, H, D) * (M ** -0.5)),
            "w_uk": _w((lambda *s: torch.randn(*s, dtype=torch.bfloat16) * 6.4)(Dc, H, D) * (Dc ** -0.5)),
            "w_uv": _w((lambda *s: torch.randn(*s, dtype=torch.bfloat16) * 0.2)(Dc, H, D) * (Dc ** -0.5)),
            "w_o": _w((lambda *s: torch.randn(*s, dtype=torch.bfloat16) * 0.2)(H, D, M) * ((H * D) ** -0.5)),
        }
    _A_in = _A_setup()

    def _B_setup():
        B, S, D, F = 1, 2048, 448, 1792
        return {
            "x": _w((lambda *s: torch.randn(*s, dtype=torch.bfloat16) * 0.05)(B, S, D)),
            "w_gate": _w((lambda *s: torch.randn(*s, dtype=torch.bfloat16) * 0.2)(D, F) * (D ** -0.5)),
            "w_up": _w((lambda *s: torch.randn(*s, dtype=torch.bfloat16) * 0.2)(D, F) * (D ** -0.5)),
            "w_down": _w((lambda *s: torch.randn(*s, dtype=torch.bfloat16) * 0.2)(F, D) * (F ** -0.5)),
        }
    _B_in = _B_setup()

    return {
        "A_x": _A_in["x"],
        "A_c_kv": _A_in["c_kv"],
        "A_w_q": _A_in["w_q"],
        "A_w_uk": _A_in["w_uk"],
        "A_w_uv": _A_in["w_uv"],
        "A_w_o": _A_in["w_o"],
        "B_x": _B_in["x"],
        "B_w_gate": _B_in["w_gate"],
        "B_w_up": _B_in["w_up"],
        "B_w_down": _B_in["w_down"],
    }

def reference(A_x, A_c_kv, A_w_q, A_w_uk, A_w_uv, A_w_o, B_x, B_w_gate, B_w_up, B_w_down):
    def _A_ref(x, c_kv, w_q, w_uk, w_uv, w_o):
        B, Sq, M = x.shape[0], x.shape[1], x.shape[2]
        Sk = c_kv.shape[1]
        H, D = w_q.shape[1], w_q.shape[2]
        q = torch.einsum("bqm,mhd->bhqd", x, w_q)
        k = torch.einsum("bkc,chd->bhkd", c_kv, w_uk)
        v = torch.einsum("bkc,chd->bhkd", c_kv, w_uv)
        scores = torch.einsum("bhqd,bhkd->bhqk", q, k) * (D ** -0.5)
        off = Sk - Sq
        qi = torch.arange(Sq)[:, None]
        kj = torch.arange(Sk)[None, :]
        cmask = kj <= (qi + off)
        scores = torch.where(cmask[None, None], scores, -1e9)
        p = _softmax(scores, axis=-1)
        ctx = torch.einsum("bhqk,bhkd->bhqd", p, v)
        return torch.einsum("bhqd,hdm->bqm", ctx, w_o)

    def _B_ref(x, w_gate, w_up, w_down):
        g = torch.einsum("bsd,df->bsf", x, w_gate)
        u = torch.einsum("bsd,df->bsf", x, w_up)
        h = g * u
        return torch.einsum("bsf,fd->bsd", h, w_down)

    x = A_x
    xn = _layernorm(x, axis=-1)
    return x + _A_ref(xn, A_c_kv, A_w_q, A_w_uk, A_w_uv, A_w_o) + _B_ref(xn, B_w_gate, B_w_up, B_w_down)
```

```python
import re, sys

RANGE = re.compile(r"^([vas])\[(\d+):(\d+)\]$")
SINGLE = re.compile(r"^([vas])(\d+)$")

def regs(tok):
    t = tok.strip()
    t = re.sub(r"^(neg|abs)\((.*)\)$", r"\2", t)
    t = t.lstrip("-").strip("|")
    m = RANGE.match(t)
    if m:
        return [(m.group(1), i) for i in range(int(m.group(2)), int(m.group(3)) + 1)]
    m = SINGLE.match(t)
    if m:
        return [(m.group(1), int(m.group(2)))]
    if t == "vcc": return [("s", 106), ("s", 107)]
    if t == "vcc_lo": return [("s", 106)]
    if t == "vcc_hi": return [("s", 107)]
    if t == "exec": return [("s", 126), ("s", 127)]
    if t == "m0": return [("s", 124)]
    return []

TRANS = ("v_exp_f32", "v_log_f32", "v_rcp_f32", "v_rsq_f32", "v_sqrt_f32", "v_sin_f32", "v_cos_f32")

class I:
    __slots__ = ("text", "op", "ops", "mods", "rd", "wr", "kind", "line", "passes", "srcC", "srcAB", "data", "dpp", "nstates", "lds_dma")
    def __init__(self, text, line):
        self.text = text; self.line = line
        parts = text.split(None, 1)
        self.op = parts[0]
        rest = parts[1] if len(parts) > 1 else ""
        toks = []; depth = 0; cur = ""
        for ch in rest:
            if ch == "[": depth += 1
            if ch == "]": depth -= 1
            if ch == "," and depth == 0:
                toks.append(cur.strip()); cur = ""
            else:
                cur += ch
        if cur.strip(): toks.append(cur.strip())
        mods = ""
        if toks:
            last = toks[-1].split(None, 1)
            toks[-1] = last[0]
            if len(last) > 1: mods = last[1]
        self.ops = toks; self.mods = mods
        self.rd = []; self.wr = []; self.passes = 0; self.srcC = []; self.srcAB = []; self.data = []
        self.dpp = ("quad_perm" in mods or "row_" in mods or "wave_" in mods)
        self.nstates = 1; self.lds_dma = False
        op = self.op
        R = lambda i: regs(toks[i]) if i < len(toks) else []
        allr = lambda a: sum((regs(t) for t in toks[a:]), [])
        if op.startswith("v_mfma"):
            self.kind = "mfma"
            self.passes = 8 if "32x32x16" in op else 4
            self.wr = R(0); self.srcAB = R(1) + R(2); self.srcC = R(3); self.rd = self.srcAB + self.srcC
        elif op.startswith("v_cmp"):
            self.kind = "valu"; self.wr = R(0); self.rd = allr(1)
            if op.startswith("v_cmpx"): self.wr += regs("exec")
        elif op in ("v_readfirstlane_b32", "v_readlane_b32"):
            self.kind = "valu"; self.wr = R(0); self.rd = allr(1)
        elif op.startswith("v_permlane") and "swap" in op:
            self.kind = "valu"; self.wr = R(0) + R(1); self.rd = R(0) + R(1)
        elif op.startswith("v_"):
            self.kind = "valu"; self.wr = R(0)
            s = 1
            if op.startswith(("v_add_co", "v_sub_co", "v_addc_co", "v_subb_co")):
                self.wr += R(1); s = 2
            self.rd = allr(s)
            if op.startswith(("v_fmac", "v_dot2c", "v_pk_fmac", "v_writelane")): self.rd += R(0)
            if op == "v_cndmask_b32" and len(toks) == 3: self.rd += regs("vcc")
            if op == "v_nop": self.wr = []; self.rd = []
        elif op.startswith("ds_read") or op.startswith("ds_bpermute") or op.startswith("ds_swizzle") or op.startswith("ds_permute"):
            self.kind = "lds"; self.wr = R(0); self.rd = allr(1)
        elif op.startswith("ds_write"):
            self.kind = "lds"; self.rd = allr(0); self.data = allr(1)
        elif op.startswith(("buffer_load", "global_load")):
            self.kind = "vmem"
            if "lds" in mods.split() or "_lds_" in op:
                self.lds_dma = True; self.rd = allr(0) + regs("m0")
            else:
                self.wr = R(0); self.rd = allr(1)
        elif op.startswith(("buffer_store", "global_store")):
            self.kind = "vmem"; self.rd = allr(0)
            self.data = R(0) if op.startswith("buffer") else R(1)
        elif op.startswith(("buffer_atomic", "global_atomic")):
            self.kind = "vmem"; self.rd = allr(0)
            if "sc0" in mods.split(): self.wr = R(0)
        elif op.startswith(("buffer_inv", "buffer_wbl2")):
            self.kind = "vmem"
        elif op.startswith("s_load") or op.startswith("s_memtime") or op.startswith("s_memrealtime"):
            self.kind = "smem"; self.wr = R(0); self.rd = allr(1)
        elif op == "s_nop":
            self.kind = "nop"; self.nstates = int(toks[0], 0) + 1
        elif op == "s_waitcnt":
            self.kind = "wait"
        elif op.startswith(("s_cbranch", "s_branch", "s_endpgm", "s_barrier", "s_setprio", "s_sleep")):
            self.kind = "ctl"
        elif op.startswith("s_cmp") or op.startswith("s_bitcmp"):
            self.kind = "salu"; self.rd = allr(0)
        elif op.startswith("s_"):
            self.kind = "salu"; self.wr = R(0); self.rd = allr(1)
            if "saveexec" in op: self.wr += regs("exec"); self.rd += regs("exec")
        else:
            raise ValueError("unknown op: " + text)
    def vw(self): return [r for r in self.wr if r[0] in "va"]
    def sw(self): return [r for r in self.wr if r[0] == "s"]

def parse(text):
    out = {}; cur = None
    for n, raw in enumerate(text.splitlines(), 1):
        l = raw.split(";")[0].split("//")[0].strip()
        if not l: continue
        m = re.match(r"^([A-Za-z_.$][\w.$]*):$", l)
        if m:
            name = m.group(1)
            if name.endswith("_kernel"):
                cur = ([], {}); out[name] = cur
            elif cur is not None:
                cur[1][name] = len(cur[0])
            continue
        if l.startswith("."):
            if l.startswith(".section"): cur = None
            continue
        if cur is None: continue
        cur[0].append(I(l, n))
    return out

def ov(a, b):
    return bool(set(a) & set(b))

def hazards(seq, errs, tag):
    MAXW = 20
    for j, c in enumerate(seq):
        dist = 0
        for i in range(j - 1, max(-1, j - 1 - MAXW), -1):
            p = seq[i]
            if dist >= 20: break
            need = 0; why = ""
            def req(n, w):
                nonlocal need, why
                if n > need: need, why = n, w
            if p.kind == "valu":
                pv = p.vw(); ps = p.sw()
                if c.kind == "mfma" and ov(pv, c.rd): req(2, "VALU->MFMA src")
                if c.kind == "mfma" and ov(ps, regs("exec")): req(4, "VALU exec->MFMA")
                if p.op in TRANS and c.kind == "valu" and c.op not in TRANS and ov(pv, c.rd): req(1, "trans->valu")
                if p.op in TRANS and c.kind == "valu" and c.op in TRANS and ov(pv, c.rd): req(1, "trans->trans (conservative)")
                if c.kind == "valu" and ov(ps, c.rd) and c.op not in ("v_readlane_b32",): req(2, "VALU sgpr->VALU const")
                if c.kind == "valu" and c.op in ("v_readlane_b32", "v_writelane_b32") and len(c.ops) > 2 and ov(ps, regs(c.ops[2])): req(4, "VALU sgpr->lane select")
                if c.kind == "vmem" and ov(ps, c.rd): req(5, "VALU sgpr->VMEM")
                if c.op in ("v_readfirstlane_b32", "v_readlane_b32") and ov(pv, c.rd): req(1, "VALU->readlane")
                if c.dpp and ov(pv, c.rd): req(2, "VALU->DPP")
                if c.dpp and ov(ps, regs("exec")): req(5, "exec->DPP")
                if c.op.startswith("v_permlane") and ov(pv, c.rd): req(2, "VALU->permlane")
                if p.op.startswith("v_dot2") and c.kind in ("valu", "mfma") and ov(pv, c.rd + c.wr):
                    if not (c.op == p.op and len(c.ops) > 3 and ov(pv, regs(c.ops[3])) and not ov(pv, regs(c.ops[1]) + regs(c.ops[2]))): req(3, "dot2->other")
                if ("sdwa" in p.op or "op_sel" in p.mods) and c.kind == "valu" and ov(pv, c.rd + c.wr) and "dst_sel:DWORD" not in p.mods: req(1, "sdwa/opsel->valu")
            if p.kind == "mfma":
                d = p.wr
                if c.kind == "mfma":
                    if ov(d, c.srcC) and not (c.srcC == d and c.passes == p.passes): req(p.passes + 2, "MFMA D->srcC overlap")
                    if ov(d, c.srcAB): req(p.passes + 4, "MFMA D->srcAB")
                    if ov(d, c.wr) and not (c.wr == d and c.srcC == d): req(p.passes + 2, "MFMA D->MFMA D (WAW, conservative)")
                elif c.kind in ("valu", "vmem", "lds") and (ov(d, c.rd) or ov(d, c.wr)): req(p.passes + 4, "MFMA D->VALU/mem")
                if c.kind == "valu" and ov(p.srcC, c.vw()): req(p.passes - 1, "MFMA srcC WAR")
                if c.kind in ("lds", "vmem") and ov(p.srcC, c.vw()): req(p.passes - 1, "MFMA srcC WAR (load, conservative)")
            if p.kind == "salu" and ov(p.wr, regs("m0")) and c.lds_dma: req(1, "M0->LDS DMA")
            if p.kind in ("vmem",) and p.data and len(p.data) >= 3:
                if c.kind == "valu" and ov(p.data, c.vw()): req(2, "wide store WAR")
                elif ov(p.data, c.vw()): req(1, "wide store WAR")
            if p.kind == "lds" and p.data and len(p.data) >= 3 and ov(p.data, c.vw()):
                req(2, "wide ds_write WAR (conservative)")
            if need > dist:
                errs.add((c.line, f"{tag}: {why}: need {need} have {dist}: L{p.line} '{p.text}' -> L{c.line} '{c.text}'"))
            dist += p.nstates

def waits(seq, errs, tag):
    lg = []
    vm = []
    for c in seq:
        if c.kind == "wait":
            m = re.search(r"lgkmcnt\((\d+)\)", c.text)
            if m:
                n = int(m.group(1))
                if any(x.kind == "smem" for x in lg):
                    if n == 0: lg = []
                else:
                    while len(lg) > n: lg.pop(0)
            m = re.search(r"vmcnt\((\d+)\)", c.text)
            if m:
                n = int(m.group(1))
                while len(vm) > n: vm.pop(0)
            continue
        touched = set(c.rd) | set(c.wr)
        for q, nm in ((lg, "lgkm"), (vm, "vm")):
            for x in q:
                if x.wr and touched & set(x.wr):
                    errs.add((c.line, f"{tag}: pending {nm} result: L{x.line} '{x.text}' used by L{c.line} '{c.text}'"))
        if c.kind in ("lds", "smem"):
            lg.append(c)
            if c.kind == "smem" and len(c.wr) >= 2: lg.append(c)
            if len([x for x in lg if x.kind == 'lds']) > 15 and False: pass
        if c.kind == "vmem":
            vm.append(c)
            if len(vm) > 63:
                errs.add((c.line, f"{tag}: more than 63 vmem ops outstanding at L{c.line}"))
                vm.pop(0)
        if c.op == "s_endpgm":
            lg = []; vm = []

def check(text, verbose=True):
    errs = set()
    ks = parse(text)
    W = 24
    for name, (ins, labels) in ks.items():
        hazards(ins, errs, name)
        for idx, c in enumerate(ins):
            if c.op.startswith(("s_cbranch", "s_branch")):
                tgt = labels.get(c.ops[0])
                if tgt is None:
                    errs.add((c.line, "unknown label " + c.ops[0])); continue
                hazards(ins[max(0, idx - W): idx + 1] + ins[tgt: tgt + W], errs, name + " branch")
                if tgt <= idx:
                    waits(ins[:idx + 1] + ins[tgt: idx + 1] + ins[tgt: idx + 1], errs, name + " loop")
        seg = []
        for c in ins:
            seg.append(c)
            if c.op in ("s_endpgm", "s_branch"):
                waits(seg, errs, name); seg = []
        waits(seg, errs, name)
    for e in sorted(errs)[:60]:
        print("HAZARD", e[1])
    return len(errs)

if __name__ == "__main__":
    n = check(open(sys.argv[1]).read())
    print("problems:", n)
```

```python
import struct

def f32(x):
    return "0x%08x" % struct.unpack("<I", struct.pack("<f", x))[0]

class Asm:
    def __init__(self):
        self.L = []
    def __call__(self, s):
        for l in s.split("\n"):
            l = l.strip()
            if l:
                self.L.append(l)
    def label(self, n):
        self.L.append(n + ":")
    def text(self):
        return "\n".join(self.L) + "\n"

def vr(a, n=1):
    return f"v{a}" if n == 1 else f"v[{a}:{a+n-1}]"
def ar(a, n=1):
    return f"a{a}" if n == 1 else f"a[{a}:{a+n-1}]"
def sr(a, n=1):
    return f"s{a}" if n == 1 else f"s[{a}:{a+n-1}]"

KA = dict(x=0, ckv=8, wq=16, wuk=24, wuv=32, wo=40, bx=48, wg=56, wu=64, wd=72, out=80, dbg=88, ws=96)

XN_OFF = 0x0000000; XN_SIZE = 128 * 14 * 1024
KF_OFF = 0x0200000; KF_SIZE = 16 * 64 * 16 * 1024
VF_OFF = 0x1200000
AF_OFF = 0x2200000; AF_STEPS = 368; AF_SIZE = 64 * AF_STEPS * 1024
QH_OFF = 0x3A00000
OP_OFF = 0x4200000
ST_OFF = 0x5200000
P3_OFF = 0x5400000

def kernel_header(A, name):
    A(f".text\n.globl {name}\n.p2align 8\n.type {name},@function")
    A.label(name)

def kernel_desc(name, vgpr, agpr, sgpr=102):
    acc = (vgpr + 3) // 4 * 4
    nfv = acc + agpr if agpr else vgpr
    return f""".section .rodata,"a"
.p2align 6
.amdhsa_kernel {name}
  .amdhsa_next_free_vgpr {nfv}
  .amdhsa_next_free_sgpr {sgpr}
  .amdhsa_accum_offset {acc}
  .amdhsa_group_segment_fixed_size 0
  .amdhsa_kernarg_size 104
  .amdhsa_user_sgpr_count 2
  .amdhsa_user_sgpr_kernarg_segment_ptr 1
  .amdhsa_system_sgpr_workgroup_id_x 1
  .amdhsa_float_denorm_mode_32 3
.end_amdhsa_kernel
"""

def srd(A, s, base_lo, base_hi, size, off=0):
    if off:
        A(f"s_add_u32 s{s}, s{base_lo}, {off}")
        A(f"s_addc_u32 s{s+1}, s{base_hi}, 0")
        A(f"s_and_b32 s{s+1}, s{s+1}, 0xffff")
    else:
        A(f"s_mov_b32 s{s}, s{base_lo}")
        A(f"s_and_b32 s{s+1}, s{base_hi}, 0xffff")
    A(f"s_mov_b32 s{s+2}, {size}")
    A(f"s_mov_b32 s{s+3}, 0x20000")

def interleave(A, mf, fill):
    for s in fill.get(-1, []):
        A(s)
    for i, m in enumerate(mf):
        A(m)
        for s in fill.get(i, []):
            A(s)


STAMP = False
def stamp(A, idx, sbase=90):
    if STAMP:
        A(f"s_memtime s[{sbase+2*idx}:{sbase+2*idx+1}]")
        A("s_waitcnt lgkmcnt(0)")

def rstamp(A, idx, sbase=90):
    if STAMP:
        A(f"s_memrealtime s[{sbase+2*idx}:{sbase+2*idx+1}]")
        A("s_waitcnt lgkmcnt(0)")

def stamp_flush(A, n, ws_lo, ws_hi, swave, sbase=90, kidx=0):
    if not STAMP:
        return
    A("s_waitcnt vmcnt(0) lgkmcnt(0)")
    srd(A, 60, ws_lo, ws_hi, 0x100000, ST_OFF + 0x100000)
    A(f"s_lshl_b32 s64, s2, 2")
    A(f"s_add_u32 s64, s64, s{swave}")
    A(f"s_lshl_b32 s64, s64, 5")
    A(f"s_add_u32 s64, s64, {kidx * 32768}")
    A("v_mov_b32 v1, s64")
    for i in range(n):
        A(f"v_mov_b32 v2, s{sbase+2*i}")
        A(f"buffer_store_dword v2, v1, s[60:63], 0 offen offset:{4*i}")
    A("s_memrealtime s[86:87]")
    A("s_waitcnt lgkmcnt(0)")
    A("v_mov_b32 v2, s86")
    A("buffer_store_dword v2, v1, s[60:63], 0 offen offset:28")
```

```python
from gen_common import *
import gen_common as G

MF = "v_mfma_f32_16x16x32_bf16"

def gen_k1(A):
    name = "k1_proj_kernel"
    kernel_header(A, name)
    XB = [16, 48]; WB = [80, 112]
    VOA = 144; VOW = 152; VX = 156; VW = 158
    T = 168
    (sW, sHEAD, sRB, sISV, sAOFF, sWOFF, sM0A, sM0W, sCNT, sDA, sAWR, sT0, sT1, sOUT, sWX, sWW) = range(30, 46)
    sW0M, sW1M, sWOFF1, sMOD, sC32, sCM64, sAOFFB = 54, 55, 56, 57, 58, 59, 46
    A("s_cmp_ge_u32 s2, 256")
    A("s_cbranch_scc1 K1_END")
    stamp(A, 0)
    rstamp(A, 5)
    A(f"s_load_dwordx4 s[24:27], s[0:1], {KA['x']}")
    A(f"s_load_dwordx4 s[48:51], s[0:1], {KA['wuk']}")
    A(f"s_load_dwordx2 s[28:29], s[0:1], {KA['ws']}")
    A("v_lshrrev_b32 v1, 6, v0")
    A("v_and_b32 v2, 63, v0")
    A(f"v_readfirstlane_b32 s{sW}, v1")
    A("s_and_b32 s3, s2, 7")
    A(f"s_lshr_b32 s{sT0}, s2, 3")
    A(f"s_and_b32 s{sT1}, s{sT0}, 1")
    A(f"s_lshl_b32 s{sHEAD}, s3, 1")
    A(f"s_add_u32 s{sHEAD}, s{sHEAD}, s{sT1}")
    A(f"s_bfe_u32 s{sISV}, s{sT0}, 0x10001")
    A(f"s_lshr_b32 s{sRB}, s{sT0}, 2")
    A(f"s_and_b32 s{sWX}, s{sW}, 1")
    A(f"s_lshr_b32 s{sWW}, s{sW}, 1")
    A("s_waitcnt lgkmcnt(0)")
    srd(A, 4, 26, 27, 2048 * 2048)
    A(f"s_cmp_eq_u32 s{sISV}, 0")
    A("s_cselect_b32 s52, s48, s50")
    A("s_cselect_b32 s53, s49, s51")
    srd(A, 8, 52, 53, 1024 * 8192)
    A(f"s_mul_i32 s{sT0}, s{sISV}, {VF_OFF - KF_OFF}")
    A(f"s_add_u32 s{sT0}, s{sT0}, {KF_OFF}")
    A(f"s_add_u32 s12, s28, s{sT0}")
    A("s_addc_u32 s13, s29, 0")
    A("s_and_b32 s13, s13, 0xffff")
    A(f"s_mov_b32 s14, {KF_SIZE}")
    A("s_mov_b32 s15, 0x20000")
    srd(A, 16, 24, 25, 2048 * 896)
    srd(A, 20, 28, 29, XN_SIZE, XN_OFF)
    A("v_lshrrev_b32 v3, 5, v2")
    A("v_and_b32 v4, 31, v2")
    A(f"s_lshl_b32 s{sT0}, s2, 3")
    A(f"s_lshl_b32 s{sT1}, s{sW}, 1")
    A(f"s_add_u32 s{sT0}, s{sT0}, s{sT1}")
    A(f"v_add_u32 v5, s{sT0}, v3")
    A("v_mul_u32_u24 v6, 896, v5")
    A("v_lshl_add_u32 v6, v4, 4, v6")
    A("v_add_u32 v7, 512, v6")
    A("v_cmp_gt_u32 vcc, 24, v4")
    A("v_mov_b32 v8, 0x7ffffff0")
    A("s_nop 0")
    A("v_cndmask_b32 v7, v8, v7, vcc")
    A(f"buffer_load_dwordx4 v[{T}:{T+3}], v6, s[16:19], 0 offen")
    A(f"buffer_load_dwordx4 v[{T+4}:{T+7}], v7, s[16:19], 0 offen")
    A("v_lshrrev_b32 v9, 4, v5")
    A("v_mul_u32_u24 v9, 14, v9")
    A("v_lshrrev_b32 v10, 2, v4")
    A("v_add_u32 v9, v9, v10")
    A("v_lshlrev_b32 v9, 6, v9")
    A("v_and_b32 v10, 15, v5")
    A("v_add_u32 v9, v9, v10")
    A("v_and_b32 v10, 3, v4")
    A("v_lshl_add_u32 v9, v10, 4, v9")
    A("v_lshlrev_b32 v9, 4, v9")
    A("v_add_u32 v10, 8192, v9")
    A("v_cndmask_b32 v10, v8, v10, vcc")
    A("v_lshrrev_b32 v11, 3, v2")
    A("v_lshlrev_b32 v11, 11, v11")
    A("v_and_b32 v12, 7, v2")
    A("v_lshrrev_b32 v13, 4, v2")
    A("v_xor_b32 v12, v12, v13")
    A("v_xor_b32 v13, 4, v12")
    A("v_lshl_add_u32 v12, v12, 4, v11")
    A("v_lshl_add_u32 v13, v13, 4, v11")
    for q in range(8):
        A(f"v_add_u32 v{VOA+q}, {q*16384 - (q&3)*1024}, v{12 + (q&1)}")
    A(f"s_lshl_b32 s{sT0}, s{sWX}, 3")
    for q in range(4):
        A(f"v_add_u32 v11, {2*q}, v3")
        A("v_and_b32 v12, 3, v11")
        A("v_lshlrev_b32 v12, 1, v12")
        A(f"v_or_b32 v12, s{sT0}, v12")
        A("v_xor_b32 v12, v12, v4")
        A("v_lshlrev_b32 v12, 4, v12")
        A("v_lshl_add_u32 v12, v11, 13, v12")
        A(f"v_subrev_u32 v{VOW+q}, {q*1024}, v12")
    A(f"s_lshl_b32 s{sAOFF}, s{sRB}, 8")
    A(f"s_lshl_b32 s{sT0}, s{sW}, 6")
    A(f"s_add_u32 s{sAOFF}, s{sAOFF}, s{sT0}")
    A(f"s_lshl_b32 s{sAOFF}, s{sAOFF}, 11")
    A(f"s_lshl_b32 s{sWOFF}, s{sW}, 16")
    A(f"s_lshl_b32 s{sT0}, s{sHEAD}, 9")
    A(f"s_add_u32 s{sWOFF}, s{sWOFF}, s{sT0}")
    A(f"s_lshl_b32 s{sM0A}, s{sW}, 13")
    A(f"s_lshl_b32 s{sM0W}, s{sW}, 12")

    def dma_A(half, sm0, soff):
        o = [f"s_add_u32 m0, s{sm0}, {half*4096}"]
        d = [f"buffer_load_dwordx4 v{VOA+half*4+q}, s[4:7], s{soff} offen offset:{q*1024} lds" for q in range(4)]
        return o, d
    def dma_W(sm0, soff):
        o = [f"s_mov_b32 m0, s{sm0}"]
        d = [f"buffer_load_dwordx4 v{VOW+q}, s[8:11], s{soff} offen offset:{q*1024} lds" for q in range(4)]
        return o, d
    def issue(od):
        for x in od[0]: A(x)
        A("s_nop 0")
        for x in od[1]: A(x)
    sAS = [60, 61, 62]
    for k in range(3):
        A(f"s_add_u32 s{sAS[k]}, s{sM0A}, {65536 + k*32768}")
    sAO = [63, 64, 65]
    A(f"s_mov_b32 s{sAO[0]}, s{sAOFF}")
    A(f"s_add_u32 s{sAO[1]}, s{sAOFF}, 128")
    A(f"s_add_u32 s{sAO[2]}, s{sAOFF}, 256")
    issue(dma_A(0, sAS[0], sAO[0]))
    for t in range(2):
        A(f"s_add_u32 s{sW0M}, s{sM0W}, {(2*t)*16384}")
        A(f"s_add_u32 s{sW1M}, s{sM0W}, {(2*t+1)*16384}")
        A(f"s_add_u32 s{sWOFF1}, s{sWOFF}, {32*8192}")
        issue(dma_A(1, sAS[t], sAO[t]))
        issue(dma_W(sW0M, sWOFF))
        issue(dma_W(sW1M, sWOFF1))
        issue(dma_A(0, sAS[t+1], sAO[t+1]))
        A(f"s_add_u32 s{sWOFF}, s{sWOFF}, {64*8192}")
    sBM, sBO, sAM, sAOf = 66, 67, 68, 69
    A(f"s_mov_b32 s{sBM}, s{sAS[2]}")
    A(f"s_mov_b32 s{sBO}, s{sAO[2]}")
    A(f"s_mov_b32 s{sAM}, s{sAS[0]}")
    A(f"s_add_u32 s{sAOf}, s{sAOFF}, 384")
    A(f"s_mov_b32 s{sW0M}, s{sM0W}")
    A(f"s_add_u32 s{sW1M}, s{sM0W}, 16384")
    A(f"s_add_u32 s{sWOFF1}, s{sWOFF}, {32*8192}")
    A(f"s_add_u32 s70, s{sM0A}, {65536 + 3*32768}")
    A("v_and_b32 v11, 15, v2")
    A("v_lshrrev_b32 v14, 4, v2")
    A("v_bfe_u32 v13, v2, 1, 3")
    A(f"s_lshl_b32 s{sT0}, s{sWX}, 14")
    A(f"s_add_u32 s{sT0}, s{sT0}, 65536")
    A("v_lshlrev_b32 v12, 7, v11")
    A(f"v_add_u32 v12, s{sT0}, v12")
    for ks in range(2):
        A(f"v_add_u32 v15, {4*ks}, v14")
        A("v_xor_b32 v15, v15, v13")
        A(f"v_lshl_add_u32 v{VX+ks}, v15, 4, v12")
    A("v_bfe_u32 v12, v2, 2, 2")
    A("v_lshl_add_u32 v13, v14, 3, v12")
    A("v_lshlrev_b32 v13, 9, v13")
    A("v_and_b32 v15, 1, v2")
    A("v_lshl_add_u32 v13, v15, 3, v13")
    A("v_bfe_u32 v15, v2, 4, 1")
    A("v_lshl_add_u32 v12, v15, 2, v12")
    A("v_lshlrev_b32 v12, 1, v12")
    A("v_bfe_u32 v15, v2, 1, 1")
    A(f"s_lshl_b32 s{sT0}, s{sWW}, 4")
    A(f"v_add_u32 v15, s{sT0}, v15")
    for wt in range(8):
        A(f"v_add_u32 v11, {2*wt}, v15")
        A("v_xor_b32 v11, v11, v12")
        A(f"v_lshl_add_u32 v{VW+wt}, v11, 4, v13")
    for i in range(256):
        A(f"v_accvgpr_write_b32 a{i}, 0")
    A("s_waitcnt vmcnt(36)")
    S1, S2, ONE = T+8, T+9, T+10
    A(f"v_mov_b32 v{ONE}, 0x3f803f80")
    A(f"v_mov_b32 v{S1}, 0")
    A(f"v_mov_b32 v{S2}, 0")
    for i in range(8):
        A(f"v_dot2_f32_bf16 v{S1}, v{T+i}, v{ONE}, v{S1}")
    for i in range(8):
        A(f"v_dot2_f32_bf16 v{S2}, v{T+i}, v{T+i}, v{S2}")
    A("s_nop 2")
    a_, b_ = T+11, T+12
    for off in (0x041F, 0x081F, 0x101F, 0x201F, 0x401F):
        A(f"ds_swizzle_b32 v{a_}, v{S1} offset:{off}")
        A(f"ds_swizzle_b32 v{b_}, v{S2} offset:{off}")
        A("s_waitcnt lgkmcnt(0)")
        A(f"v_add_f32 v{S1}, v{S1}, v{a_}")
        A(f"v_add_f32 v{S2}, v{S2}, v{b_}")
    A(f"v_mul_f32 v{S1}, {f32(1/448)}, v{S1}")
    A(f"v_mul_f32 v{S2}, {f32(1/448)}, v{S2}")
    A(f"v_fma_f32 v{S2}, -v{S1}, v{S1}, v{S2}")
    A(f"v_max_f32 v{S2}, 0, v{S2}")
    A(f"v_add_f32 v{S2}, {f32(1e-5)}, v{S2}")
    A(f"v_rsq_f32 v{S2}, v{S2}")
    A("s_nop 0")
    for i in range(8):
        A(f"v_lshlrev_b32 v{a_}, 16, v{T+i}")
        A(f"v_and_b32 v{b_}, 0xffff0000, v{T+i}")
        A(f"v_sub_f32 v{a_}, v{a_}, v{S1}")
        A(f"v_sub_f32 v{b_}, v{b_}, v{S1}")
        A(f"v_mul_f32 v{a_}, v{a_}, v{S2}")
        A(f"v_mul_f32 v{b_}, v{b_}, v{S2}")
        A(f"v_cvt_pk_bf16_f32 v{T+i}, v{a_}, v{b_}")
    A(f"buffer_store_dwordx4 v[{T}:{T+3}], v9, s[20:23], 0 offen")
    A(f"buffer_store_dwordx4 v[{T+4}:{T+7}], v10, s[20:23], 0 offen")

    def rdX(buf, ks, xt):
        return f"ds_read_b128 v[{XB[buf]+4*xt}:{XB[buf]+4*xt+3}], v{VX+ks} offset:{xt*2048}"
    def rdW(buf, ks, wt, j):
        r = WB[buf] + 4 * wt + 2 * j
        return f"ds_read_b64_tr_b16 v[{r}:{r+1}], v{VW+wt} offset:{ks*16384 + j*2048}"
    def reads(buf, ks):
        o = [rdX(buf, ks, 0)]
        for wt in range(8):
            o += [rdW(buf, ks, wt, 0), rdW(buf, ks, wt, 1)]
        o += [rdX(buf, ks, xt) for xt in range(1, 8)]
        return o
    A("s_waitcnt vmcnt(26)")
    A("s_barrier")
    stamp(A, 1)
    if G.STAMP: A("s_waitcnt lgkmcnt(0)")
    for x in reads(0, 0): A(x)
    A(f"s_mov_b32 s{sCNT}, 0")
    A(f"s_mov_b32 s{sDA}, 32768")
    A(f"s_mov_b32 s{sMOD}, 0")
    A(f"s_mov_b32 s{sC32}, 32768")
    A(f"s_mov_b32 s{sCM64}, 0xffff0000")
    A(f"s_cmp_eq_u32 s{sISV}, 0")
    A("s_cbranch_scc0 K1_LOOP_V")

    for variant in ("K", "V"):
        A(".p2align 6")
        A.label(f"K1_LOOP_{variant}")
        for ks in range(2):
            buf = ks
            mf = []
            for xt in range(8):
                for wt in range(8):
                    acc = (xt * 8 + wt) * 4
                    x = vr(XB[buf] + 4 * xt, 4); w = vr(WB[buf] + 4 * wt, 4)
                    a, b = (w, x) if variant == "K" else (x, w)
                    mf.append(f"{MF} {ar(acc,4)}, {a}, {b}, {ar(acc,4)}")
            fill = {i: [] for i in range(-1, 64)}
            fill[-1].append(f"s_waitcnt vmcnt({20 if ks == 0 else 16}) lgkmcnt(0)")
            fill[-1].append("s_barrier")
            if ks == 1:
                for k in range(2):
                    fill[-1].append(f"v_add_u32 v{VX+k}, s{sDA}, v{VX+k}")
                for k in range(8):
                    fill[k].append(f"v_xor_b32 v{VW+k}, 0x8000, v{VW+k}")
            rs = reads(buf ^ 1, ks ^ 1)
            r0 = 8 if ks == 1 else 0
            if ks == 1:
                rs_sched = rs
            for i, r in enumerate(rs):
                fill[r0 + 2 * i if r0 + 2 * i < 56 else 55].append(r) if False else None
            for i, r in enumerate(rs):
                fill[r0 + 2 * i].append(r)
            if ks == 0:
                g1 = dma_A(1, sBM, sBO); g2 = dma_W(sW0M, sWOFF)
                fill[1] += [f"s_cmp_ge_u32 s{sCNT}, 14",
                            f"s_cselect_b32 s10, 0, {1024*8192}"]
            else:
                g1 = dma_W(sW1M, sWOFF1); g2 = dma_A(0, sAM, sAOf)
            fill[3] += g1[0]
            for q in range(4):
                fill[5 + 8 * q].append(g1[1][q])
            fill[33] += g2[0]
            for q in range(4):
                fill[35 + 8 * q].append(g2[1][q])
            if ks == 0:
                fill[31] += [f"s_cmp_ge_u32 s{sCNT}, 13", f"s_cselect_b32 s6, 0, {2048*2048}"]
            else:
                fill[61] += [f"s_mov_b32 s{sBM}, s{sBM}"] if False else []
            interleave(A, mf, fill)
        A(f"s_add_u32 s{sBM}, s{sBM}, 32768")
        A(f"s_cmp_eq_u32 s{sBM}, s70")
        A(f"s_cselect_b32 s{sT1}, {3*32768}, 0")
        A(f"s_sub_u32 s{sBM}, s{sBM}, s{sT1}")
        A(f"s_add_u32 s{sAM}, s{sAM}, 32768")
        A(f"s_cmp_eq_u32 s{sAM}, s70")
        A(f"s_cselect_b32 s{sT1}, {3*32768}, 0")
        A(f"s_sub_u32 s{sAM}, s{sAM}, s{sT1}")
        A(f"s_add_u32 s{sBO}, s{sBO}, 128")
        A(f"s_add_u32 s{sAOf}, s{sAOf}, 128")
        A(f"s_add_u32 s{sWOFF}, s{sWOFF}, {64*8192}")
        A(f"s_add_u32 s{sWOFF1}, s{sWOFF1}, {64*8192}")
        A(f"s_xor_b32 s{sW0M}, s{sW0M}, 0x8000")
        A(f"s_xor_b32 s{sW1M}, s{sW1M}, 0x8000")
        A(f"s_add_u32 s{sCNT}, s{sCNT}, 1")
        A(f"s_add_u32 s{sMOD}, s{sMOD}, 1")
        A(f"s_cmp_eq_u32 s{sMOD}, 3")
        A(f"s_cselect_b32 s{sMOD}, 0, s{sMOD}")
        A(f"s_cmp_eq_u32 s{sMOD}, 2")
        A(f"s_cselect_b32 s{sDA}, s{sCM64}, s{sC32}")
        A(f"s_cmp_lt_u32 s{sCNT}, 16")
        A(f"s_cbranch_scc1 K1_LOOP_{variant}")
        A(f"s_branch K1_EPI_{variant}")
    for variant in ("K", "V"):
        A.label(f"K1_EPI_{variant}")
        stamp(A, 2)
        A("s_waitcnt lgkmcnt(0)")
        A(f"s_lshl_b32 s{sOUT}, s{sHEAD}, 6")
        A(f"s_lshl_b32 s{sT0}, s{sRB}, 3")
        A(f"s_add_u32 s{sOUT}, s{sOUT}, s{sT0}")
        A(f"s_lshl_b32 s{sT0}, s{sWX}, 2")
        A(f"s_add_u32 s{sOUT}, s{sOUT}, s{sT0}")
        A(f"s_lshl_b32 s{sOUT}, s{sOUT}, 14")
        A(f"s_lshl_b32 s{sT0}, s{sWW}, {12 if variant == 'K' else 13}")
        A(f"s_add_u32 s{sOUT}, s{sOUT}, s{sT0}")
        A("v_lshlrev_b32 v5, 4, v2")
        A("v_add_u32 v6, 4096, v5")
        A("s_nop 7")
        n = 0
        if variant == "K":
            items = [(xt, u) for xt in range(8) for u in range(4)]
        else:
            items = [(u, wt) for u in range(4) for wt in range(8)]
        for it in items:
            b = T + (n % 4) * 12
            n += 1
            if variant == "K":
                xt, u = it
                t0, t1 = (xt * 8 + 2 * u) * 4, (xt * 8 + 2 * u + 1) * 4
                soff = xt * 8192 + u * 1024
            else:
                u, wt = it
                t0, t1 = ((2 * u) * 8 + wt) * 4, ((2 * u + 1) * 8 + wt) * 4
                soff = u * 16384 + wt * 1024
            for i in range(4):
                A(f"v_accvgpr_read_b32 v{b+i}, a{t0+i}")
                A(f"v_accvgpr_read_b32 v{b+4+i}, a{t1+i}")
            for i in range(4):
                A(f"v_cvt_pk_bf16_f32 v{b+8+i}, v{b+2*i}, v{b+2*i+1}")
            base = soff // 8192 * 8192
            rem = soff - base
            if rem == 0 and n > 1:
                prev = getattr(gen_k1, "_prev", 0)
                A(f"s_add_u32 s{sOUT}, s{sOUT}, {base - prev}")
            gen_k1._prev = base
            vo = 5 if rem < 4096 else 6
            A(f"buffer_store_dwordx4 v[{b+8}:{b+11}], v{vo}, s[12:15], s{sOUT} offen offset:{rem & 4095}")
        gen_k1._prev = 0
        if variant == "K":
            A("s_branch K1_FIN")
    A.label("K1_FIN")
    stamp(A, 3)
    if G.STAMP:
        A("s_waitcnt vmcnt(0) lgkmcnt(0)")
    stamp(A, 4)
    stamp_flush(A, 6, 28, 29, sW)
    A.label("K1_END")
    A("s_endpgm")
    return name, 216, 256
```

```python
from gen_common import *
import gen_common as G
import math

MF = "v_mfma_f32_16x16x32_bf16"
QSCALE = math.log2(math.e) / 16.0
THRESH = 2.0 ** 40

vLANE = 2
vL16 = 3
vPA16, vPA32 = 4, 5
vDLT = 6
vKA, vVA = 7, 8
vT = [9, 10, 11, 12, 13, 14, 15]
vVOW = 16
vWR = 20
vL = 28
vTS = 30
vNEGM = 32
vFR = 40
vS = [72, 88]
vE = 104
vP = 120
vQ = 128
vXN = 72
NVGPR = 192
NFR = 8
DPRE = 6

(sW, sHEAD, sQB, sT0, sT1, sT2, sI, sDIAG, sN, sKM0, sVM0, sKOFF, sVOFF, sKSL, sVSL, sSTR, sWOFFL, sWOFFR, sWM0, sJ, sROW0,
 sKRD, sVRD) = range(30, 53)
S_X, S_WL, S_WR, S_K, S_V, S_AF = 4, 8, 12, 16, 20, 24
sWS = 28

KRING, VRING = 5, 4
VBASE = KRING * 16384

def frag(i):
    r = vFR + 4 * (i % NFR)
    return r

def proj(A, tag):
    A("s_waitcnt vmcnt(8)")
    A(f"s_mul_i32 s{sT0}, s{sROW0}, {14*1024}")
    for qt in range(2):
        for ks in range(14):
            r = vXN + (ks * 2 + qt) * 4
            off = ks * 1024
            A(f"s_add_u32 s{sT1}, s{sT0}, {qt*14*1024 + (off // 4096) * 4096}") if off % 4096 == 0 else None
            A(f"buffer_load_dwordx4 v[{r}:{r+3}], v{vL16}, s[{S_X}:{S_X+3}], s{sT1} offen offset:{off % 4096}")
    t0, t1, t2 = vT[0], vT[1], vT[2]
    A(f"v_lshrrev_b32 v{t0}, 4, v{vLANE}")
    A(f"v_and_b32 v{t1}, 15, v{vLANE}")
    for q in range(4):
        A(f"v_or_b32 v{t2}, {((q>>1)&1)<<2}, v{t0}")
        A(f"v_lshlrev_b32 v{t2}, 1, v{t2}")
        A(f"v_xor_b32 v{t2}, v{t2}, v{t1}")
        A(f"v_lshlrev_b32 v{t2}, 4, v{t2}")
        A(f"v_add_u32 v{vVOW+q}, {4*q}, v{t0}")
        A(f"v_mul_lo_u32 v{vVOW+q}, v{vVOW+q}, s{sSTR}")
        A(f"v_add_u32 v{vVOW+q}, v{vVOW+q}, v{t2}")
        A(f"v_subrev_u32 v{vVOW+q}, {q*1024}, v{vVOW+q}")
    A(f"s_mul_i32 s{sT1}, s{sW}, s{sSTR}")
    A(f"s_lshl_b32 s{sT1}, s{sT1}, 4")
    A(f"s_add_u32 s{sWOFFL}, s{sWOFFL}, s{sT1}")
    A(f"s_add_u32 s{sWOFFR}, s{sWOFFR}, s{sT1}")
    A(f"s_lshl_b32 s{sSTR}, s{sSTR}, 6")
    A(f"s_lshl_b32 s{sWM0}, s{sW}, 12")
    A(f"v_bfe_u32 v{t0}, v{vLANE}, 2, 2")
    A(f"v_lshrrev_b32 v{t1}, 4, v{vLANE}")
    A(f"v_lshl_add_u32 v{t1}, v{t1}, 3, v{t0}")
    A(f"v_lshlrev_b32 v{t1}, 8, v{t1}")
    A(f"v_and_b32 v{t2}, 1, v{vLANE}")
    A(f"v_lshl_add_u32 v{t1}, v{t2}, 3, v{t1}")
    A(f"v_bfe_u32 v{t2}, v{vLANE}, 4, 1")
    A(f"v_lshl_add_u32 v{t0}, v{t2}, 2, v{t0}")
    A(f"v_lshlrev_b32 v{t0}, 1, v{t0}")
    A(f"v_bfe_u32 v{t2}, v{vLANE}, 1, 1")
    for ft in range(8):
        A(f"v_add_u32 v{vT[3]}, {2*ft}, v{t2}")
        A(f"v_xor_b32 v{vT[3]}, v{vT[3]}, v{t0}")
        A(f"v_lshl_add_u32 v{vWR+ft}, v{vT[3]}, 4, v{t1}")

    def dma(slot_expr_s, first=False):
        o = []
        for half, (srd_, soff) in enumerate(((S_WL, sWOFFL), (S_WR, sWOFFR))):
            o.append([f"s_add_u32 m0, s{slot_expr_s}, {half*16384}"] +
                     [f"buffer_load_dwordx4 v{vVOW+q}, s[{srd_}:{srd_+3}], s{soff} offen offset:{q*1024} lds" for q in range(4)])
        return o
    adv = [f"s_add_u32 s{sWOFFL}, s{sWOFFL}, s{sSTR}", f"s_add_u32 s{sWOFFR}, s{sWOFFR}, s{sSTR}"]
    A("s_barrier")
    for j in range(3):
        A(f"s_add_u32 s{sT2}, s{sWM0}, {j*32768}")
        for grp in dma(sT2):
            A(grp[0]); A("s_nop 0")
            for x in grp[1:]: A(x)
        for x in adv: A(x)
    for i in range(128):
        A(f"v_accvgpr_write_b32 a{i}, 0")
    def rd(n, slotoff):
        ks_, dt = n // 16, n % 16
        r = frag(n)
        off = slotoff + (dt // 8) * 16384 + ks_ * 8192
        return [f"ds_read_b64_tr_b16 v[{r}:{r+1}], v{vWR + dt % 8} offset:{off}",
                f"ds_read_b64_tr_b16 v[{r+2}:{r+3}], v{vWR + dt % 8} offset:{off + 1024}"]
    A("s_waitcnt vmcnt(16)")
    A("s_barrier")
    for n in range(DPRE):
        for x in rd(n, 0): A(x)
    hi = False
    for j in range(7):
        slot = j % 4
        mf = []; fill = {i: [] for i in range(-1, 64)}
        if j > 0 or True:
            n_out = 8 if j + 3 <= 7 and j >= 1 and (j + 2) <= 6 else 0
            if j == 0: n_out = 8
            fill[-1].append(f"s_waitcnt vmcnt({n_out})")
            fill[-1].append("s_barrier")
        for n in range(32):
            ks_, dt = n // 16, n % 16
            ks = 2 * j + ks_
            r = frag(n)
            for qt in range(2):
                acc = (dt * 2 + qt) * 4
                x = vXN + (ks * 2 + qt) * 4
                mf.append(f"{MF} {ar(acc,4)}, {vr(r,4)}, {vr(x,4)}, {ar(acc,4)}")
            if n % 2 == 0:
                tgt = fill[2 * n - 1]
                lim = DPRE - 2 if j < 6 else max(0, min(DPRE - 2, 31 - (n + 1)))
                tgt.append(f"s_waitcnt lgkmcnt({2*lim})")
            m = n + DPRE
            if m < 32:
                so = (slot % 2) * 32768
                fill[2 * n] += rd(m, so)[:1]; fill[2 * n + 1] += rd(m, so)[1:]
            elif j < 6:
                nslot = (j + 1) % 4
                if m == 32 and (nslot // 2) != (slot // 2):
                    d = 65536 if nslot // 2 == 1 else -65536
                    for ft in range(8):
                        fill[2 * n - 1].append(f"v_add_u32 v{vWR+ft}, {d & 0xffffffff}, v{vWR+ft}")
                so = (nslot % 2) * 32768
                fill[2 * n] += rd(m - 32, so)[:1]; fill[2 * n + 1] += rd(m - 32, so)[1:]
        if j + 3 <= 6:
            A(f"s_add_u32 s{sT2}, s{sWM0}, {((j+3) % 4)*32768}") if False else None
            fill[0].append(f"s_add_u32 s{sT2}, s{sWM0}, {((j+3) % 4)*32768}")
            g = dma(sT2)
            fill[1].append(g[0][0])
            for q in range(4): fill[3 + 6 * q].append(g[0][1 + q])
            fill[27].append(g[1][0])
            for q in range(4): fill[29 + 6 * q].append(g[1][1 + q])
            fill[55] += adv
        interleave(A, mf, fill)

def gen_k2(A):
    name = "k2_attn_kernel"
    kernel_header(A, name)
    A("s_cmp_ge_u32 s2, 256")
    A("s_cbranch_scc1 K2_END")
    stamp(A, 0); rstamp(A, 5)
    A(f"s_load_dwordx2 s[{sWS}:{sWS+1}], s[0:1], {KA['ws']}")
    A(f"s_load_dwordx2 s[54:55], s[0:1], {KA['wq']}")
    A(f"s_load_dwordx4 s[56:59], s[0:1], {KA['wg']}")
    A("v_lshrrev_b32 v1, 6, v0")
    A(f"v_and_b32 v{vLANE}, 63, v0")
    A(f"v_readfirstlane_b32 s{sW}, v1")
    A(f"v_lshlrev_b32 v{vL16}, 4, v{vLANE}")
    A(f"v_xor_b32 v{vPA16}, 16, v{vLANE}")
    A(f"v_lshlrev_b32 v{vPA16}, 2, v{vPA16}")
    A(f"v_xor_b32 v{vPA32}, 32, v{vLANE}")
    A(f"v_lshlrev_b32 v{vPA32}, 2, v{vPA32}")
    A(f"v_and_b32 v{vDLT}, 15, v{vLANE}")
    A(f"v_lshrrev_b32 v{vT[0]}, 4, v{vLANE}")
    A(f"v_lshlrev_b32 v{vT[0]}, 2, v{vT[0]}")
    A(f"v_sub_u32 v{vDLT}, v{vDLT}, v{vT[0]}")
    A("s_and_b32 s3, s2, 7")
    A(f"s_lshr_b32 s{sT0}, s2, 3")
    A(f"s_and_b32 s{sT1}, s{sT0}, 1")
    A(f"s_lshl_b32 s{sHEAD}, s3, 1")
    A(f"s_add_u32 s{sHEAD}, s{sHEAD}, s{sT1}")
    A(f"s_lshr_b32 s{sQB}, s2, 4")
    A(f"s_sub_u32 s{sQB}, 15, s{sQB}")
    A("s_waitcnt lgkmcnt(0)")
    srd(A, S_X, sWS, sWS + 1, XN_SIZE, XN_OFF)
    srd(A, S_WL, 54, 55, 448 * 8192)
    srd(A, S_WR, 54, 55, 448 * 8192)
    srd(A, S_K, sWS, sWS + 1, KF_SIZE, KF_OFF)
    srd(A, S_V, sWS, sWS + 1, KF_SIZE, VF_OFF)
    srd(A, S_AF, sWS, sWS + 1, AF_SIZE, AF_OFF)
    A(f"s_mov_b32 s{sSTR}, 8192")
    A(f"s_lshl_b32 s{sWOFFL}, s{sHEAD}, 9")
    A(f"s_add_u32 s{sWOFFR}, s{sWOFFL}, 256")
    A(f"s_lshl_b32 s{sROW0}, s{sQB}, 3")
    A(f"s_lshl_b32 s{sT0}, s{sW}, 1")
    A(f"s_add_u32 s{sROW0}, s{sROW0}, s{sT0}")
    proj(A, "Q")
    stamp(A, 1)
    attention(A)
    stamp(A, 2)
    A("s_cmp_ge_u32 s2, 224")
    A("s_cbranch_scc1 K2_FIN")
    A("s_and_b32 s3, s2, 7")
    A(f"s_lshr_b32 s{sT0}, s2, 3")
    A(f"s_mul_i32 s{sT1}, s3, 28")
    A(f"s_add_u32 s{sT0}, s{sT0}, s{sT1}")
    A(f"s_lshr_b32 s{sJ}, s{sT0}, 4")
    A(f"s_and_b32 s{sT0}, s{sT0}, 15")
    A(f"s_lshl_b32 s{sROW0}, s{sT0}, 3")
    A(f"s_lshl_b32 s{sT0}, s{sW}, 1")
    A(f"s_add_u32 s{sROW0}, s{sROW0}, s{sT0}")
    srd(A, S_WL, 56, 57, 448 * 3584)
    srd(A, S_WR, 58, 59, 448 * 3584)
    A(f"s_mov_b32 s{sSTR}, 3584")
    A(f"s_lshl_b32 s{sWOFFL}, s{sJ}, 8")
    A(f"s_mov_b32 s{sWOFFR}, s{sWOFFL}")
    A(f"s_mov_b32 s60, s{sJ}")
    proj(A, "G")
    A(f"s_mul_i32 s{sT0}, s{sROW0}, {184*1024}")
    A(f"s_lshl_b32 s{sT1}, s60, 12")
    A(f"s_add_u32 s{sT0}, s{sT0}, s{sT1}")
    A(f"s_add_u32 s{sT0}, s{sT0}, {128*1024}")
    A("s_nop 7")
    n = 0
    for qt in range(2):
        for u in range(4):
            b = 72 + (n % 4) * 24; n += 1
            for k in range(2):
                ft = 2 * u + k
                for r in range(4):
                    A(f"v_accvgpr_read_b32 v{b+4*k+r}, a{(ft*2+qt)*4+r}")
                    A(f"v_accvgpr_read_b32 v{b+8+4*k+r}, a{((ft+8)*2+qt)*4+r}")
            for e in range(8):
                A(f"v_mul_f32 v{b+e}, v{b+e}, v{b+8+e}")
            for e in range(4):
                A(f"v_cvt_pk_bf16_f32 v{b+16+e}, v{b+2*e}, v{b+2*e+1}")
            A(f"buffer_store_dwordx4 v[{b+16}:{b+19}], v{vL16}, s[{S_AF}:{S_AF+3}], s{sT0} offen offset:{u*1024}")
        A(f"s_add_u32 s{sT0}, s{sT0}, {184*1024}")
    A.label("K2_FIN")
    stamp(A, 3)
    if G.STAMP: A("s_waitcnt vmcnt(0) lgkmcnt(0)")
    stamp(A, 4)
    stamp_flush(A, 6, sWS, sWS + 1, sW, kidx=1)
    A.label("K2_END")
    A("s_endpgm")
    return name, NVGPR, 128

def kdma():
    return ([f"s_mov_b32 m0, s{sKM0}"],
            [f"buffer_load_dwordx4 v{vL16}, s[{S_K}:{S_K+3}], s{sKOFF} offen offset:{q*1024} lds" for q in range(4)])
def vdma():
    return ([f"s_mov_b32 m0, s{sVM0}"],
            [f"buffer_load_dwordx4 v{vL16}, s[{S_V}:{S_V+3}], s{sVOFF} offen offset:{q*1024} lds" for q in range(4)])
def kadv():
    return [f"s_add_u32 s{sKOFF}, s{sKOFF}, 16384",
            f"s_add_u32 s{sKM0}, s{sKM0}, 16384",
            f"s_cmp_ge_u32 s{sKM0}, {KRING*16384}",
            f"s_cselect_b32 s{sT2}, {KRING*16384}, 0",
            f"s_sub_u32 s{sKM0}, s{sKM0}, s{sT2}"]
def vadv():
    return [f"s_add_u32 s{sVOFF}, s{sVOFF}, 16384",
            f"s_add_u32 s{sVM0}, s{sVM0}, 16384",
            f"s_cmp_ge_u32 s{sVM0}, {VBASE + VRING*16384}",
            f"s_cselect_b32 s{sT2}, {VRING*16384}, 0",
            f"s_sub_u32 s{sVM0}, s{sVM0}, s{sT2}"]
def krd_adv():
    return [f"s_add_u32 s{sKRD}, s{sKRD}, 16384",
            f"s_cmp_ge_u32 s{sKRD}, {KRING*16384}",
            f"s_cselect_b32 s{sKRD}, 0, s{sKRD}",
            f"v_add_u32 v{vKA}, s{sKRD}, v{vL16}"]
def vrd_adv():
    return [f"s_add_u32 s{sVRD}, s{sVRD}, 16384",
            f"s_cmp_ge_u32 s{sVRD}, {VBASE + VRING*16384}",
            f"s_cselect_b32 s{sVRD}, {VBASE}, s{sVRD}",
            f"v_add_u32 v{vVA}, s{sVRD}, v{vL16}"]

def kread(n):
    r = frag(n)
    return f"ds_read_b128 v[{r}:{r+3}], v{vKA} offset:{n*1024}"
def vread(n):
    r = frag(16 + n)
    return f"ds_read_b128 v[{r}:{r+3}], v{vVA} offset:{n*1024}"

def S(buf, kt, qt): return vS[buf] + (kt * 2 + qt) * 4
def E(kt, qt): return vE + (kt * 2 + qt) * 4

def qk_mfmas(buf, cinit):
    mf = []
    for kt in range(2):
        for ks in range(8):
            r = frag(kt * 8 + ks)
            for qt in range(2):
                d = S(buf, kt, qt)
                c = (cinit(qt) if ks == 0 else vr(d, 4))
                mf.append(f"{MF} {vr(d,4)}, {vr(r,4)}, {vr(vQ + (qt*8+ks)*4, 4)}, {c}")
    return mf
def pv_mfmas():
    mf = []
    for dt in range(16):
        r = frag(16 + dt)
        for qt in range(2):
            acc = (dt * 2 + qt) * 4
            mf.append(f"{MF} {ar(acc,4)}, {vr(r,4)}, {vr(vP + qt*4, 4)}, {ar(acc,4)}")
    return mf

def exps(buf, kt):
    return [f"v_exp_f32 v{E(kt,qt)+r}, v{S(buf,kt,qt)+r}" for qt in range(2) for r in range(4)]
def sums_cvts():
    o = []
    t = vT
    for qt in range(2):
        a, b = E(0, qt), E(1, qt)
        o.append(f"v_cvt_pk_bf16_f32 v{vP+qt*4}, v{a}, v{a+1}")
        o.append(f"v_cvt_pk_bf16_f32 v{vP+qt*4+1}, v{a+2}, v{a+3}")
        o.append(f"v_add_f32 v{t[2*qt]}, v{a}, v{a+1}")
        o.append(f"v_add_f32 v{t[2*qt+1]}, v{a+2}, v{a+3}")
        o.append(f"v_add_f32 v{t[2*qt]}, v{t[2*qt]}, v{t[2*qt+1]}")
    first = o
    o = []
    for qt in range(2):
        a, b = E(0, qt), E(1, qt)
        o.append(f"v_cvt_pk_bf16_f32 v{vP+qt*4+2}, v{b}, v{b+1}")
        o.append(f"v_cvt_pk_bf16_f32 v{vP+qt*4+3}, v{b+2}, v{b+3}")
        o.append(f"v_add_f32 v{t[2*qt+1]}, v{b}, v{b+1}")
        o.append(f"v_add_f32 v{t[2*qt]}, v{t[2*qt]}, v{t[2*qt+1]}")
        o.append(f"v_add_f32 v{t[2*qt+1]}, v{b+2}, v{b+3}")
        o.append(f"v_add_f32 v{vTS+qt}, v{t[2*qt]}, v{t[2*qt+1]}")
    return first, o

def mask_block(A, buf):
    A("s_nop 7")
    A(f"v_mov_b32 v{vT[6]}, 0xff800000")
    for r in range(4):
        A(f"v_cmp_gt_i32 vcc, {r}, v{vDLT}")
        A("s_nop 1")
        A(f"v_cndmask_b32 v{S(buf,0,0)+r}, v{S(buf,0,0)+r}, v{vT[6]}, vcc")
        A(f"v_cndmask_b32 v{S(buf,1,1)+r}, v{S(buf,1,1)+r}, v{vT[6]}, vcc")
        A(f"v_mov_b32 v{S(buf,1,0)+r}, v{vT[6]}")

def rowmax(A, buf, qt, dst):
    a, b = S(buf, 0, qt), S(buf, 1, qt)
    A(f"v_max3_f32 v{dst}, v{a}, v{a+1}, v{a+2}")
    A(f"v_max3_f32 v{dst}, v{dst}, v{a+3}, v{b}")
    A(f"v_max3_f32 v{dst}, v{dst}, v{b+1}, v{b+2}")
    A(f"v_max_f32 v{dst}, v{dst}, v{b+3}")

def xreduce(A, regs, op, tmp):
    for pa in (vPA16, vPA32):
        for k, r in enumerate(regs):
            A(f"ds_bpermute_b32 v{tmp[k]}, v{pa}, v{r}")
        A("s_waitcnt lgkmcnt(0)")
        for k, r in enumerate(regs):
            A(f"{op} v{r}, v{r}, v{tmp[k]}")

def attention(A):
    A(f"s_lshl_b32 s{sN}, s{sQB}, 2")
    A(f"s_add_u32 s{sDIAG}, s{sN}, s{sW}")
    A(f"s_add_u32 s{sN}, s{sN}, 4")
    A(f"s_lshl_b32 s{sKOFF}, s{sHEAD}, 20")
    A(f"s_lshl_b32 s{sT0}, s{sN}, 14")
    A(f"s_add_u32 s{S_K+2}, s{sKOFF}, s{sT0}")
    A(f"s_mov_b32 s{S_V+2}, s{S_K+2}")
    A(f"s_lshl_b32 s{sT0}, s{sW}, 12")
    A(f"s_add_u32 s{sKOFF}, s{sKOFF}, s{sT0}")
    A(f"s_mov_b32 s{sVOFF}, s{sKOFF}")
    A(f"s_mov_b32 s{sKM0}, s{sT0}")
    A(f"s_add_u32 s{sVM0}, s{sT0}, {VBASE}")
    A("s_waitcnt lgkmcnt(0)")
    A("s_barrier")
    def issue(od, adv):
        for x in od[0]: A(x)
        A("s_nop 0")
        for x in od[1]: A(x)
        for x in adv: A(x)
    issue(kdma(), kadv_w()); issue(kdma(), kadv_w())
    for k in range(3):
        issue(kdma(), kadv_w()); issue(vdma(), vadv_w())
    A(f"s_mov_b32 s{sT0}, {f32(QSCALE)}")
    n = 0
    for qt in range(2):
        for u in range(8):
            b = 72 + (n % 3) * 8; n += 1
            for k in range(2):
                for r in range(4):
                    A(f"v_accvgpr_read_b32 v{b+4*k+r}, a{((2*u+k)*2+qt)*4+r}")
            for e in range(8):
                A(f"v_mul_f32 v{b+e}, s{sT0}, v{b+e}")
            for e in range(4):
                A(f"v_cvt_pk_bf16_f32 v{vQ+(qt*8+u)*4+e}, v{b+2*e}, v{b+2*e+1}")
    for i in range(128):
        A(f"v_accvgpr_write_b32 a{i}, 0")
    A(f"v_mov_b32 v{vL}, 0")
    A(f"v_mov_b32 v{vL+1}, 0")
    A(f"s_mov_b32 s{sKRD}, 0")
    A(f"v_mov_b32 v{vKA}, v{vL16}")
    A(f"s_mov_b32 s{sVRD}, {VBASE}")
    A(f"v_add_u32 v{vVA}, {VBASE}, v{vL16}")
    A("s_waitcnt vmcnt(24)")
    A("s_barrier")
    for n in range(8): A(kread(n))
    mf = qk_mfmas(0, lambda qt: "0")
    fill = {i: [] for i in range(-1, 32)}
    fill[-1].append("s_waitcnt lgkmcnt(0)")
    for n in range(8, 16):
        fill[2 * (n - 8) + 1].append(kread(n))
    fill[15].append("s_waitcnt lgkmcnt(0)")
    interleave(A, mf, fill)
    for x in krd_adv(): A(x)
    A(f"s_cmp_eq_u32 s{sDIAG}, 0")
    A("s_cbranch_scc0 K2_NOMASK0")
    mask_block(A, 0)
    A.label("K2_NOMASK0")
    A("s_nop 7")
    for qt in range(2): rowmax(A, 0, qt, vT[qt])
    xreduce(A, [vT[0], vT[1]], "v_max_f32", [vT[2], vT[3]])
    for qt in range(2):
        for r in range(4):
            A(f"v_sub_f32 v{vNEGM+qt*4+r}, 0, v{vT[qt]}")
        for kt in range(2):
            for r in range(4):
                A(f"v_sub_f32 v{S(0,kt,qt)+r}, v{S(0,kt,qt)+r}, v{vT[qt]}")
    for x in exps(0, 0): A(x)
    for n in range(DPRE): A(kread(n))
    A(f"s_mov_b32 s{sI}, 0")
    A(f"s_cmp_eq_u32 s{sDIAG}, 0")
    A("s_cbranch_scc1 K2_LAST0")

    first, second = sums_cvts()
    def blockA(cur, with_qk, tag):
        nxt = cur ^ 1
        pre = ["s_waitcnt vmcnt(16)", "s_barrier"]
        soft = exps(cur, 1)
        if with_qk:
            mf = qk_mfmas(nxt, lambda qt: vr(vNEGM + qt * 4, 4))
            fill = {i: [] for i in range(-1, 32)}
            fill[-1] += pre
            for n in range(16):
                if n % 2 == 0:
                    fill[2 * n - 1].append(f"s_waitcnt lgkmcnt({DPRE-2})")
                m = n + DPRE
                fill[2 * n].append(kread(m) if m < 16 else vread(m - 16))
            for e in range(8):
                fill[2 * e + 1].append(soft[e])
            for k, x in enumerate(first):
                fill[2 * (k // 2 * 1) + 0 + 4 * 0].append(x) if False else None
            lst = list(first)
            pos = [2, 4, 6, 8, 10, 12, 14, 16, 18, 20]
            for x, p in zip(lst, pos): fill[p].append(x)
            pos2 = [17, 19, 21, 23, 25, 27, 22, 24, 26, 28, 29, 30]
            order = second
            gaps = list(range(17, 31))
            for x, p in zip(order, gaps[:12]): fill[p].append(x)
            kd = kdma(); vd = vdma()
            fill[3] += kd[0]
            for q in range(4): fill[5 + 4 * q].append(kd[1][q]) if q < 4 else None
            fill[21] += kadv_w()
            interleave(A, mf, fill)
        else:
            for x in pre: A(x)
            A("s_waitcnt lgkmcnt(0)")
            for n in range(DPRE): A(vread(n))
            for x in soft: A(x)
            A("s_nop 0")
            for x in first: A(x)
            for x in second: A(x)
        A(f"v_add_f32 v{vT[4]}, v{vTS}, v{vTS+1}")
        A(f"v_cmp_nle_f32 vcc, v{vT[4]}, v{vT[5]}") if False else None
        A(f"s_mov_b32 s{sT0}, {f32(THRESH)}")
        A(f"v_cmp_nge_f32 vcc, s{sT0}, v{vT[4]}")
        A(f"s_cbranch_vccnz K2_SLOW_{tag}")
        A.label(f"K2_BACK_{tag}")
        A(f"v_add_f32 v{vL}, v{vL}, v{vTS}")
        A(f"v_add_f32 v{vL+1}, v{vL+1}, v{vTS+1}")

    def blockB(cur, with_next, tag):
        nxt = cur ^ 1
        mf = pv_mfmas()
        fill = {i: [] for i in range(-1, 32)}
        if with_next:
            A(f"s_add_u32 s{sT0}, s{sI}, 1")
            A(f"s_cmp_eq_u32 s{sT0}, s{sDIAG}")
            A(f"s_cbranch_scc0 K2_NOMASK_{tag}")
            mask_block(A, nxt)
            A.label(f"K2_NOMASK_{tag}")
        for n in range(16):
            if n % 2 == 0:
                lim = DPRE - 2
                if not with_next: lim = max(0, min(DPRE - 2, 16 - n - 2))
                fill[2 * n - 1].append(f"s_waitcnt lgkmcnt({lim})")
            m = n + DPRE
            if m < 16: fill[2 * n].append(vread(m))
            elif with_next: fill[2 * n].append(kread(m - 16))
        if with_next:
            fill[0] += krd_adv()[:3]; fill[1] += krd_adv()[3:]
            soft = exps(nxt, 0)
            for e in range(8):
                fill[9 + 2 * e].append(soft[e])
            vd = vdma()
            fill[2] += vd[0]
            for q in range(4): fill[3 + 2 * q if False else 4 + 6 * q + 1].append(vd[1][q])
            fill[26] += vadv_w()
            fill[28] += vrd_adv()[:3]; fill[29] += vrd_adv()[3:]
        else:
            vd = vdma()
            fill[2] += vd[0]
            for q in range(4): fill[5 + 6 * q].append(vd[1][q])
        interleave(A, mf, fill)

    slow = []
    A(".p2align 6")
    A.label("K2_LOOP")
    for cur in range(2):
        tag = f"F{cur}"
        blockA(cur, True, tag)
        blockB(cur, True, tag)
        slow.append((tag, cur, True))
        A(f"s_add_u32 s{sI}, s{sI}, 1")
        A(f"s_cmp_eq_u32 s{sI}, s{sDIAG}")
        if cur == 0:
            A("s_cbranch_scc1 K2_LAST1")
        else:
            A("s_cbranch_scc0 K2_LOOP")
    for cur in range(2):
        A.label(f"K2_LAST{cur}")
        tag = f"L{cur}"
        blockA(cur, False, tag)
        blockB(cur, False, tag)
        slow.append((tag, cur, False))
        if cur == 0: A("s_branch K2_IDLE")
    A.label("K2_IDLE")
    A(f"s_add_u32 s{sI}, s{sI}, 1")
    A(f"s_cmp_ge_u32 s{sI}, s{sN}")
    A("s_cbranch_scc1 K2_ATT_EPI")
    A("s_waitcnt vmcnt(0)")
    A("s_barrier")
    A("s_branch K2_IDLE")
    for tag, cur, with_next in slow:
        A.label(f"K2_SLOW_{tag}")
        A("s_nop 7")
        A("s_nop 7")
        nxt = cur ^ 1
        for qt in range(2): rowmax(A, cur, qt, vT[qt])
        xreduce(A, [vT[0], vT[1]], "v_max_f32", [vT[2], vT[3]])
        for qt in range(2):
            A(f"v_max_f32 v{vT[qt]}, 0, v{vT[qt]}")
            A(f"v_sub_f32 v{vT[2+qt]}, 0, v{vT[qt]}")
            A(f"v_exp_f32 v{vT[2+qt]}, v{vT[2+qt]}")
        A("s_nop 0")
        for qt in range(2):
            A(f"v_mul_f32 v{vL+qt}, v{vL+qt}, v{vT[2+qt]}")
            for r in range(4):
                A(f"v_sub_f32 v{vNEGM+qt*4+r}, v{vNEGM+qt*4+r}, v{vT[qt]}")
            for kt in range(2):
                for r in range(4):
                    A(f"v_sub_f32 v{S(cur,kt,qt)+r}, v{S(cur,kt,qt)+r}, v{vT[qt]}")
                    if with_next:
                        A(f"v_sub_f32 v{S(nxt,kt,qt)+r}, v{S(nxt,kt,qt)+r}, v{vT[qt]}")
            for dt in range(16):
                for r in range(4):
                    a = (dt * 2 + qt) * 4 + r
                    A(f"v_accvgpr_read_b32 v{vT[4]}, a{a}")
                    A(f"v_mul_f32 v{vT[4]}, v{vT[4]}, v{vT[2+qt]}")
                    A(f"v_accvgpr_write_b32 a{a}, v{vT[4]}")
        for x in exps(cur, 0) + exps(cur, 1): A(x)
        A("s_nop 0")
        for x in first + second: A(x)
        A("s_nop 1")
        A(f"s_branch K2_BACK_{tag}")
    A.label("K2_ATT_EPI")
    A("s_nop 7")
    xreduce(A, [vL, vL + 1], "v_add_f32", [vT[2], vT[3]])
    A(f"v_rcp_f32 v{vT[0]}, v{vL}")
    A(f"v_rcp_f32 v{vT[1]}, v{vL+1}")
    A(f"s_mul_i32 s{sT0}, s{sROW0}, {184*1024}")
    A(f"s_lshl_b32 s{sT1}, s{sHEAD}, 13")
    A(f"s_add_u32 s{sT0}, s{sT0}, s{sT1}")
    n = 0
    for qt in range(2):
        for u in range(8):
            b = 72 + (n % 4) * 12; n += 1
            for k in range(2):
                for r in range(4):
                    A(f"v_accvgpr_read_b32 v{b+4*k+r}, a{((2*u+k)*2+qt)*4+r}")
            for e in range(8):
                A(f"v_mul_f32 v{b+e}, v{b+e}, v{vT[qt]}")
            for e in range(4):
                A(f"v_cvt_pk_bf16_f32 v{b+8+e}, v{b+2*e}, v{b+2*e+1}")
            if u == 4: A(f"s_add_u32 s{sT0}, s{sT0}, 4096")
            A(f"buffer_store_dwordx4 v[{b+8}:{b+11}], v{vL16}, s[{S_AF}:{S_AF+3}], s{sT0} offen offset:{(u%4)*1024}")
        A(f"s_add_u32 s{sT0}, s{sT0}, {184*1024 - 4096}")

def kadv_w():
    return [f"s_add_u32 s{sKOFF}, s{sKOFF}, 16384",
            f"s_add_u32 s{sKM0}, s{sKM0}, 16384",
            f"s_cmp_ge_u32 s{sKM0}, {KRING*16384}",
            f"s_cselect_b32 s{sT2}, {KRING*16384}, 0",
            f"s_sub_u32 s{sKM0}, s{sKM0}, s{sT2}"]
def vadv_w():
    return [f"s_add_u32 s{sVOFF}, s{sVOFF}, 16384",
            f"s_add_u32 s{sVM0}, s{sVM0}, 16384",
            f"s_cmp_ge_u32 s{sVM0}, {VBASE + VRING*16384}",
            f"s_cselect_b32 s{sT2}, {VRING*16384}, 0",
            f"s_sub_u32 s{sVM0}, s{sVM0}, s{sT2}"]
```

```python
from gen_common import *
import gen_common as G

MF = "v_mfma_f32_16x16x32_bf16"
vLANE, vL16 = 2, 3
vT = [4, 5, 6, 7, 8, 9]
vVOW = 10
vWR = 17
vXO = 21
vFR = 24
vAF = 56
NFR = 8; DPRE = 5
STG = 28672

(sW, sCB, sRB, sS, sT0, sT1, sT2, sKS, sNST, sST, sAOFF, sWM0, sTT, sKL, sLD) = range(30, 45)
S_A, S_W, S_P, S_X, S_O, S_D = 4, 8, 12, 16, 20, 24
sWS = 28

def gen_k3(A):
    name = "k3_out_kernel"
    kernel_header(A, name)
    A("s_cmp_ge_u32 s2, 256")
    A("s_cbranch_scc1 K3_END")
    stamp(A, 0); rstamp(A, 5)
    A(f"s_load_dwordx2 s[{sWS}:{sWS+1}], s[0:1], {KA['ws']}")
    A(f"s_load_dwordx2 s[46:47], s[0:1], {KA['wo']}")
    A(f"s_load_dwordx2 s[48:49], s[0:1], {KA['wd']}")
    A(f"s_load_dwordx2 s[50:51], s[0:1], {KA['x']}")
    A(f"s_load_dwordx4 s[52:55], s[0:1], {KA['out']}")
    A("v_lshrrev_b32 v1, 6, v0")
    A(f"v_and_b32 v{vLANE}, 63, v0")
    A(f"v_readfirstlane_b32 s{sW}, v1")
    A(f"v_lshlrev_b32 v{vL16}, 4, v{vLANE}")
    A("s_and_b32 s3, s2, 7")
    A(f"s_lshr_b32 s{sT0}, s2, 3")
    A(f"s_and_b32 s{sCB}, s{sT0}, 3")
    A(f"s_lshr_b32 s{sRB}, s{sT0}, 2")
    A(f"s_lshr_b32 s{sT1}, s3, 2")
    A(f"s_lshl_b32 s{sT1}, s{sT1}, 3")
    A(f"s_add_u32 s{sRB}, s{sRB}, s{sT1}")
    A(f"s_and_b32 s{sS}, s3, 3")
    A(f"s_lshl_b32 s{sTT}, s{sRB}, 2")
    A(f"s_add_u32 s{sTT}, s{sTT}, s{sCB}")
    A(f"s_mul_i32 s{sKS}, s{sS}, 48")
    A(f"s_cmp_eq_u32 s{sS}, 3")
    A(f"s_cselect_b32 s{sKS}, 140, s{sKS}")
    A(f"s_cmp_ge_u32 s{sS}, 2")
    A(f"s_cselect_b32 s{sNST}, 11, 12")
    A("s_waitcnt lgkmcnt(0)")
    srd(A, S_A, sWS, sWS + 1, AF_SIZE, AF_OFF)
    srd(A, S_W, 46, 47, 4096 * 896)
    srd(A, S_P, sWS, sWS + 1, 64 * 4 * 4 * 14 * 1024, P3_OFF)
    srd(A, S_X, 50, 51, 2048 * 896)
    srd(A, S_O, 52, 53, 2048 * 896)
    srd(A, S_D, 54, 55, 256)
    A(f"s_mov_b32 s{sT0}, {(2**32 + 13) // 14}")
    for q in range(7):
        A(f"v_add_u32 v{vT[0]}, {64*q}, v{vLANE}")
        A(f"v_mul_hi_u32 v{vT[1]}, v{vT[0]}, s{sT0}")
        A(f"v_mul_u32_u24 v{vT[2]}, 14, v{vT[1]}")
        A(f"v_sub_u32 v{vT[2]}, v{vT[0]}, v{vT[2]}")
        A(f"v_mul_u32_u24 v{vT[1]}, 896, v{vT[1]}")
        A(f"v_lshl_add_u32 v{vT[1]}, v{vT[2]}, 4, v{vT[1]}")
        A(f"v_subrev_u32 v{vVOW+q}, {(q % 4)*1024}, v{vT[1]}")
    A(f"v_lshrrev_b32 v{vT[0]}, 4, v{vLANE}")
    A(f"v_bfe_u32 v{vT[1]}, v{vLANE}, 2, 2")
    A(f"v_lshl_add_u32 v{vT[0]}, v{vT[0]}, 2, v{vT[1]}")
    A(f"v_mul_u32_u24 v{vT[0]}, 224, v{vT[0]}")
    A(f"v_and_b32 v{vT[1]}, 3, v{vLANE}")
    A(f"v_lshl_add_u32 v{vT[0]}, v{vT[1]}, 3, v{vT[0]}")
    for k in range(4):
        A(f"v_add_u32 v{vWR+k}, {k*STG}, v{vT[0]}")
    A(f"s_lshl_b32 s{sAOFF}, s{sRB}, 3")
    A(f"s_lshl_b32 s{sT0}, s{sW}, 1")
    A(f"s_add_u32 s{sAOFF}, s{sAOFF}, s{sT0}")
    A(f"s_mul_i32 s{sAOFF}, s{sAOFF}, {184*1024}")
    A(f"s_lshl_b32 s{sT0}, s{sKS}, 10")
    A(f"s_add_u32 s{sAOFF}, s{sAOFF}, s{sT0}")
    A(f"s_mul_i32 s{sWM0}, s{sW}, 7168")
    A(f"s_mov_b32 s{sLD}, 0")

    def loads(slot):
        o = []
        o.append(f"s_cmp_ge_u32 s{sLD}, s{sNST}")
        o.append(f"s_cselect_b32 s{S_A+2}, 0, {AF_SIZE}")
        o.append(f"s_cselect_b32 s{sKL}, 1, 0")
        o.append(f"s_cmp_ge_u32 s{sKS}, 128")
        o.append(f"s_cselect_b32 s{S_W}, s48, s46")
        o.append(f"s_cselect_b32 s{S_W+1}, s56, s57")
        o.append(f"s_cselect_b32 s{S_W+2}, {1792*896 }, s58")
        o.append(f"s_cselect_b32 s{sT1}, 128, 0")
        o.append(f"s_sub_u32 s{sT0}, s{sKS}, s{sT1}")
        o.append(f"s_add_u32 s{sT0}, s{sT0}, s{sW}")
        o.append(f"s_mul_i32 s{sT0}, s{sT0}, {32*896}")
        o.append(f"s_mul_i32 s{sT1}, s{sCB}, 224")
        o.append(f"s_add_u32 s{sT0}, s{sT0}, s{sT1}")
        o.append(f"s_cmp_eq_u32 s{sKL}, 1")
        o.append(f"s_cselect_b32 s{S_W+2}, 0, s{S_W+2}")
        o.append(f"s_add_u32 m0, s{sWM0}, {slot*STG}")
        d = []
        for q in range(7):
            if q == 4: d.append(f"s_add_u32 m0, s{sWM0}, {slot*STG + 4096}")
            d.append(f"buffer_load_dwordx4 v{vVOW+q}, s[{S_W}:{S_W+3}], s{sT0} offen offset:{(q%4)*1024} lds")
        a = []
        for kk in range(4):
            for rt in range(2):
                r = vAF + ((slot * 4 + kk) * 2 + rt) * 4
                a.append((r, kk, rt))
        al = []
        al.append(f"s_add_u32 s{sT2}, s{sAOFF}, {184*1024}")
        for (r, kk, rt) in a:
            al.append(f"buffer_load_dwordx4 v[{r}:{r+3}], v{vL16}, s[{S_A}:{S_A+3}], s{sAOFF if rt == 0 else sT2} offen offset:{kk*1024}")
        adv = [f"s_add_u32 s{sAOFF}, s{sAOFF}, 4096", f"s_add_u32 s{sKS}, s{sKS}, 4", f"s_add_u32 s{sLD}, s{sLD}, 1"]
        return o, d, al, adv
    A("s_and_b32 s57, s47, 0xffff")
    A("s_and_b32 s56, s49, 0xffff")
    A(f"s_mov_b32 s58, {4096*896}")
    for slot in range(3):
        o, d, al, adv = loads(slot)
        for x in o: A(x)
        A("s_nop 0")
        for x in d:
            A(x)
            if x.startswith("s_add_u32 m0"): A("s_nop 0")
        for x in al: A(x)
        for x in adv: A(x)
    for i in range(56):
        A(f"v_accvgpr_write_b32 a{i}, 0")
    A(f"s_mov_b32 s{sST}, 0")
    stamp(A, 1)

    def rd(n, slot):
        kk, ct = n // 7, n % 7
        r = vFR + 4 * ((slot * 28 + n) % NFR)
        off = kk * 7168 + ct * 32
        return [f"ds_read_b64_tr_b16 v[{r}:{r+1}], v{vWR+slot} offset:{off}",
                f"ds_read_b64_tr_b16 v[{r+2}:{r+3}], v{vWR+slot} offset:{off + 3584}"]
    A(".p2align 6")
    A.label("K3_LOOP")
    for slot in range(4):
        A("s_waitcnt vmcnt(30)")
        A("s_barrier")
        for n in range(DPRE):
            for x in rd(n, slot): A(x)
        mf = []; fill = {i: [] for i in range(-1, 56)}
        for n in range(28):
            kk, ct = n // 7, n % 7
            r = vFR + 4 * ((slot * 28 + n) % NFR)
            for rt in range(2):
                acc = (rt * 7 + ct) * 4
                b = vAF + ((slot * 4 + kk) * 2 + rt) * 4
                mf.append(f"{MF} {ar(acc,4)}, {vr(r,4)}, {vr(b,4)}, {ar(acc,4)}")
            issued = min(27, n + DPRE - 1)
            fill[2 * n - 1].append(f"s_waitcnt lgkmcnt({2 * (issued - n)})")
            m = n + DPRE
            if m < 28:
                x = rd(m, slot)
                fill[2 * n].append(x[0]); fill[2 * n + 1].append(x[1])
        o, d, al, adv = loads((slot + 3) % 4)
        fill[0] += o[:8]; fill[1] += o[8:]
        g = 3
        for x in d:
            fill[g].append(x); g += 2 if not x.startswith("s_add_u32 m0") else 1
        g = 22
        for x in al:
            fill[g].append(x); g += 3
        fill[52] += adv
        interleave(A, mf, fill)
        A(f"s_add_u32 s{sST}, s{sST}, 1")
        A(f"s_cmp_ge_u32 s{sST}, s{sNST}")
        if slot < 3: A("s_cbranch_scc1 K3_EPI")
        else: A("s_cbranch_scc0 K3_LOOP")
    A.label("K3_EPI")
    stamp(A, 2)
    A(f"s_lshl_b32 s{sT0}, s{sTT}, 2")
    A(f"s_add_u32 s{sT0}, s{sT0}, s{sS}")
    A(f"s_lshl_b32 s{sT0}, s{sT0}, 2")
    A(f"s_add_u32 s{sT0}, s{sT0}, s{sW}")
    A(f"s_mul_i32 s{sT0}, s{sT0}, {14*1024}")
    A("s_nop 7")
    for t in range(14):
        if t % 4 == 0 and t: A(f"s_add_u32 s{sT0}, s{sT0}, 4096")
        A(f"buffer_store_dwordx4 a[{t*4}:{t*4+3}], v{vL16}, s[{S_P}:{S_P+3}], s{sT0} offen offset:{(t%4)*1024} sc1")
    A("s_waitcnt vmcnt(0)")
    A("s_barrier")
    A(f"s_cmp_eq_u32 s{sW}, 0")
    A("s_cbranch_scc0 K3_WAITT")
    A(f"v_mov_b32 v{vT[0]}, 1")
    A(f"s_lshl_b32 s{sT0}, s{sTT}, 2")
    A(f"v_mov_b32 v{vT[1]}, s{sT0}")
    A(f"v_cmp_eq_u32 vcc, 0, v{vLANE}")
    A("s_and_saveexec_b64 s[60:61], vcc")
    A(f"buffer_atomic_add v{vT[0]}, v{vT[1]}, s[{S_D}:{S_D+3}], 0 offen sc0")
    A("s_waitcnt vmcnt(0)")
    A(f"v_mov_b32 v{vT[1]}, 0")
    A(f"ds_write_b32 v{vT[1]}, v{vT[0]}")
    A("s_waitcnt lgkmcnt(0)")
    A("s_mov_b64 exec, s[60:61]")
    A.label("K3_WAITT")
    A("s_barrier")
    A(f"v_mov_b32 v{vT[1]}, 0")
    A(f"ds_read_b32 v{vT[0]}, v{vT[1]}")
    A("s_waitcnt lgkmcnt(0)")
    A(f"v_readfirstlane_b32 s{sT0}, v{vT[0]}")
    A(f"s_cmp_eq_u32 s{sT0}, 3")
    A("s_cbranch_scc0 K3_FIN")
    A("buffer_inv sc1")
    A("s_waitcnt vmcnt(0)")
    A(f"v_and_b32 v{vT[0]}, 15, v{vLANE}")
    A(f"s_lshl_b32 s{sT0}, s{sRB}, 7")
    A(f"s_lshl_b32 s{sT1}, s{sW}, 5")
    A(f"s_add_u32 s{sT0}, s{sT0}, s{sT1}")
    A(f"v_add_u32 v{vT[0]}, s{sT0}, v{vT[0]}")
    A(f"v_mul_u32_u24 v{vXO}, 896, v{vT[0]}")
    A(f"v_lshrrev_b32 v{vT[1]}, 4, v{vLANE}")
    A(f"v_lshl_add_u32 v{vXO}, v{vT[1]}, 3, v{vXO}")
    A(f"s_mul_i32 s{sT1}, s{sCB}, 224")
    A(f"v_add_u32 v{vXO}, s{sT1}, v{vXO}")
    A(f"s_lshl_b32 s{sT0}, s{sTT}, 4")
    A(f"s_add_u32 s{sT0}, s{sT0}, s{sW}")
    A(f"s_mul_i32 s{sT0}, s{sT0}, {14*1024}")
    for rt in range(2):
        base = 24
        for ct in range(7):
            t = rt * 7 + ct
            for s in range(4):
                r = base + (ct * 4 + s) * 4
                off = s * 4 * 14 * 1024 + t * 1024
                A(f"s_add_u32 s{sT1}, s{sT0}, {off}")
                A(f"buffer_load_dwordx4 v[{r}:{r+3}], v{vL16}, s[{S_P}:{S_P+3}], s{sT1} offen sc1")
        xb = base + 112
        A(f"s_mov_b32 s{sT2}, {rt*16*896}")
        for ct in range(7):
            A(f"buffer_load_dwordx2 v[{xb+2*ct}:{xb+2*ct+1}], v{vXO}, s[{S_X}:{S_X+3}], s{sT2} offen offset:{ct*32}")
        A("s_waitcnt vmcnt(0)")
        for ct in range(7):
            r = base + ct * 16
            for e in range(4):
                A(f"v_add_f32 v{r+e}, v{r+e}, v{r+4+e}")
                A(f"v_add_f32 v{r+8+e}, v{r+8+e}, v{r+12+e}")
            for e in range(4):
                A(f"v_add_f32 v{r+e}, v{r+e}, v{r+8+e}")
            x0, x1 = xb + 2 * ct, xb + 2 * ct + 1
            A(f"v_lshlrev_b32 v{r+4}, 16, v{x0}")
            A(f"v_and_b32 v{r+5}, 0xffff0000, v{x0}")
            A(f"v_lshlrev_b32 v{r+6}, 16, v{x1}")
            A(f"v_and_b32 v{r+7}, 0xffff0000, v{x1}")
            for e in range(4):
                A(f"v_add_f32 v{r+e}, v{r+e}, v{r+4+e}")
            A(f"v_cvt_pk_bf16_f32 v{r+8}, v{r}, v{r+1}")
            A(f"v_cvt_pk_bf16_f32 v{r+9}, v{r+2}, v{r+3}")
            A(f"buffer_store_dwordx2 v[{r+8}:{r+9}], v{vXO}, s[{S_O}:{S_O+3}], s{sT2} offen offset:{ct*32}")
        A("s_nop 1")
    A.label("K3_FIN")
    stamp(A, 3)
    if G.STAMP: A("s_waitcnt vmcnt(0) lgkmcnt(0)")
    stamp(A, 4)
    stamp_flush(A, 6, sWS, sWS + 1, sW, kidx=2)
    A.label("K3_END")
    A("s_endpgm")
    return name, 184, 56
```

```python
import sys, os
sys.path.insert(0, os.path.dirname(os.path.abspath(__file__)))
from gen_common import *
import check

HEADER = open("parallel_sum__compressed_kv_cla__glu_gated_bilinear__prompt.s.ref").read().split("; Override")[0]

def build(kernels, opts=None):
    body = Asm()
    descs = []
    launches = []
    for gf, grid, block, lds in kernels:
        name, vg, ag = gf(body)
        descs.append(kernel_desc(name, vg, ag))
        launches.append(f"; @launch kernel={name} grid=({grid},1,1) block=({block},1,1) lds={lds}")
    txt = HEADER + "\n".join(launches) + "\n" + '.amdgcn_target "amdgcn-amd-amdhsa--gfx950"\n' + body.text() + "".join(descs)
    return txt

if __name__ == "__main__":
    import gen_common as G
    if os.environ.get("STAMP"): G.STAMP = True
    from gen_k1 import gen_k1
    ks = [(gen_k1, 256, 256, 163840)]
    which = sys.argv[2] if len(sys.argv) > 2 else "all"
    try:
        from gen_k2 import gen_k2
        from gen_k3 import gen_k3
        if True:
            ks += [(gen_k2, 256, 256, 163840), (gen_k3, 256, 256, 163840)]
    except ImportError:
        pass
    txt = build(ks)
    n = check.check(txt)
    print("checker problems:", n)
    out = sys.argv[1] if len(sys.argv) > 1 else "k.s"
    open(out, "w").write(txt)
    print("wrote", out, len(txt), "bytes")
```

```python
import re, sys

RANGE = re.compile(r"^([vas])\[(\d+):(\d+)\]$")
SINGLE = re.compile(r"^([vas])(\d+)$")

def regs(tok):
    t = tok.strip()
    t = re.sub(r"^(neg|abs)\((.*)\)$", r"\2", t)
    t = t.lstrip("-").strip("|")
    m = RANGE.match(t)
    if m:
        return [(m.group(1), i) for i in range(int(m.group(2)), int(m.group(3)) + 1)]
    m = SINGLE.match(t)
    if m:
        return [(m.group(1), int(m.group(2)))]
    if t == "vcc": return [("s", 106), ("s", 107)]
    if t == "vcc_lo": return [("s", 106)]
    if t == "vcc_hi": return [("s", 107)]
    if t == "exec": return [("s", 126), ("s", 127)]
    if t == "m0": return [("s", 124)]
    return []

TRANS = ("v_exp_f32", "v_log_f32", "v_rcp_f32", "v_rsq_f32", "v_sqrt_f32", "v_sin_f32", "v_cos_f32")

class I:
    __slots__ = ("text", "op", "ops", "mods", "rd", "wr", "kind", "line", "passes", "srcC", "srcAB", "data", "dpp", "nstates", "lds_dma")
    def __init__(self, text, line):
        self.text = text; self.line = line
        parts = text.split(None, 1)
        self.op = parts[0]
        rest = parts[1] if len(parts) > 1 else ""
        toks = []; depth = 0; cur = ""
        for ch in rest:
            if ch == "[": depth += 1
            if ch == "]": depth -= 1
            if ch == "," and depth == 0:
                toks.append(cur.strip()); cur = ""
            else:
                cur += ch
        if cur.strip(): toks.append(cur.strip())
        mods = ""
        if toks:
            last = toks[-1].split(None, 1)
            toks[-1] = last[0]
            if len(last) > 1: mods = last[1]
        self.ops = toks; self.mods = mods
        self.rd = []; self.wr = []; self.passes = 0; self.srcC = []; self.srcAB = []; self.data = []
        self.dpp = ("quad_perm" in mods or "row_" in mods or "wave_" in mods)
        self.nstates = 1; self.lds_dma = False
        op = self.op
        R = lambda i: regs(toks[i]) if i < len(toks) else []
        allr = lambda a: sum((regs(t) for t in toks[a:]), [])
        if op.startswith("v_mfma"):
            self.kind = "mfma"
            self.passes = 8 if "32x32x16" in op else 4
            self.wr = R(0); self.srcAB = R(1) + R(2); self.srcC = R(3); self.rd = self.srcAB + self.srcC
        elif op.startswith("v_cmp"):
            self.kind = "valu"; self.wr = R(0); self.rd = allr(1)
            if op.startswith("v_cmpx"): self.wr += regs("exec")
        elif op in ("v_readfirstlane_b32", "v_readlane_b32"):
            self.kind = "valu"; self.wr = R(0); self.rd = allr(1)
        elif op.startswith("v_permlane") and "swap" in op:
            self.kind = "valu"; self.wr = R(0) + R(1); self.rd = R(0) + R(1)
        elif op.startswith("v_"):
            self.kind = "valu"; self.wr = R(0)
            s = 1
            if op.startswith(("v_add_co", "v_sub_co", "v_addc_co", "v_subb_co")):
                self.wr += R(1); s = 2
            self.rd = allr(s)
            if op.startswith(("v_fmac", "v_dot2c", "v_pk_fmac", "v_writelane")): self.rd += R(0)
            if op == "v_cndmask_b32" and len(toks) == 3: self.rd += regs("vcc")
            if op == "v_nop": self.wr = []; self.rd = []
        elif op.startswith("ds_read") or op.startswith("ds_bpermute") or op.startswith("ds_swizzle") or op.startswith("ds_permute"):
            self.kind = "lds"; self.wr = R(0); self.rd = allr(1)
        elif op.startswith("ds_write"):
            self.kind = "lds"; self.rd = allr(0); self.data = allr(1)
        elif op.startswith(("buffer_load", "global_load")):
            self.kind = "vmem"
            if "lds" in mods.split() or "_lds_" in op:
                self.lds_dma = True; self.rd = allr(0) + regs("m0")
            else:
                self.wr = R(0); self.rd = allr(1)
        elif op.startswith(("buffer_store", "global_store")):
            self.kind = "vmem"; self.rd = allr(0)
            self.data = R(0) if op.startswith("buffer") else R(1)
        elif op.startswith(("buffer_atomic", "global_atomic")):
            self.kind = "vmem"; self.rd = allr(0)
            if "sc0" in mods.split(): self.wr = R(0)
        elif op.startswith(("buffer_inv", "buffer_wbl2")):
            self.kind = "vmem"
        elif op.startswith("s_load") or op.startswith("s_memtime") or op.startswith("s_memrealtime"):
            self.kind = "smem"; self.wr = R(0); self.rd = allr(1)
        elif op == "s_nop":
            self.kind = "nop"; self.nstates = int(toks[0], 0) + 1
        elif op == "s_waitcnt":
            self.kind = "wait"
        elif op.startswith(("s_cbranch", "s_branch", "s_endpgm", "s_barrier", "s_setprio", "s_sleep")):
            self.kind = "ctl"
        elif op.startswith("s_cmp") or op.startswith("s_bitcmp"):
            self.kind = "salu"; self.rd = allr(0)
        elif op.startswith("s_"):
            self.kind = "salu"; self.wr = R(0); self.rd = allr(1)
            if "saveexec" in op: self.wr += regs("exec"); self.rd += regs("exec")
        else:
            raise ValueError("unknown op: " + text)
    def vw(self): return [r for r in self.wr if r[0] in "va"]
    def sw(self): return [r for r in self.wr if r[0] == "s"]

def parse(text):
    out = {}; cur = None
    for n, raw in enumerate(text.splitlines(), 1):
        l = raw.split(";")[0].split("//")[0].strip()
        if not l: continue
        m = re.match(r"^([A-Za-z_.$][\w.$]*):$", l)
        if m:
            name = m.group(1)
            if name.endswith("_kernel"):
                cur = ([], {}); out[name] = cur
            elif cur is not None:
                cur[1][name] = len(cur[0])
            continue
        if l.startswith("."):
            if l.startswith(".section"): cur = None
            continue
        if cur is None: continue
        cur[0].append(I(l, n))
    return out

def ov(a, b):
    return bool(set(a) & set(b))

def hazards(seq, errs, tag):
    MAXW = 20
    for j, c in enumerate(seq):
        dist = 0
        for i in range(j - 1, max(-1, j - 1 - MAXW), -1):
            p = seq[i]
            if dist >= 20: break
            need = 0; why = ""
            def req(n, w):
                nonlocal need, why
                if n > need: need, why = n, w
            if p.kind == "valu":
                pv = p.vw(); ps = p.sw()
                if c.kind == "mfma" and ov(pv, c.rd): req(2, "VALU->MFMA src")
                if c.kind == "mfma" and ov(ps, regs("exec")): req(4, "VALU exec->MFMA")
                if p.op in TRANS and c.kind == "valu" and c.op not in TRANS and ov(pv, c.rd): req(1, "trans->valu")
                if p.op in TRANS and c.kind == "valu" and c.op in TRANS and ov(pv, c.rd): req(1, "trans->trans (conservative)")
                if c.kind == "valu" and ov(ps, c.rd) and c.op not in ("v_readlane_b32",): req(2, "VALU sgpr->VALU const")
                if c.kind == "valu" and c.op in ("v_readlane_b32", "v_writelane_b32") and len(c.ops) > 2 and ov(ps, regs(c.ops[2])): req(4, "VALU sgpr->lane select")
                if c.kind == "vmem" and ov(ps, c.rd): req(5, "VALU sgpr->VMEM")
                if c.op in ("v_readfirstlane_b32", "v_readlane_b32") and ov(pv, c.rd): req(1, "VALU->readlane")
                if c.dpp and ov(pv, c.rd): req(2, "VALU->DPP")
                if c.dpp and ov(ps, regs("exec")): req(5, "exec->DPP")
                if c.op.startswith("v_permlane") and ov(pv, c.rd): req(2, "VALU->permlane")
                if p.op.startswith("v_dot2") and c.kind in ("valu", "mfma") and ov(pv, c.rd + c.wr):
                    if not (c.op == p.op and len(c.ops) > 3 and ov(pv, regs(c.ops[3])) and not ov(pv, regs(c.ops[1]) + regs(c.ops[2]))): req(3, "dot2->other")
                if ("sdwa" in p.op or "op_sel" in p.mods) and c.kind == "valu" and ov(pv, c.rd + c.wr) and "dst_sel:DWORD" not in p.mods: req(1, "sdwa/opsel->valu")
            if p.kind == "mfma":
                d = p.wr
                if c.kind == "mfma":
                    if ov(d, c.srcC) and not (c.srcC == d and c.passes == p.passes): req(p.passes + 2, "MFMA D->srcC overlap")
                    if ov(d, c.srcAB): req(p.passes + 4, "MFMA D->srcAB")
                    if ov(d, c.wr) and not (c.wr == d and c.srcC == d): req(p.passes + 2, "MFMA D->MFMA D (WAW, conservative)")
                elif c.kind in ("valu", "vmem", "lds") and (ov(d, c.rd) or ov(d, c.wr)): req(p.passes + 4, "MFMA D->VALU/mem")
                if c.kind == "valu" and ov(p.srcC, c.vw()): req(p.passes - 1, "MFMA srcC WAR")
                if c.kind in ("lds", "vmem") and ov(p.srcC, c.vw()): req(p.passes - 1, "MFMA srcC WAR (load, conservative)")
            if p.kind == "salu" and ov(p.wr, regs("m0")) and c.lds_dma: req(1, "M0->LDS DMA")
            if p.kind in ("vmem",) and p.data and len(p.data) >= 3:
                if c.kind == "valu" and ov(p.data, c.vw()): req(2, "wide store WAR")
                elif ov(p.data, c.vw()): req(1, "wide store WAR")
            if p.kind == "lds" and p.data and len(p.data) >= 3 and ov(p.data, c.vw()):
                req(2, "wide ds_write WAR (conservative)")
            if need > dist:
                errs.add((c.line, f"{tag}: {why}: need {need} have {dist}: L{p.line} '{p.text}' -> L{c.line} '{c.text}'"))
            dist += p.nstates

def waits_cfg(ins, labels, errs, tag, cap=4):
    seen = {}
    stack = [(0, (), ())]
    steps = 0
    while stack:
        pc, lg, vm = stack.pop()
        lg = list(lg); vm = list(vm)
        while pc < len(ins):
            steps += 1
            if steps > 6_000_000:
                errs.add((0, tag + ": walk too long")); return
            c = ins[pc]
            if pc in LABELPC:
                sig = (tuple(x.line for x in lg), tuple(x.line for x in vm if x.wr))
                st = seen.setdefault(pc, [])
                if sig in st or len(st) >= cap: break
                st.append(sig)
            if c.kind == "wait":
                m = re.search(r"lgkmcnt\((\d+)\)", c.text)
                if m:
                    n = int(m.group(1))
                    while len(lg) > n: lg.pop(0)
                m = re.search(r"vmcnt\((\d+)\)", c.text)
                if m:
                    n = int(m.group(1))
                    while len(vm) > n: vm.pop(0)
                pc += 1; continue
            touched = set(c.rd) | set(c.wr)
            for q, nm in ((lg, "lgkm"), (vm, "vm")):
                for x in q:
                    if x.wr and touched & set(x.wr):
                        if nm == "lgkm" and x.kind == "lds" and c.kind == "lds" and not (set(c.rd) & set(x.wr)): continue
                        if nm == "vm" and c.kind == "vmem" and not (set(c.rd) & set(x.wr)): continue
                        errs.add((c.line, f"{tag}: pending {nm} result: L{x.line} '{x.text}' used by L{c.line} '{c.text}'"))
            if c.kind in ("lds", "smem"):
                lg.append(c)
                if c.kind == "smem" and len(c.wr) >= 2: lg.append(c)
            if c.kind == "vmem":
                vm.append(c)
                if len(vm) > 63: vm.pop(0)
            if c.op == "s_endpgm": break
            if c.op.startswith(("s_cbranch", "s_branch")):
                tgt = labels.get(c.ops[0])
                if tgt is None: break
                if c.op == "s_branch":
                    pc = tgt; continue
                stack.append((tgt, tuple(lg), tuple(vm)))
            pc += 1

def check(text, verbose=True):
    errs = set()
    ks = parse(text)
    W = 24
    for name, (ins, labels) in ks.items():
        hazards(ins, errs, name)
        for idx, c in enumerate(ins):
            if c.op.startswith(("s_cbranch", "s_branch")):
                tgt = labels.get(c.ops[0])
                if tgt is None:
                    errs.add((c.line, "unknown label " + c.ops[0])); continue
                hazards(ins[max(0, idx - W): idx + 1] + ins[tgt: tgt + W], errs, name + " branch")
        global LABELPC
        LABELPC = set(labels.values())
        waits_cfg(ins, labels, errs, name)
    for e in sorted(errs)[:60]:
        print("HAZARD", e[1])
    return len(errs)

if __name__ == "__main__":
    n = check(open(sys.argv[1]).read())
    print("problems:", n)
```

```python
from gen_common import *
import gen_common as G

MF = "v_mfma_f32_16x16x32_bf16"
THRESH = 2.0 ** 40
VBASE = 98304

vLANE = 2
vL16 = 3
vPA16, vPA32 = 4, 5
vDLT = 6
vVA = 7
vT = [9, 10, 11, 12, 13, 14, 15]
vVOW = 16
vWR = 20
vL = 28
vTS = 30
vNEGM = 32
vFR = 40
vS = [72, 88]
vE = 104
vP = [120, 128]
vQ = 136
vXN = 72
vSUM = [200, 201, 202, 203]
vVOG = 204
vF = 208
NVGPR = 256
NFR = 8
DPRE = 6

(sW, sHEAD, sQB, sT0, sT1, sT2, sREM, sMASKAT, sIDLE, sOFF, sWB, sF, sE, sTHR, sHOOK, sWOFFL, sWOFFR, sT3, sJ, sROW0) = range(30, 50)
S_X, S_WL, S_WR, S_K, S_V, S_AF = 4, 8, 12, 16, 20, 24
sWS = 28

def SC(): return ' sc1' if G.FUSED else ''
def fr(i): return vFR + 4 * (i % NFR)
def S(buf, kt, qt): return vS[buf] + (kt * 2 + qt) * 4
def E(kt, qt): return vE + (kt * 2 + qt) * 4
def kread(n, slot): return f"ds_read_b128 v[{fr(n)}:{fr(n)+3}], v{vL16} offset:{slot*16384 + n*1024}"
def vread(n, slot): return f"ds_read_b128 v[{fr(n)}:{fr(n)+3}], v{vVA} offset:{slot*16384 + n*1024}"
def kdma(slot, so=None):
    so = sOFF if so is None else so
    return (f"s_add_u32 m0, s{sWB}, {slot*16384}",
            [f"buffer_load_dwordx4 v{vL16}, s[{S_K}:{S_K+3}], s{so} offen offset:{q*1024}{SC()} lds" for q in range(4)])
def vdma(slot, so=None):
    so = sOFF if so is None else so
    return (f"s_add_u32 m0, s{sWB}, {VBASE + slot*16384}",
            [f"buffer_load_dwordx4 v{vL16}, s[{S_V}:{S_V+3}], s{so} offen offset:{q*1024}{SC()} lds" for q in range(4)])

def qk_mfmas(buf, cinit):
    mf = []
    for kt in range(2):
        for ks in range(8):
            r = fr(kt * 8 + ks)
            for qt in range(2):
                d = S(buf, kt, qt)
                c = (cinit(qt) if ks == 0 else vr(d, 4))
                mf.append(f"{MF} {vr(d,4)}, {vr(r,4)}, {vr(vQ + (qt*8+ks)*4, 4)}, {c}")
    return mf
def pv_mfmas(pb):
    mf = []
    for dt in range(16):
        r = fr(dt)
        for qt in range(2):
            acc = (dt * 2 + qt) * 4
            mf.append(f"{MF} {ar(acc,4)}, {vr(r,4)}, {vr(vP[pb] + qt*4, 4)}, {ar(acc,4)}")
    return mf
def exps(buf, kt, qt):
    return [f"v_exp_f32 v{E(kt,qt)+r}, v{S(buf,kt,qt)+r}" for r in range(4)]
def first(pb, qt):
    a = E(0, qt); t0, t1 = vSUM[2*qt], vSUM[2*qt+1]
    return [f"v_cvt_pk_bf16_f32 v{vP[pb]+qt*4}, v{a}, v{a+1}",
            f"v_add_f32 v{t0}, v{a}, v{a+1}",
            f"v_cvt_pk_bf16_f32 v{vP[pb]+qt*4+1}, v{a+2}, v{a+3}",
            f"v_add_f32 v{t1}, v{a+2}, v{a+3}",
            f"v_add_f32 v{t0}, v{t0}, v{t1}"]
def second(pb, qt):
    b = E(1, qt); t0, t1 = vSUM[2*qt], vSUM[2*qt+1]
    return [f"v_cvt_pk_bf16_f32 v{vP[pb]+qt*4+2}, v{b}, v{b+1}",
            f"v_add_f32 v{t1}, v{b}, v{b+1}",
            f"v_cvt_pk_bf16_f32 v{vP[pb]+qt*4+3}, v{b+2}, v{b+3}",
            f"v_add_f32 v{t0}, v{t0}, v{t1}",
            f"v_add_f32 v{t1}, v{b+2}, v{b+3}",
            f"v_add_f32 v{vTS+qt}, v{t0}, v{t1}"]
def check_ops():
    return [f"v_add_f32 v{vT[4]}, v{vTS}, v{vTS+1}",
            f"v_cmp_nge_f32 vcc, s{sTHR}, v{vT[4]}"]
def l_ops():
    return [f"v_add_f32 v{vL}, v{vL}, v{vTS}", f"v_add_f32 v{vL+1}, v{vL+1}, v{vTS+1}"]

def mask_block(A, buf):
    A("s_nop 7")
    A(f"v_mov_b32 v{vT[6]}, 0xff800000")
    for r in range(4):
        A(f"v_cmp_gt_i32 vcc, {r}, v{vDLT}")
        A("s_nop 1")
        A(f"v_cndmask_b32 v{S(buf,0,0)+r}, v{S(buf,0,0)+r}, v{vT[6]}, vcc")
        A(f"v_cndmask_b32 v{S(buf,1,1)+r}, v{S(buf,1,1)+r}, v{vT[6]}, vcc")
        A(f"v_mov_b32 v{S(buf,1,0)+r}, v{vT[6]}")

def rowmax(A, buf, qt, dst):
    a, b = S(buf, 0, qt), S(buf, 1, qt)
    A(f"v_max3_f32 v{dst}, v{a}, v{a+1}, v{a+2}")
    A(f"v_max3_f32 v{dst}, v{dst}, v{a+3}, v{b}")
    A(f"v_max3_f32 v{dst}, v{dst}, v{b+1}, v{b+2}")
    A(f"v_max_f32 v{dst}, v{dst}, v{b+3}")

def xreduce(A, regs, op, tmp):
    for pa in (vPA16, vPA32):
        for k, r in enumerate(regs):
            A(f"ds_bpermute_b32 v{tmp[k]}, v{pa}, v{r}")
        A("s_waitcnt lgkmcnt(0)")
        for k, r in enumerate(regs):
            A(f"{op} v{r}, v{r}, v{tmp[k]}")

def lane_setup(A):
    A(f"v_lshlrev_b32 v{vL16}, 4, v{vLANE}")
    A(f"v_add_u32 v{vVA}, {VBASE}, v{vL16}")
    A(f"v_xor_b32 v{vPA16}, 16, v{vLANE}")
    A(f"v_lshlrev_b32 v{vPA16}, 2, v{vPA16}")
    A(f"v_xor_b32 v{vPA32}, 32, v{vLANE}")
    A(f"v_lshlrev_b32 v{vPA32}, 2, v{vPA32}")
    A(f"v_and_b32 v{vDLT}, 15, v{vLANE}")
    A(f"v_lshrrev_b32 v{vT[0]}, 4, v{vLANE}")
    A(f"v_lshlrev_b32 v{vT[0]}, 2, v{vT[0]}")
    A(f"v_sub_u32 v{vDLT}, v{vDLT}, v{vT[0]}")
    A(f"s_lshl_b32 s{sWB}, s{sW}, 12")
    A(f"s_mov_b32 s{sTHR}, {f32(THRESH)}")

def attn_params(A):
    A(f"s_lshl_b32 s{sT0}, s{sQB}, 2")
    A(f"s_add_u32 s{sT0}, s{sT0}, s{sW}")
    A(f"s_sub_u32 s{sT1}, s{sE}, 1")
    A(f"s_min_u32 s{sT2}, s{sT0}, s{sT1}")
    A(f"s_sub_u32 s{sIDLE}, s{sT1}, s{sT2}")
    A(f"s_sub_u32 s{sREM}, s{sT2}, s{sF}")
    A(f"s_cmp_eq_u32 s{sT2}, s{sT0}")
    A(f"s_cselect_b32 s{sMASKAT}, 1, -1")
    A(f"s_lshl_b32 s{sT0}, s{sHEAD}, 6")
    A(f"s_add_u32 s{sT1}, s{sT0}, s{sE}")
    A(f"s_lshl_b32 s{S_K+2}, s{sT1}, 14")
    A(f"s_add_u32 s{S_V+2}, s{S_K+2}, 16384")
    A(f"s_add_u32 s{sOFF}, s{sT0}, s{sF}")
    A(f"s_lshl_b32 s{sOFF}, s{sOFF}, 14")
    A(f"s_add_u32 s{sOFF}, s{sOFF}, s{sWB}")

def kv_group(kind, j):
    if kind == "K":
        d = kdma(j, sT3); add = j * 16384
    else:
        d = vdma(j, sT3); add = (j + 1) * 16384
    return [f"s_add_u32 s{sT3}, s{sOFF}, {add}", d[0]], d[1]

def issue_group(A, g):
    for x in g[0]: A(x)
    A("s_nop 0")
    for x in g[1]: A(x)

def attn_core(A, tag, hook):
    A(f"v_mov_b32 v{vL}, 0")
    A(f"v_mov_b32 v{vL+1}, 0")
    for n in range(8): A(kread(n, 0))
    sc = Sched(qk_mfmas(0, lambda qt: "0"), "first")
    sc.S(-1, "s_waitcnt lgkmcnt(0)")
    for n in range(8, 16): sc.V(2 * (n - 8) + 1, kread(n, 0))
    sc.S(15, "s_nop 0"); sc.V(15, "s_waitcnt lgkmcnt(0)")
    sc.emit(A)
    for n in range(DPRE): A(kread(n, 1))
    A(f"s_cmp_eq_u32 s{sREM}, 0")
    A(f"s_cbranch_scc0 {tag}_NM0")
    A(f"s_cmp_eq_u32 s{sMASKAT}, 1")
    A(f"s_cbranch_scc0 {tag}_NM0")
    mask_block(A, 0)
    A.label(f"{tag}_NM0")
    A("s_nop 7")
    for qt in range(2): rowmax(A, 0, qt, vT[qt])
    xreduce(A, [vT[0], vT[1]], "v_max_f32", [vT[2], vT[3]])
    for qt in range(2):
        for r in range(4):
            A(f"v_sub_f32 v{vNEGM+qt*4+r}, 0, v{vT[qt]}")
        for kt in range(2):
            for r in range(4):
                A(f"v_sub_f32 v{S(0,kt,qt)+r}, v{S(0,kt,qt)+r}, v{vT[qt]}")
    for qt in range(2):
        for x in exps(0, 0, qt): A(x)
    A("s_nop 0")
    for qt in range(2):
        for x in first(0, qt): A(x)
    stamp(A, 2)
    A(f"s_cmp_eq_u32 s{sREM}, 0")
    A(f"s_cbranch_scc1 {tag}_LAST0")

    slow = []
    A(".p2align 6")
    A.label(f"{tag}_LOOP")
    for u in range(4):
        cur = u & 1; nxt = cur ^ 1; pb = cur
        mf = qk_mfmas(nxt, lambda qt: vr(vNEGM + qt * 4, 4)) + pv_mfmas(pb)
        sc = Sched(mf, f"step{u}")
        sc.S(-1, f"s_waitcnt vmcnt(8) lgkmcnt({DPRE-2})")
        sc.S(-1, "s_barrier")
        for p in range(32):
            m = p + DPRE
            if m < 16: rd = kread(m, (u + 1) % 4)
            elif m < 32: rd = vread(m - 16, u % 4)
            else: rd = kread(m - 32, (u + 2) % 4)
            sc.V(2 * p, rd)
            if p % 2 == 0 and p > 0: sc.S(2 * p - 1, f"s_waitcnt lgkmcnt({DPRE-2})")
        kd = kdma(u % 4); vd = vdma((u + 3) % 4)
        sc.S(16, kd[0])
        for q in range(4): sc.V(17 + 4 * q, kd[1][q])
        sc.S(48, vd[0])
        for q in range(4): sc.V(49 + 4 * q, vd[1][q])
        sc.S(4, f"s_cmp_eq_u32 s{sREM}, s{sHOOK}")
        sc.S(5, f"s_cbranch_scc1 {tag}_HOOK{u}")
        sc.S(5, f"{tag}_BACKH{u}:")
        ex = exps(cur, 1, 0) + exps(cur, 1, 1)
        for e, x in enumerate(ex): sc.V(1 + 2 * e, x)
        g0 = sc.chain(second(pb, 0), 9 + 1)
        g1 = sc.chain(second(pb, 1), 17 + 1)
        g = sc.chain(check_ops(), max(g0, g1))
        assert g <= 31, g
        sc.S(31, f"s_cbranch_vccnz {tag}_SLOW{u}")
        sc.S(31, f"{tag}_BACK{u}:")
        sc.S(32, f"s_cmp_eq_u32 s{sREM}, s{sMASKAT}")
        sc.S(33, f"s_cbranch_scc1 {tag}_MASK{u}")
        sc.S(33, f"{tag}_BACKM{u}:")
        ex = exps(nxt, 0, 0) + exps(nxt, 0, 1)
        for e, x in enumerate(ex): sc.V(33 + 2 * e, x)
        sc.chain(l_ops(), 32, gap=0)
        sc.chain(first(pb ^ 1, 0), 41 + 1)
        sc.chain(first(pb ^ 1, 1), 49 + 1)
        sc.S(60, f"s_sub_u32 s{sREM}, s{sREM}, 1")
        sc.S(62, f"s_add_u32 s{sOFF}, s{sOFF}, 16384")
        sc.S(63, f"s_cmp_eq_u32 s{sREM}, 0")
        if u < 3: sc.S(63, f"s_cbranch_scc1 {tag}_LAST{u+1}")
        else: sc.S(63, f"s_cbranch_scc0 {tag}_LOOP")
        sc.emit(A)
        slow.append((f"{u}", cur, pb, True))
    for u in range(4):
        cur = u & 1; pb = cur
        A.label(f"{tag}_LAST{u}")
        A("s_waitcnt vmcnt(8) lgkmcnt(0)")
        A("s_barrier")
        for n in range(DPRE): A(vread(n, u % 4))
        for qt in range(2):
            for x in exps(cur, 1, qt): A(x)
        A("s_nop 0")
        for qt in range(2):
            for x in second(pb, qt): A(x)
        for x in check_ops(): A(x)
        A(f"s_cbranch_vccnz {tag}_SLOWL{u}")
        A.label(f"{tag}_BACKL{u}")
        for x in l_ops(): A(x)
        sc = Sched(pv_mfmas(pb), f"last{u}")
        for p in range(16):
            m = p + DPRE
            if m < 16: sc.V(2 * p, vread(m, u % 4))
            if p % 2 == 0:
                sc.S(2 * p - 1, f"s_waitcnt lgkmcnt({max(0, min(DPRE - 2, 14 - p))})")
        vd = vdma((u + 3) % 4)
        sc.S(2, vd[0])
        for q in range(4): sc.V(5 + 4 * q, vd[1][q])
        sc.emit(A)
        slow.append((f"L{u}", cur, pb, False))
        if u < 3: A(f"s_branch {tag}_IDLE")
    A.label(f"{tag}_IDLE")
    A(f"s_cmp_eq_u32 s{sIDLE}, 0")
    A(f"s_cbranch_scc1 {tag}_DONE")
    A(f"s_sub_u32 s{sIDLE}, s{sIDLE}, 1")
    A("s_waitcnt vmcnt(0)")
    A("s_barrier")
    A(f"s_branch {tag}_IDLE")
    for u in range(4):
        A.label(f"{tag}_HOOK{u}")
        hook(A)
        A(f"s_branch {tag}_BACKH{u}")
    for u in range(4):
        A.label(f"{tag}_MASK{u}")
        mask_block(A, (u & 1) ^ 1)
        A(f"s_branch {tag}_BACKM{u}")
    for nm, cur, pb, with_next in slow:
        A.label(f"{tag}_SLOW{nm}")
        A("s_nop 7")
        A("s_nop 7")
        nxt = cur ^ 1
        for qt in range(2): rowmax(A, cur, qt, vT[qt])
        xreduce(A, [vT[0], vT[1]], "v_max_f32", [vT[2], vT[3]])
        for qt in range(2):
            A(f"v_max_f32 v{vT[qt]}, 0, v{vT[qt]}")
            A(f"v_sub_f32 v{vT[2+qt]}, 0, v{vT[qt]}")
            A(f"v_exp_f32 v{vT[2+qt]}, v{vT[2+qt]}")
        A("s_nop 0")
        for qt in range(2):
            A(f"v_mul_f32 v{vL+qt}, v{vL+qt}, v{vT[2+qt]}")
            for r in range(4):
                A(f"v_sub_f32 v{vNEGM+qt*4+r}, v{vNEGM+qt*4+r}, v{vT[qt]}")
            for kt in range(2):
                for r in range(4):
                    A(f"v_sub_f32 v{S(cur,kt,qt)+r}, v{S(cur,kt,qt)+r}, v{vT[qt]}")
                    if with_next:
                        A(f"v_sub_f32 v{S(nxt,kt,qt)+r}, v{S(nxt,kt,qt)+r}, v{vT[qt]}")
            for dt in range(16):
                for r in range(4):
                    a = (dt * 2 + qt) * 4 + r
                    A(f"v_accvgpr_read_b32 v{vT[4]}, a{a}")
                    A(f"v_mul_f32 v{vT[4]}, v{vT[4]}, v{vT[2+qt]}")
                    A(f"v_accvgpr_write_b32 a{a}, v{vT[4]}")
        for qt in range(2):
            for x in exps(cur, 0, qt) + exps(cur, 1, qt): A(x)
        A("s_nop 0")
        for qt in range(2):
            for x in first(pb, qt) + second(pb, qt): A(x)
        A("s_nop 1")
        A(f"s_branch {tag}_BACK{nm}")
    A.label(f"{tag}_DONE")
    stamp(A, 3)
```

```python
import struct

def f32(x):
    return "0x%08x" % struct.unpack("<I", struct.pack("<f", x))[0]

class Asm:
    def __init__(self):
        self.L = []
    def __call__(self, s):
        for l in s.split("\n"):
            l = l.strip()
            if l:
                self.L.append(l)
    def label(self, n):
        self.L.append(n + ":")
    def text(self):
        return "\n".join(self.L) + "\n"

def vr(a, n=1):
    return f"v{a}" if n == 1 else f"v[{a}:{a+n-1}]"
def ar(a, n=1):
    return f"a{a}" if n == 1 else f"a[{a}:{a+n-1}]"
def sr(a, n=1):
    return f"s{a}" if n == 1 else f"s[{a}:{a+n-1}]"

KA = dict(x=0, ckv=8, wq=16, wuk=24, wuv=32, wo=40, bx=48, wg=56, wu=64, wd=72, out=80, dbg=88, ws=96)

XN_OFF = 0x0000000; XN_SIZE = 128 * 14 * 1024
KF_OFF = 0x0200000; KF_SIZE = 16 * 64 * 16 * 1024
VF_OFF = 0x1200000
AF_OFF = 0x2200000; AF_STEPS = 368; AF_SIZE = 64 * AF_STEPS * 1024
QH_OFF = 0x3A00000
OP_OFF = 0x4200000
ST_OFF = 0x5200000
P3_OFF = 0x5400000
FL_OFF = 0x6000000; FL_SIZE = 0x20000

def kernel_header(A, name):
    A(f".text\n.globl {name}\n.p2align 8\n.type {name},@function")
    A.label(name)

def kernel_desc(name, vgpr, agpr, sgpr=102):
    acc = (vgpr + 3) // 4 * 4
    nfv = acc + agpr if agpr else vgpr
    return f""".section .rodata,"a"
.p2align 6
.amdhsa_kernel {name}
  .amdhsa_next_free_vgpr {nfv}
  .amdhsa_next_free_sgpr {sgpr}
  .amdhsa_accum_offset {acc}
  .amdhsa_group_segment_fixed_size 0
  .amdhsa_kernarg_size 104
  .amdhsa_user_sgpr_count 2
  .amdhsa_user_sgpr_kernarg_segment_ptr 1
  .amdhsa_system_sgpr_workgroup_id_x 1
  .amdhsa_float_denorm_mode_32 3
.end_amdhsa_kernel
"""

def srd(A, s, base_lo, base_hi, size, off=0):
    if off:
        A(f"s_add_u32 s{s}, s{base_lo}, {off}")
        A(f"s_addc_u32 s{s+1}, s{base_hi}, 0")
        A(f"s_and_b32 s{s+1}, s{s+1}, 0xffff")
    else:
        A(f"s_mov_b32 s{s}, s{base_lo}")
        A(f"s_and_b32 s{s+1}, s{base_hi}, 0xffff")
    A(f"s_mov_b32 s{s+2}, {size}")
    A(f"s_mov_b32 s{s+3}, 0x20000")

def interleave(A, mf, fill):
    for s in fill.get(-1, []):
        A(s)
    for i, m in enumerate(mf):
        A(m)
        for s in fill.get(i, []):
            A(s)


STAMP = False
def stamp(A, idx, sbase=90):
    if STAMP:
        A(f"s_memtime s[{sbase+2*idx}:{sbase+2*idx+1}]")
        A("s_waitcnt lgkmcnt(0)")

def rstamp(A, idx, sbase=90):
    if STAMP:
        A(f"s_memrealtime s[{sbase+2*idx}:{sbase+2*idx+1}]")
        A("s_waitcnt lgkmcnt(0)")

def stamp_flush(A, n, ws_lo, ws_hi, swave, sbase=90, kidx=0):
    if not STAMP:
        return
    A("s_waitcnt vmcnt(0) lgkmcnt(0)")
    srd(A, 60, ws_lo, ws_hi, 0x100000, ST_OFF + 0x100000)
    A(f"s_lshl_b32 s64, s2, 2")
    A(f"s_add_u32 s64, s64, s{swave}")
    A(f"s_lshl_b32 s64, s64, 5")
    A(f"s_add_u32 s64, s64, {kidx * 32768}")
    A("v_mov_b32 v1, s64")
    for i in range(n):
        A(f"v_mov_b32 v2, s{sbase+2*i}")
        A(f"buffer_store_dword v2, v1, s[60:63], 0 offen offset:{4*i}")
    A("s_memrealtime s[86:87]")
    A("s_waitcnt lgkmcnt(0)")
    A("v_mov_b32 v2, s86")
    A("buffer_store_dword v2, v1, s[60:63], 0 offen offset:28")


class Sched:
    def __init__(self, mf, name=""):
        self.mf = mf; self.n = len(mf); self.name = name
        self.pre = []
        self.s = [[] for _ in mf]; self.v = [[] for _ in mf]
    @staticmethod
    def cost(x):
        op = x.split()[0]
        if op in ("v_exp_f32", "v_rcp_f32", "v_log_f32", "v_rsq_f32"): return 2
        if op.startswith("buffer_") or op.startswith("global_"): return 2
        return 1
    def used(self, g): return sum(self.cost(x) for x in self.v[g])
    def S(self, g, x):
        (self.pre if g < 0 else self.s[g]).append(x)
    def V(self, g, x):
        (self.pre if g < 0 else self.v[g]).append(x)
    def place(self, x, lo, hi=None, parity=None):
        c = self.cost(x)
        hi = self.n - 1 if hi is None else hi
        for g in range(lo, hi + 1):
            if parity is not None and g % 2 != parity: continue
            if self.used(g) + c <= 2 and not any(y.startswith(("buffer_", "global_")) for y in self.v[g]) and not (x.startswith(("buffer_", "global_")) and (self.v[g] or self.s[g])):
                self.v[g].append(x); return g
        raise RuntimeError(f"no room for {x} from {lo} in {self.name}")
    def place_s(self, x, lo, hi=None):
        hi = self.n - 1 if hi is None else hi
        for g in range(lo, hi + 1):
            if not self.s[g] and not any(y.startswith(("buffer_", "global_")) for y in self.v[g]):
                self.s[g].append(x); return g
        raise RuntimeError(f"no scalar room for {x} from {lo} in {self.name}")
    def chain(self, xs, lo, gap=1):
        g = lo
        for x in xs:
            g = self.place(x, g) + gap
        return g
    def emit(self, A, verbose=False):
        for x in self.pre: A(x)
        over = 0
        for i, m in enumerate(self.mf):
            A(m)
            for x in self.s[i]: A(x)
            for x in self.v[i]: A(x)
            u = self.used(i)
            if u > 2 or (len(self.s[i]) > 1 and u > 0) or len(self.s[i]) > 3: over += 1
        if verbose or over:
            print(f"  sched {self.name}: {over} overfull gaps of {self.n}")
```

```python
from gen_common import *
import gen_common as G
import os, math

MF = "v_mfma_f32_16x16x32_bf16"
XB = [16, 48]; WB = [80, 112]
VOA = 144; VOW = 152; VX = 156; VW = 158
T = 168
VQO = 216
VPOLL = 220
(sW, sHEAD, sRB, sISV, sAOFF, sWOFF, sM0A, sM0W, sCNT, sDA, sHK, sT0, sT1, sOUT, sWX, sWW) = range(30, 46)
sW0M, sW1M, sWOFF1, sMOD, sC32, sCM64 = 54, 55, 56, 57, 58, 59
sBM, sBO, sAM, sAOf, sLIM = 66, 67, 68, 69, 70
NV1 = 224

def small_store(A, val_v, off_expr_s, srd_, op="buffer_store_dword", flags="sc1"):
    pass

def k1_body(A, fused):
    ST = " sc1" if fused else os.environ.get("K1ST", "")
    A(f"s_load_dwordx4 s[24:27], s[0:1], {KA['x']}")
    A(f"s_load_dwordx4 s[48:51], s[0:1], {KA['wuk']}")
    A(f"s_load_dwordx2 s[28:29], s[0:1], {KA['ws']}")
    A(f"s_load_dwordx2 s[76:77], s[0:1], {KA['wq']}")
    A(f"s_load_dwordx2 s[78:79], s[0:1], {KA['wo']}")
    A(f"s_load_dwordx4 s[80:83], s[0:1], {KA['wg']}")
    A(f"s_load_dwordx2 s[84:85], s[0:1], {KA['wd']}")
    A(f"s_load_dwordx2 s[88:89], s[0:1], {KA['dbg']}") if fused and not G.STAMP else None
    A(f"s_load_dwordx2 s[74:75], s[0:1], {KA['dbg']}") if fused and G.STAMP else None
    DBG = (74 if G.STAMP else 88)
    A("v_lshrrev_b32 v1, 6, v0")
    A("v_and_b32 v2, 63, v0")
    A(f"v_readfirstlane_b32 s{sW}, v1")
    A("s_and_b32 s3, s2, 7")
    A(f"s_lshr_b32 s{sT0}, s2, 3")
    A(f"s_and_b32 s{sT1}, s{sT0}, 1")
    A(f"s_lshl_b32 s{sHEAD}, s3, 1")
    A(f"s_add_u32 s{sHEAD}, s{sHEAD}, s{sT1}")
    A(f"s_bfe_u32 s{sISV}, s{sT0}, 0x10001")
    A(f"s_lshr_b32 s{sRB}, s{sT0}, 2")
    A(f"s_and_b32 s{sWX}, s{sW}, 1")
    A(f"s_lshr_b32 s{sWW}, s{sW}, 1")
    A("v_lshrrev_b32 v3, 5, v2")
    A("v_and_b32 v4, 31, v2")
    A("v_lshrrev_b32 v11, 3, v2")
    A("v_lshlrev_b32 v11, 11, v11")
    A("v_and_b32 v12, 7, v2")
    A("v_lshrrev_b32 v13, 4, v2")
    A("v_xor_b32 v12, v12, v13")
    A("v_xor_b32 v13, 4, v12")
    A("v_lshl_add_u32 v12, v12, 4, v11")
    A("v_lshl_add_u32 v13, v13, 4, v11")
    for q in range(8):
        A(f"v_add_u32 v{VOA+q}, {q*16384 - (q&3)*1024}, v{12 + (q&1)}")
    A(f"s_lshl_b32 s{sT0}, s{sWX}, 3")
    for q in range(4):
        A(f"v_add_u32 v11, {2*q}, v3")
        A("v_and_b32 v12, 3, v11")
        A("v_lshlrev_b32 v12, 1, v12")
        A(f"v_or_b32 v12, s{sT0}, v12")
        A("v_xor_b32 v12, v12, v4")
        A("v_lshlrev_b32 v12, 4, v12")
        A("v_lshl_add_u32 v12, v11, 13, v12")
        A(f"v_subrev_u32 v{VOW+q}, {q*1024}, v12")
    A(f"s_lshl_b32 s{sAOFF}, s{sRB}, 8")
    A(f"s_lshl_b32 s{sT0}, s{sW}, 6")
    A(f"s_add_u32 s{sAOFF}, s{sAOFF}, s{sT0}")
    A(f"s_lshl_b32 s{sAOFF}, s{sAOFF}, 11")
    A(f"s_lshl_b32 s{sWOFF}, s{sW}, 16")
    A(f"s_lshl_b32 s{sT0}, s{sHEAD}, 9")
    A(f"s_add_u32 s{sWOFF}, s{sWOFF}, s{sT0}")
    A(f"s_lshl_b32 s{sM0A}, s{sW}, 13")
    A(f"s_lshl_b32 s{sM0W}, s{sW}, 12")
    A(f"s_lshl_b32 s{sT0}, s2, 3")
    A(f"s_lshl_b32 s{sT1}, s{sW}, 1")
    A(f"s_add_u32 s{sT0}, s{sT0}, s{sT1}")
    A(f"v_add_u32 v5, s{sT0}, v3")
    A("v_mul_u32_u24 v6, 896, v5")
    A("v_lshl_add_u32 v6, v4, 4, v6")
    A("v_add_u32 v7, 512, v6")
    A("v_cmp_gt_u32 vcc, 24, v4")
    A("v_mov_b32 v8, 0x7ffffff0")
    A("s_waitcnt lgkmcnt(0)")
    A("v_cndmask_b32 v7, v8, v7, vcc")
    srd(A, 4, 26, 27, 2048 * 2048)
    A(f"s_cmp_eq_u32 s{sISV}, 0")
    A("s_cselect_b32 s52, s48, s50")
    A("s_cselect_b32 s53, s49, s51")
    srd(A, 8, 52, 53, 1024 * 8192)
    srd(A, 16, 24, 25, 2048 * 896)
    A(f"buffer_load_dwordx4 v[{T}:{T+3}], v6, s[16:19], 0 offen")
    A(f"buffer_load_dwordx4 v[{T+4}:{T+7}], v7, s[16:19], 0 offen")

    def dma_A(half, sm0, soff):
        return ([f"s_add_u32 m0, s{sm0}, {half*4096}"],
                [f"buffer_load_dwordx4 v{VOA+half*4+q}, s[4:7], s{soff} offen offset:{q*1024} lds" for q in range(4)])
    def dma_W(sm0, soff):
        return ([f"s_mov_b32 m0, s{sm0}"],
                [f"buffer_load_dwordx4 v{VOW+q}, s[8:11], s{soff} offen offset:{q*1024} lds" for q in range(4)])
    bg = []
    B = bg.append
    B(f"s_mul_i32 s{sT0}, s{sISV}, {VF_OFF - KF_OFF}")
    B(f"s_add_u32 s{sT0}, s{sT0}, {KF_OFF}")
    B(f"s_add_u32 s12, s28, s{sT0}")
    B("s_addc_u32 s13, s29, 0")
    B("s_and_b32 s13, s13, 0xffff")
    B(f"s_mov_b32 s14, {KF_SIZE}")
    B("s_mov_b32 s15, 0x20000")
    tmpA = Asm(); srd(tmpA, 20, 28, 29, XN_SIZE, XN_OFF); bg += tmpA.L
    for x in ("v_lshrrev_b32 v9, 4, v5", "v_mul_u32_u24 v9, 14, v9", "v_lshrrev_b32 v10, 2, v4", "v_add_u32 v9, v9, v10",
              "v_lshlrev_b32 v9, 6, v9", "v_and_b32 v10, 15, v5", "v_add_u32 v9, v9, v10", "v_and_b32 v10, 3, v4",
              "v_lshl_add_u32 v9, v10, 4, v9", "v_lshlrev_b32 v9, 4, v9", "v_add_u32 v10, 8192, v9", "v_cndmask_b32 v10, v8, v10, vcc"):
        B(x)
    for x in ("v_and_b32 v11, 15, v2", "v_lshrrev_b32 v14, 4, v2", "v_bfe_u32 v13, v2, 1, 3"): B(x)
    B(f"s_lshl_b32 s{sT1}, s{sWX}, 14")
    B(f"s_add_u32 s{sT1}, s{sT1}, 65536")
    B("v_lshlrev_b32 v12, 7, v11")
    B(f"v_add_u32 v12, s{sT1}, v12")
    for ks in range(2):
        B(f"v_add_u32 v15, {4*ks}, v14")
        B("v_xor_b32 v15, v15, v13")
        B(f"v_lshl_add_u32 v{VX+ks}, v15, 4, v12")
    for x in ("v_bfe_u32 v12, v2, 2, 2", "v_lshl_add_u32 v13, v14, 3, v12", "v_lshlrev_b32 v13, 9, v13", "v_and_b32 v15, 1, v2",
              "v_lshl_add_u32 v13, v15, 3, v13", "v_bfe_u32 v15, v2, 4, 1", "v_lshl_add_u32 v12, v15, 2, v12", "v_lshlrev_b32 v12, 1, v12",
              "v_bfe_u32 v15, v2, 1, 1"): B(x)
    B(f"s_lshl_b32 s{sT1}, s{sWW}, 4")
    B(f"v_add_u32 v15, s{sT1}, v15")
    for wt in range(8):
        B(f"v_add_u32 v11, {2*wt}, v15")
        B("v_xor_b32 v11, v11, v12")
        B(f"v_lshl_add_u32 v{VW+wt}, v11, 4, v13")
    if fused:
        B("v_lshrrev_b32 v11, 4, v2"); B("v_and_b32 v12, 15, v2")
        for q in range(4):
            B(f"v_or_b32 v13, {((q>>1)&1)<<2}, v11"); B("v_lshlrev_b32 v13, 1, v13"); B("v_xor_b32 v13, v13, v12")
            B("v_lshlrev_b32 v13, 4, v13"); B(f"v_add_u32 v{VQO+q}, {4*q}, v11"); B(f"v_lshlrev_b32 v{VQO+q}, 13, v{VQO+q}")
            B(f"v_add_u32 v{VQO+q}, v{VQO+q}, v13"); B(f"v_subrev_u32 v{VQO+q}, {q*1024}, v{VQO+q}")
    for i in range(256):
        B(f"v_accvgpr_write_b32 a{i}, 0")
    sAS = [60, 61, 62]; sAO = [63, 64, 65]
    for k in range(3):
        A(f"s_add_u32 s{sAS[k]}, s{sM0A}, {65536 + k*32768}")
    A(f"s_mov_b32 s{sAO[0]}, s{sAOFF}")
    A(f"s_add_u32 s{sAO[1]}, s{sAOFF}, 128")
    A(f"s_add_u32 s{sAO[2]}, s{sAOFF}, 256")
    A(f"s_mov_b32 s{sW0M}, s{sM0W}")
    A(f"s_add_u32 s{sW1M}, s{sM0W}, 16384")
    A(f"s_add_u32 s{sWOFF1}, s{sWOFF}, {32*8192}")
    A(f"s_add_u32 s71, s{sM0W}, 32768")
    A(f"s_add_u32 s72, s{sM0W}, 49152")
    A(f"s_add_u32 s73, s{sWOFF}, {64*8192}")
    A(f"s_add_u32 s86, s{sWOFF}, {96*8192}") if not G.STAMP else A(f"s_add_u32 s87, s{sWOFF}, {96*8192}")
    sW11 = 87 if G.STAMP else 86
    seq = [dma_A(0, sAS[0], sAO[0]), dma_A(1, sAS[0], sAO[0]), dma_W(sW0M, sWOFF), dma_W(sW1M, sWOFF1), dma_A(0, sAS[1], sAO[1]),
           dma_A(1, sAS[1], sAO[1]), dma_W(71, 73), dma_W(72, sW11), dma_A(0, sAS[2], sAO[2])]
    per = (len(bg) + 35) // 36
    bi = 0
    for o, d in seq:
        for x in o: A(x)
        A("s_nop 0")
        for x in d:
            A(x)
            for y in bg[bi: bi + per]: A(y)
            bi += per
    for y in bg[bi:]: A(y)
    srd(A, 60, 28, 29, FL_SIZE, FL_OFF)
    A(f"s_cmp_eq_u32 s{sW}, 0")
    A("s_cbranch_scc0 K1_NOZ")
    A("v_lshlrev_b32 v11, 3, v2")
    A("s_lshl_b32 s64, s2, 9")
    A("v_mov_b32 v12, 0")
    A("v_mov_b32 v13, 0")
    A(f"buffer_store_dwordx2 v[12:13], v11, s[60:63], s64 offen{ST}")
    A.label("K1_NOZ")
    A(f"s_add_u32 s{sWOFF}, s{sWOFF}, {128*8192}")
    A(f"s_add_u32 s{sWOFF1}, s{sWOFF}, {32*8192}")
    A(f"s_add_u32 s{sBM}, s{sM0A}, {65536 + 2*32768}")
    A(f"s_add_u32 s{sBO}, s{sAOFF}, 256")
    A(f"s_add_u32 s{sAM}, s{sM0A}, 65536")
    A(f"s_add_u32 s{sAOf}, s{sAOFF}, 384")
    A(f"s_add_u32 s{sLIM}, s{sM0A}, {65536 + 3*32768}")
    A("s_waitcnt vmcnt(36)" if False else "s_waitcnt vmcnt(37)") if False else None
    A("s_waitcnt vmcnt(36)")
    S1, S2, ONE = T+8, T+9, T+10
    A(f"v_mov_b32 v{ONE}, 0x3f803f80")
    A(f"v_mov_b32 v{S1}, 0")
    A(f"v_mov_b32 v{S2}, 0")
    for i in range(8):
        A(f"v_dot2_f32_bf16 v{S1}, v{T+i}, v{ONE}, v{S1}")
        A(f"v_dot2_f32_bf16 v{S2}, v{T+i}, v{T+i}, v{S2}")
    A("s_nop 2")
    a_, b_ = T+11, T+12
    for off in (0x041F, 0x081F, 0x101F, 0x201F, 0x401F):
        A(f"ds_swizzle_b32 v{a_}, v{S1} offset:{off}")
        A(f"ds_swizzle_b32 v{b_}, v{S2} offset:{off}")
        A("s_waitcnt lgkmcnt(0)")
        A(f"v_add_f32 v{S1}, v{S1}, v{a_}")
        A(f"v_add_f32 v{S2}, v{S2}, v{b_}")
    A(f"v_mul_f32 v{S1}, {f32(1/448)}, v{S1}")
    A(f"v_mul_f32 v{S2}, {f32(1/448)}, v{S2}")
    A(f"v_fma_f32 v{S2}, -v{S1}, v{S1}, v{S2}")
    A(f"v_max_f32 v{S2}, 0, v{S2}")
    A(f"v_add_f32 v{S2}, {f32(1e-5)}, v{S2}")
    A(f"v_rsq_f32 v{S2}, v{S2}")
    A("s_nop 0")
    for i in range(8):
        A(f"v_lshlrev_b32 v{a_}, 16, v{T+i}")
        A(f"v_and_b32 v{b_}, 0xffff0000, v{T+i}")
        A(f"v_sub_f32 v{a_}, v{a_}, v{S1}")
        A(f"v_sub_f32 v{b_}, v{b_}, v{S1}")
        A(f"v_mul_f32 v{a_}, v{a_}, v{S2}")
        A(f"v_mul_f32 v{b_}, v{b_}, v{S2}")
        A(f"v_cvt_pk_bf16_f32 v{T+i}, v{a_}, v{b_}")
    A(f"buffer_store_dwordx4 v[{T}:{T+3}], v9, s[20:23], 0 offen{ST}")
    A(f"buffer_store_dwordx4 v[{T+4}:{T+7}], v10, s[20:23], 0 offen{ST}")

    def rdX(buf, ks, xt):
        return [f"ds_read_b128 v[{XB[buf]+4*xt}:{XB[buf]+4*xt+3}], v{VX+ks} offset:{xt*2048}"]
    def rdW(buf, ks, wt):
        r = WB[buf] + 4 * wt
        return [f"ds_read_b64_tr_b16 v[{r}:{r+1}], v{VW+wt} offset:{ks*16384}",
                f"ds_read_b64_tr_b16 v[{r+2}:{r+3}], v{VW+wt} offset:{ks*16384 + 2048}"]
    def reads(buf, ks):
        o = [rdX(buf, ks, 0)] + [rdW(buf, ks, wt) for wt in range(8)] + [rdX(buf, ks, xt) for xt in range(1, 8)]
        return o
    A("s_waitcnt vmcnt(26)")
    A("s_barrier")
    stamp(A, 1)
    for grp in reads(0, 0):
        for x in grp: A(x)
    A(f"s_mov_b32 s{sCNT}, 0")
    A(f"s_mov_b32 s{sDA}, 32768")
    A(f"s_mov_b32 s{sMOD}, 0")
    A(f"s_mov_b32 s{sC32}, 32768")
    A(f"s_mov_b32 s{sCM64}, 0xffff0000")
    A(f"s_mov_b32 s{sHK}, 2")
    A(f"s_cmp_eq_u32 s{sISV}, 0")
    A("s_cbranch_scc0 K1_LOOP_V")

    for variant in ("K", "V"):
        A(".p2align 6")
        A.label(f"K1_LOOP_{variant}")
        for ks in range(2):
            buf = ks
            mf = []
            for xt in range(8):
                for wt in range(8):
                    acc = (xt * 8 + wt) * 4
                    x = vr(XB[buf] + 4 * xt, 4); w = vr(WB[buf] + 4 * wt, 4)
                    a, b = (w, x) if variant == "K" else (x, w)
                    mf.append(f"{MF} {ar(acc,4)}, {a}, {b}, {ar(acc,4)}")
            sc = Sched(mf, f"k1{variant}{ks}")
            sc.S(-1, f"s_waitcnt vmcnt({20 if ks == 0 else 16}) lgkmcnt(0)")
            sc.S(-1, "s_barrier")
            g0 = 0
            if ks == 1:
                sc.V(0, f"v_add_u32 v{VX}, s{sDA}, v{VX}"); sc.V(0, f"v_add_u32 v{VX+1}, s{sDA}, v{VX+1}")
                for k in range(8): sc.V(1 + k // 2, f"v_xor_b32 v{VW+k}, 0x8000, v{VW+k}")
                g0 = 6
            for i, grp in enumerate(reads(buf ^ 1, ks ^ 1)):
                for x in grp: sc.V(g0 + 2 * i, x)
            if ks == 0:
                g1 = dma_A(1, sBM, sBO); g2 = dma_W(sW0M, sWOFF)
                sc.S(0, f"s_cmp_eq_u32 s{sCNT}, s{sHK}")
                sc.S(1, f"s_cbranch_scc1 K1_HOOK_{variant}")
                sc.S(1, f"K1_BACK_{variant}:")
            else:
                g1 = dma_W(sW1M, sWOFF1); g2 = dma_A(0, sAM, sAOf)
            sc.S(2, g1[0][0])
            for q in range(4): sc.V(5 + 6 * q, g1[1][q])
            sc.S(30, g2[0][0])
            for q in range(4): sc.V(33 + 6 * q, g2[1][q])
            if ks == 0:
                sc.S(26, f"s_cmp_ge_u32 s{sCNT}, 13"); sc.S(27, f"s_cselect_b32 s6, 0, {2048*2048}")
                adv = [[f"s_add_u32 s{sBM}, s{sBM}, 32768"], [f"s_cmp_eq_u32 s{sBM}, s{sLIM}", f"s_cselect_b32 s{sT1}, {3*32768}, 0", f"s_sub_u32 s{sBM}, s{sBM}, s{sT1}"],
                       [f"s_add_u32 s{sBO}, s{sBO}, 128"], [f"s_add_u32 s{sMOD}, s{sMOD}, 1"],
                       [f"s_cmp_eq_u32 s{sMOD}, 3", f"s_cselect_b32 s{sDA}, s{sCM64}, s{sC32}", f"s_cselect_b32 s{sMOD}, 0, s{sMOD}"]]
                pos = [32, 35, 36, 38, 41]
                for p, grp in zip(pos, adv): sc.s[p] += grp
                sc.s[54].append(f"s_add_u32 s{sWOFF}, s{sWOFF}, {64*8192}")
                sc.s[56].append(f"s_xor_b32 s{sW0M}, s{sW0M}, 0x8000")
            else:
                sc.s[26].append(f"s_add_u32 s{sWOFF1}, s{sWOFF1}, {64*8192}")
                sc.s[28].append(f"s_xor_b32 s{sW1M}, s{sW1M}, 0x8000")
                sc.s[54].append(f"s_add_u32 s{sAM}, s{sAM}, 32768")
                sc.s[55] += [f"s_cmp_eq_u32 s{sAM}, s{sLIM}", f"s_cselect_b32 s{sT1}, {3*32768}, 0", f"s_sub_u32 s{sAM}, s{sAM}, s{sT1}"]
                sc.s[56].append(f"s_add_u32 s{sAOf}, s{sAOf}, 128")
                sc.s[58].append(f"s_add_u32 s{sCNT}, s{sCNT}, 1")
                sc.s[63].append(f"s_cmp_lt_u32 s{sCNT}, 16")
            sc.emit(A)
        A(f"s_cbranch_scc1 K1_LOOP_{variant}")
        A(f"s_branch K1_EPI_{variant}")
        A.label(f"K1_HOOK_{variant}")
        lab = f"K1H{variant}"
        A(f"s_cmp_eq_u32 s{sCNT}, 2"); A(f"s_cbranch_scc0 {lab}_3")
        if fused:
            srd(A, 48, DBG, DBG + 1, 256)
            A(f"s_cmp_eq_u32 s{sW}, 0"); A(f"s_cbranch_scc0 {lab}_2E")
            A("v_mov_b32 v11, 0"); A("v_mov_b32 v12, 1")
            A("v_cmp_eq_u32 vcc, 0, v2"); A("s_and_saveexec_b64 s[52:53], vcc")
            A("buffer_atomic_add v12, v11, s[48:51], 0 offen")
            A("s_mov_b64 exec, s[52:53]")
            A.label(f"{lab}_2E")
        A(f"s_lshr_b32 s{sHK}, s2, 3"); A(f"s_and_b32 s{sHK}, s{sHK}, 3"); A(f"s_add_u32 s{sHK}, s{sHK}, 3"); A(f"s_branch K1_BACK_{variant}")
        A.label(f"{lab}_3")
        A(f"s_cmp_eq_u32 s{sCNT}, 12"); A(f"s_cbranch_scc1 {lab}_12")
        A(f"s_cmp_eq_u32 s{sCNT}, 14"); A(f"s_cbranch_scc1 {lab}_14")
        A(f"s_lshl_b32 s{sT0}, s2, 2"); A(f"s_add_u32 s{sT0}, s{sT0}, s{sW}")
        A(f"s_cmp_ge_u32 s{sCNT}, 7"); A(f"s_cselect_b32 s{sT1}, 1024, 0"); A(f"s_add_u32 s{sT0}, s{sT0}, s{sT1}")
        A(f"s_cselect_b32 s{sHK}, 12, 6") if False else None
        bounds = [(76, 448, 448*8192), (80, 196, 448*3584), (82, 196, 448*3584), (78, 448, 4096*896), (84, 196, 1792*896)]
        A("s_mov_b32 s48, s76"); A("s_mov_b32 s49, s77"); A(f"s_mov_b32 s50, {bounds[0][2]}"); A(f"s_mov_b32 s{sT1}, 0")
        cum = 0
        for k in range(1, 5):
            cum += bounds[k - 1][1]
            A(f"s_cmp_ge_u32 s{sT0}, {cum}")
            A(f"s_cselect_b32 s48, s{bounds[k][0]}, s48"); A(f"s_cselect_b32 s49, s{bounds[k][0]+1}, s49")
            A(f"s_cselect_b32 s50, {bounds[k][2]}, s50")
            A(f"s_cselect_b32 s{sT1}, {cum}, s{sT1}")
        A(f"s_sub_u32 s{sT0}, s{sT0}, s{sT1}")
        A("s_and_b32 s49, s49, 0xffff"); A("s_mov_b32 s51, 0x20000")
        A(f"s_lshl_b32 s{sT0}, s{sT0}, 13")
        A("v_lshlrev_b32 v11, 7, v2")
        if int(os.environ.get("TG", 128)):
            A(f"buffer_load_dword v{VPOLL+1}, v11, s[48:51], s{sT0} offen")
        A(f"s_add_u32 s{sHK}, s{sCNT}, 4"); A(f"s_cmp_ge_u32 s{sCNT}, 7"); A(f"s_cselect_b32 s{sHK}, 12, s{sHK}"); A(f"s_branch K1_BACK_{variant}")
        A.label(f"{lab}_12")
        if fused:
            srd(A, 48, DBG, DBG + 1, 256)
            A("v_mov_b32 v11, 0")
            A(f"buffer_load_dword v{VPOLL}, v11, s[48:51], 0 offen sc1")
        A(f"s_mov_b32 s{sHK}, 14"); A(f"s_branch K1_BACK_{variant}")
        A.label(f"{lab}_14")
        if fused:
            for q in range(4): A(f"v_mov_b32 v{VOW+q}, v{VQO+q}")
            srd(A, 8, 76, 77, 448 * 8192)
            A(f"s_lshl_b32 s{sWOFF}, s{sW}, 17"); A(f"s_lshl_b32 s{sT0}, s{sHEAD}, 9"); A(f"s_add_u32 s{sWOFF}, s{sWOFF}, s{sT0}")
            A(f"s_add_u32 s{sWOFF1}, s{sWOFF}, 256")
        else:
            A("s_mov_b32 s10, 0")
        A(f"s_mov_b32 s{sHK}, 99"); A(f"s_branch K1_BACK_{variant}")

    for variant in ("K", "V"):
        A.label(f"K1_EPI_{variant}")
        stamp(A, 2)
        A("s_waitcnt lgkmcnt(0)")
        if fused: G.k1_pre_epilogue(A)
        A(f"s_lshl_b32 s{sOUT}, s{sHEAD}, 6")
        A(f"s_lshl_b32 s{sT0}, s{sRB}, 3")
        A(f"s_add_u32 s{sOUT}, s{sOUT}, s{sT0}")
        A(f"s_lshl_b32 s{sT0}, s{sWX}, 2")
        A(f"s_add_u32 s{sOUT}, s{sOUT}, s{sT0}")
        A(f"s_lshl_b32 s{sOUT}, s{sOUT}, 14")
        A(f"s_lshl_b32 s{sT0}, s{sWW}, {12 if variant == 'K' else 13}")
        A(f"s_add_u32 s{sOUT}, s{sOUT}, s{sT0}")
        A(f"s_mov_b32 s{sT1}, {f32(math.log2(math.e) / 16.0)}")
        A("v_lshlrev_b32 v5, 4, v2")
        A("v_add_u32 v6, 4096, v5")
        A("s_nop 7")
        n = 0; prev = 0
        items = [(xt, u) for xt in range(8) for u in range(4)] if variant == "K" else [(u, wt) for u in range(4) for wt in range(8)]
        for it in items:
            b = T + (n % 4) * 12
            n += 1
            if variant == "K":
                xt, u = it
                t0, t1 = (xt * 8 + 2 * u) * 4, (xt * 8 + 2 * u + 1) * 4
                soff = xt * 8192 + u * 1024
            else:
                u, wt = it
                t0, t1 = ((2 * u) * 8 + wt) * 4, ((2 * u + 1) * 8 + wt) * 4
                soff = u * 16384 + wt * 1024
            for i in range(4):
                A(f"v_accvgpr_read_b32 v{b+i}, a{t0+i}")
                A(f"v_accvgpr_read_b32 v{b+4+i}, a{t1+i}")
            if variant == "K":
                for i in range(8): A(f"v_mul_f32 v{b+i}, s{sT1}, v{b+i}")
            for i in range(4):
                A(f"v_cvt_pk_bf16_f32 v{b+8+i}, v{b+2*i}, v{b+2*i+1}")
            base = soff // 8192 * 8192
            rem = soff - base
            if base != prev: A(f"s_add_u32 s{sOUT}, s{sOUT}, {base - prev}")
            prev = base
            vo = 5 if rem < 4096 else 6
            A(f"buffer_store_dwordx4 v[{b+8}:{b+11}], v{vo}, s[12:15], s{sOUT} offen offset:{rem & 4095}{ST}")
        if variant == "K": A("s_branch K1_FIN")
    A.label("K1_FIN")

def gen_k1(A):
    name = "k1_proj_kernel"
    kernel_header(A, name)
    A("s_cmp_ge_u32 s2, 256")
    A("s_cbranch_scc1 K1_END")
    stamp(A, 0); rstamp(A, 5)
    k1_body(A, False)
    stamp(A, 3)
    if G.STAMP: A("s_waitcnt vmcnt(0) lgkmcnt(0)")
    stamp(A, 4)
    stamp_flush(A, 6, 28, 29, sW)
    A.label("K1_END")
    A("s_endpgm")
    return name, NV1, 256
```

```python
from gen_common import *
import gen_common as G
import math, os
from gen_attn import *

A2 = int(os.environ.get("A2", 27))
A1 = int(os.environ.get("A1", 31))
sSTATE, sPAIR, sI_, sA, sNG, sGI, sC, sPEND, sNC, sNROW = 61, 62, 63, 64, 65, 66, 67, 50, 51, 52
sNWOFF, sNJ = 53, 60
S_H, S_D = 68, 72
S_WG, S_WU = 80, 84
QH_SZ = 128 * 65536
OPB_OFF = QH_SZ
OPS_OFF = 2 * QH_SZ

def frag(i):
    return vFR + 4 * (i % NFR)

def voffs(A, dst, stride):
    t0, t1, t2 = vT[0], vT[1], vT[2]
    A(f"v_lshrrev_b32 v{t0}, 4, v{vLANE}")
    A(f"v_and_b32 v{t1}, 15, v{vLANE}")
    for q in range(4):
        A(f"v_or_b32 v{t2}, {((q>>1)&1)<<2}, v{t0}")
        A(f"v_lshlrev_b32 v{t2}, 1, v{t2}")
        A(f"v_xor_b32 v{t2}, v{t2}, v{t1}")
        A(f"v_lshlrev_b32 v{t2}, 4, v{t2}")
        A(f"v_add_u32 v{dst+q}, {4*q}, v{t0}")
        A(f"v_mul_u32_u24 v{dst+q}, {stride}, v{dst+q}")
        A(f"v_add_u32 v{dst+q}, v{dst+q}, v{t2}")
        A(f"v_subrev_u32 v{dst+q}, {q*1024}, v{dst+q}")

def wr_setup(A):
    t0, t1, t2 = vT[0], vT[1], vT[2]
    A(f"v_bfe_u32 v{t0}, v{vLANE}, 2, 2")
    A(f"v_lshrrev_b32 v{t1}, 4, v{vLANE}")
    A(f"v_lshl_add_u32 v{t1}, v{t1}, 3, v{t0}")
    A(f"v_lshlrev_b32 v{t1}, 8, v{t1}")
    A(f"v_and_b32 v{t2}, 1, v{vLANE}")
    A(f"v_lshl_add_u32 v{t1}, v{t2}, 3, v{t1}")
    A(f"v_bfe_u32 v{t2}, v{vLANE}, 4, 1")
    A(f"v_lshl_add_u32 v{t0}, v{t2}, 2, v{t0}")
    A(f"v_lshlrev_b32 v{t0}, 1, v{t0}")
    A(f"v_bfe_u32 v{t2}, v{vLANE}, 1, 1")
    for ft in range(8):
        A(f"v_add_u32 v{vT[3]}, {2*ft}, v{t2}")
        A(f"v_xor_b32 v{vT[3]}, v{vT[3]}, v{t0}")
        A(f"v_lshl_add_u32 v{vWR+ft}, v{vT[3]}, 4, v{t1}")

class Proj:
    def __init__(self, kind):
        self.kind = kind
        self.stride = 8192 if kind == "Q" else 3584
        self.vo = vVOW if kind == "Q" else vVOG
        self.srd = (S_WL, S_WL) if kind == "Q" else (S_WG, S_WU)
    def wgroup(self, j, woff, tmp):
        o = []
        for half in range(2):
            add = j * 64 * self.stride + (256 * half if self.kind == "Q" else 0)
            o.append(("s", f"s_add_u32 s{tmp}, s{woff}, {add}"))
            o.append(("s", f"s_add_u32 m0, s{sWB}, {(j % 4) * 32768 + half*16384}"))
            for q in range(4):
                o.append(("v", f"buffer_load_dwordx4 v{self.vo+q}, s[{self.srd[half]}:{self.srd[half]+3}], s{tmp} offen offset:{q*1024} lds"))
        return o
    def xgroup(self, j, xoff, tmp):
        o = []
        for qt in range(2):
            o.append(("s", f"s_add_u32 s{tmp}, s{xoff}, {qt*14*1024 + j*2048}"))
            for k in range(2):
                r = vXN + ((2*j + k) * 2 + qt) * 4
                o.append(("v", f"buffer_load_dwordx4 v[{r}:{r+3}], v{vL16}, s[{S_X}:{S_X+3}], s{tmp} offen offset:{k*1024}"))
        return o
    def issue(self, A, items):
        prev_s = False
        for k, x in items:
            if k == "v" and prev_s: A("s_nop 0")
            A(x); prev_s = (k == "s")
    def rd(self, n, slotoff):
        ks_, dt = n // 16, n % 16
        r = frag(n)
        off = slotoff + (dt // 8) * 16384 + ks_ * 8192
        return [f"ds_read_b64_tr_b16 v[{r}:{r+1}], v{vWR + dt % 8} offset:{off}",
                f"ds_read_b64_tr_b16 v[{r+2}:{r+3}], v{vWR + dt % 8} offset:{off + 1024}"]
    def main(self, A, waits, tails, hooks):
        for n in range(DPRE):
            for x in self.rd(n, 0): A(x)
        for j in range(7):
            slot = j % 4
            mf = []
            for n in range(32):
                ks_, dt = n // 16, n % 16
                ks = 2 * j + ks_
                for qt in range(2):
                    acc = (dt * 2 + qt) * 4
                    x = vXN + (ks * 2 + qt) * 4
                    mf.append(f"{MF} {ar(acc,4)}, {vr(frag(n),4)}, {vr(x,4)}, " + ("0" if ks == 0 else ar(acc,4)))
            sc = Sched(mf, f"proj{self.kind}{j}")
            for x in waits[j]: A(x)
            A("s_barrier")
            if j in hooks: hooks[j](A)
            A(f"s_waitcnt lgkmcnt({2*(DPRE-1)})")
            for n in range(32):
                last = 31 if j == 6 else 10**9
                issued = min(last, n - 1 + DPRE)
                if n + 1 <= 31 or j < 6:
                    sc.S(2 * n, f"s_waitcnt lgkmcnt({max(0, 2 * (issued - (n + 1)))})")
                m = n + DPRE
                if m < 32:
                    x = self.rd(m, (slot % 2) * 32768)
                elif j < 6:
                    nslot = (j + 1) % 4
                    x = self.rd(m - 32, (nslot % 2) * 32768)
                    if m == 32 and (nslot // 2) != (slot // 2):
                        d = 65536 if nslot // 2 == 1 else -65536
                        for ft in range(8):
                            sc.V(2 * n - 1 - 2 * (3 - ft // 2) if False else 2 * n - 1, f"v_add_u32 v{vWR+ft}, {d & 0xffffffff}, v{vWR+ft}")
                else:
                    continue
                sc.V(2 * n, x[0]); sc.V(2 * n, x[1])
            items = tails.get(j, [])
            nv = sum(1 for k, _ in items if k == "v")
            if nv:
                gaps = [g for g in range(3, 62, 2) if not sc.v[g]]
                pos = [gaps[int(k * (len(gaps) - 1) / max(1, nv - 1))] for k in range(nv)] if nv > 1 else [gaps[0]]
                k = 0; pend = []
                for kind, x in items:
                    if kind == "s": pend.append(x)
                    else:
                        g = pos[k]; k += 1
                        if pend:
                            tgt = g - 2 if (g - 2 >= 1 and not sc.v[g - 2]) else g - 1
                            sc.s[tgt] += pend; pend = []
                        sc.v[g].append(x)
                assert not pend
            sc.emit(A)
        for ft in range(8):
            A(f"v_subrev_u32 v{vWR+ft}, 65536, v{vWR+ft}")

def q_convert(A, store=None):
    n = 0
    for qt in range(2):
        for u in range(8):
            b = vF + (n % 4) * 8; n += 1
            for k in range(2):
                for r in range(4):
                    A(f"v_accvgpr_read_b32 v{b+4*k+r}, a{((2*u+k)*2+qt)*4+r}")
            for e in range(4):
                A(f"v_cvt_pk_bf16_f32 v{vQ+(qt*8+u)*4+e}, v{b+2*e}, v{b+2*e+1}")

def o_zero(A):
    for i in range(128):
        A(f"v_accvgpr_write_b32 a{i}, 0")

def flag_set(A, which):
    lab = f"FS_{len(A.L)}"
    A(f"s_cmp_eq_u32 s{sW}, 0")
    A(f"s_cbranch_scc0 {lab}")
    A(f"s_lshl_b32 s{sT0}, s{sPAIR}, 9")
    A(f"s_add_u32 s{sT0}, s{sT0}, {which*256}")
    A(f"v_mov_b32 v{vT[0]}, s{sT0}")
    A(f"v_mov_b32 v{vT[1]}, 1")
    A(f"v_cmp_eq_u32 s[78:79], 0, v{vLANE}")
    A("s_and_saveexec_b64 s[76:77], s[78:79]")
    A(f"buffer_store_dword v{vT[1]}, v{vT[0]}, s[{S_D}:{S_D+3}], 0 offen sc1")
    A("s_mov_b64 exec, s[76:77]")
    A.label(lab)

def flag_wait(A, which):
    lab = f"FW_{len(A.L)}"
    A(f"s_cmp_eq_u32 s{sW}, 0")
    A(f"s_cbranch_scc0 {lab}_OK")
    A(f"s_lshl_b32 s{sT0}, s{sPAIR}, 9")
    A(f"s_add_u32 s{sT0}, s{sT0}, {which*256}")
    A(f"v_mov_b32 v{vT[0]}, s{sT0}")
    A(f"s_mov_b32 s{sT2}, 0x40000")
    A.label(lab)
    A(f"buffer_load_dword v{vT[1]}, v{vT[0]}, s[{S_D}:{S_D+3}], 0 offen sc1")
    A("s_waitcnt vmcnt(0)")
    A(f"v_readfirstlane_b32 s{sT0}, v{vT[1]}")
    A(f"s_cmp_eq_u32 s{sT0}, 1")
    A(f"s_cbranch_scc1 {lab}_OK")
    A(f"s_sub_u32 s{sT2}, s{sT2}, 1")
    A(f"s_cmp_eq_u32 s{sT2}, 0")
    A(f"s_cbranch_scc1 {lab}_OK")
    A("s_sleep 4")
    A(f"s_branch {lab}")
    A.label(f"{lab}_OK")
    A("s_barrier")

def fin_norm_store(A, srd_, qt_stride, flags=""):
    n = 0
    for qt in range(2):
        for u in range(8):
            b = vF + (n % 4) * 12; n += 1
            for k in range(2):
                for r in range(4):
                    A(f"v_accvgpr_read_b32 v{b+4*k+r}, a{((2*u+k)*2+qt)*4+r}")
            for e in range(8):
                A(f"v_mul_f32 v{b+e}, v{b+e}, v{vT[qt]}")
            for e in range(4):
                A(f"v_cvt_pk_bf16_f32 v{b+8+e}, v{b+2*e}, v{b+2*e+1}")
            if u == 4: A(f"s_add_u32 s{sT0}, s{sT0}, 4096")
            A(f"buffer_store_dwordx4 v[{b+8}:{b+11}], v{vL16}, s[{srd_}:{srd_+3}], s{sT0} offen offset:{(u%4)*1024}{flags}")
        A(f"s_add_u32 s{sT0}, s{sT0}, {qt_stride - 4096}")

def af_off(A):
    A(f"s_mul_i32 s{sT0}, s{sROW0}, {184*1024}")
    A(f"s_lshl_b32 s{sT1}, s{sHEAD}, 13")
    A(f"s_add_u32 s{sT0}, s{sT0}, s{sT1}")

def row0(A, dst, blk):
    A(f"s_lshl_b32 s{dst}, s{blk}, 3")
    A(f"s_lshl_b32 s{sT0}, s{sW}, 1")
    A(f"s_add_u32 s{dst}, s{dst}, s{sT0}")

def h_off(A, base):
    A(f"s_lshl_b32 s{sT0}, s{sPAIR}, 16")
    A(f"s_lshl_b32 s{sT1}, s{sW}, 14")
    A(f"s_add_u32 s{sT0}, s{sT0}, s{sT1}")
    if base: A(f"s_add_u32 s{sT0}, s{sT0}, {base}")

def gu_next_params(A):
    A(f"s_cmp_eq_u32 s{sNG}, 0")
    A(f"s_cselect_b32 s{S_WG+2}, 0, {448*3584}")
    A(f"s_cselect_b32 s{S_WU+2}, 0, {448*3584}")
    A(f"s_lshr_b32 s{sNC}, s{sGI}, 4")
    A(f"s_and_b32 s{sT2}, s{sGI}, 15")
    row0(A, sNROW, sT2)
    A(f"s_mul_i32 s{sNJ}, s{sNROW}, {14*1024}")
    A(f"s_mul_i32 s{sNWOFF}, s{sW}, {16*3584}")
    A(f"s_lshl_b32 s{sT0}, s{sNC}, 8")
    A(f"s_add_u32 s{sNWOFF}, s{sNWOFF}, s{sT0}")

def k2_body(A):
    PQ, PG = Proj("Q"), Proj("G")
    lane_setup(A)
    A("s_and_b32 s3, s2, 7")
    A(f"s_lshr_b32 s{sT0}, s2, 3")
    A(f"s_and_b32 s{sT1}, s{sT0}, 1")
    A(f"s_lshl_b32 s{sHEAD}, s3, 1")
    A(f"s_add_u32 s{sHEAD}, s{sHEAD}, s{sT1}")
    A(f"s_bfe_u32 s{sI_}, s{sT0}, 0x30001")
    A(f"s_lshr_b32 s{sSTATE}, s2, 7")
    A(f"s_lshl_b32 s{sPAIR}, s{sHEAD}, 3")
    A(f"s_add_u32 s{sPAIR}, s{sPAIR}, s{sI_}")
    A(f"s_and_b32 s{sT1}, s{sT0}, 15")
    A(f"s_cmp_lt_u32 s{sT1}, 12")
    A(f"s_cselect_b32 s{sNG}, 2, 1")
    A(f"s_cselect_b32 s{sA}, {A2}, {A1}")
    A(f"s_mul_i32 s{sGI}, s3, 28")
    A(f"s_add_u32 s{sGI}, s{sGI}, s{sT1}")
    A("s_waitcnt lgkmcnt(0)")
    srd(A, S_X, sWS, sWS + 1, XN_SIZE, XN_OFF)
    srd(A, S_WL, 54, 55, 448 * 8192)
    A(f"s_sub_u32 s{sT0}, 15, s{sI_}")
    A(f"s_cmp_eq_u32 s{sSTATE}, 0")
    A(f"s_cselect_b32 s{sQB}, s{sT0}, s{sI_}")
    row0(A, sROW0, sQB)
    A(f"s_mul_i32 s{sJ}, s{sROW0}, {14*1024}")
    A(f"s_lshl_b32 s{sWOFFL}, s{sW}, 17")
    A(f"s_lshl_b32 s{sT0}, s{sHEAD}, 9")
    A(f"s_add_u32 s{sWOFFL}, s{sWOFFL}, s{sT0}")
    voffs(A, vVOW, 8192)
    for j in range(3):
        PQ.issue(A, PQ.wgroup(j, sWOFFL, sT3) + PQ.xgroup(j, sJ, sT3))
    srd(A, S_K, sWS, sWS + 1, KF_SIZE, KF_OFF)
    srd(A, S_V, sWS, sWS + 1, KF_SIZE, VF_OFF - 16384)
    srd(A, S_AF, sWS, sWS + 1, AF_SIZE, AF_OFF)
    srd(A, S_H, sWS, sWS + 1, 2 * QH_SZ + 128 * 4096, QH_OFF)
    srd(A, S_D, sWS, sWS + 1, 65536, FL_OFF)
    srd(A, S_WG, 56, 57, 448 * 3584)
    srd(A, S_WU, 58, 59, 448 * 3584)
    voffs(A, vVOG, 3584)
    wr_setup(A)
    A(f"s_lshl_b32 s{sE}, s{sI_}, 2")
    A(f"s_add_u32 s{sE}, s{sE}, 4")
    A(f"s_cmp_eq_u32 s{sSTATE}, 0")
    A(f"s_cselect_b32 s{sE}, s{sA}, s{sE}")
    A(f"s_mov_b32 s{sF}, 0")
    A(f"s_mov_b32 s{sPEND}, 0")
    attn_params(A)
    A("s_waitcnt vmcnt(24)")
    A("s_barrier")
    sv = lambda g: [("s", x) for x in g[0]] + [("v", x) for x in g[1]]
    waitsQ = {0: ["s_waitcnt vmcnt(12)"], 1: ["s_waitcnt vmcnt(12)"], 2: ["s_waitcnt vmcnt(12)"], 3: ["s_waitcnt vmcnt(12)"],
              4: ["s_waitcnt vmcnt(12)"], 5: ["s_waitcnt vmcnt(8)"], 6: []}
    tailsQ = {j: PQ.wgroup(j + 3, sWOFFL, sT3) + PQ.xgroup(j + 3, sJ, sT3) for j in range(4)}
    tailsQ[4] = sv(kv_group("V", 0)) + sv(kv_group("V", 1))
    tailsQ[5] = sv(kv_group("K", 0)) + sv(kv_group("K", 1))
    tailsQ[6] = sv(kv_group("K", 2)) + sv(kv_group("K", 3)) + sv(kv_group("V", 2))
    PQ.main(A, waitsQ, tailsQ, {})
    stamp(A, 1)
    A(f"s_add_u32 s{sOFF}, s{sOFF}, {4*16384}")
    A("s_nop 4")
    q_convert(A)
    A(f"s_mov_b32 s{sHOOK}, -1")
    A(f"s_cmp_eq_u32 s{sSTATE}, 0")
    A("s_cbranch_scc0 K2_NOPUBQ")
    h_off(A, 0)
    for k in range(16):
        if k % 4 == 0 and k: A(f"s_add_u32 s{sT0}, s{sT0}, 4096")
        A(f"buffer_store_dwordx4 v[{vQ+4*k}:{vQ+4*k+3}], v{vL16}, s[{S_H}:{S_H+3}], s{sT0} offen offset:{(k%4)*1024} sc1")
    A(f"s_sub_u32 s{sHOOK}, s{sREM}, 1")
    o_zero(A)
    A("s_waitcnt vmcnt(28)")
    A("s_branch K2_GO")
    A.label("K2_NOPUBQ")
    o_zero(A)
    A("s_waitcnt vmcnt(12)")
    A.label("K2_GO")
    A("s_barrier")
    A.label("K2_CORE")
    attn_core(A, "K2A", lambda A: flag_set(A, 0))
    A(f"s_cmp_eq_u32 s{sSTATE}, 1")
    A("s_cbranch_scc1 K2_BLO")
    A(f"s_cmp_eq_u32 s{sSTATE}, 2")
    A("s_cbranch_scc1 K2_MERGE")
    gu_next_params(A)
    for j in range(2):
        PG.issue(A, PG.wgroup(j, sNWOFF, sT3) + PG.xgroup(j, sNJ, sT3))
    A("s_nop 7")
    xreduce(A, [vL, vL + 1], "v_add_f32", [vT[2], vT[3]])
    A(f"v_rcp_f32 v{vT[0]}, v{vL}")
    A(f"v_rcp_f32 v{vT[1]}, v{vL+1}")
    h_off(A, OPB_OFF)
    fin_norm_store(A, S_H, 8192, " sc1")
    A(f"v_mov_b32 v{vF}, v{vNEGM}")
    A(f"v_mov_b32 v{vF+1}, v{vNEGM+4}")
    A(f"v_mov_b32 v{vF+2}, v{vL}")
    A(f"v_mov_b32 v{vF+3}, v{vL+1}")
    A(f"s_lshl_b32 s{sT0}, s{sPAIR}, 12")
    A(f"s_lshl_b32 s{sT1}, s{sW}, 10")
    A(f"s_add_u32 s{sT0}, s{sT0}, s{sT1}")
    A(f"s_add_u32 s{sT0}, s{sT0}, {OPS_OFF}")
    A(f"buffer_store_dwordx4 v[{vF}:{vF+3}], v{vL16}, s[{S_H}:{S_H+3}], s{sT0} offen sc1")
    A(f"s_mov_b32 s{sPEND}, 1")
    A.label("K2_GU")
    A(f"s_mov_b32 s{sC}, s{sNC}")
    A(f"s_mov_b32 s{sROW0}, s{sNROW}")
    A(f"s_mov_b32 s{sWOFFL}, s{sNWOFF}")
    A(f"s_mov_b32 s{sJ}, s{sNJ}")
    A(f"s_sub_u32 s{sNG}, s{sNG}, 1")
    A(f"s_add_u32 s{sGI}, s{sGI}, 16")
    PG.issue(A, PG.wgroup(2, sWOFFL, sT3) + PG.xgroup(2, sJ, sT3))
    A("s_waitcnt vmcnt(32)")
    A("s_barrier")
    def w0(A): pass
    def pend_hook(A):
        lab = f"PH_{len(A.L)}"
        A(f"s_cmp_eq_u32 s{sPEND}, 0")
        A(f"s_cbranch_scc1 {lab}")
        flag_set(A, 1)
        A(f"s_mov_b32 s{sPEND}, 0")
        A.label(lab)
    def nextp(A):
        gu_next_params_keep(A)
    waitsG = {0: [f"s_cmp_eq_u32 s{sPEND}, 0", "s_cbranch_scc1 K2_W8", "s_waitcnt vmcnt(29)", "s_branch K2_W9", "K2_W8:", "s_waitcnt vmcnt(20)", "K2_W9:"],
              1: ["s_waitcnt vmcnt(12)"], 2: ["s_waitcnt vmcnt(12)"], 3: ["s_waitcnt vmcnt(12)"],
              4: ["s_waitcnt vmcnt(12)"], 5: ["s_waitcnt vmcnt(0)"], 6: []}
    tailsG = {j: PG.wgroup(j + 3, sWOFFL, sT3) + PG.xgroup(j + 3, sJ, sT3) for j in range(4)}
    tailsG[5] = PG.wgroup(0, sNWOFF, sT3) + PG.xgroup(0, sNJ, sT3)
    tailsG[6] = PG.wgroup(1, sNWOFF, sT3) + PG.xgroup(1, sNJ, sT3)
    def hook4(A):
        gu_next_params(A)
        A(f"s_cmp_eq_u32 s{sNG}, 0")
        A(f"s_cselect_b32 s{S_X+2}, 0, {XN_SIZE}")
    PG.main(A, waitsG, tailsG, {1: pend_hook, 4: hook4})
    A(f"s_mul_i32 s{sT0}, s{sROW0}, {184*1024}")
    A(f"s_lshl_b32 s{sT1}, s{sC}, 12")
    A(f"s_add_u32 s{sT0}, s{sT0}, s{sT1}")
    A(f"s_add_u32 s{sT0}, s{sT0}, {128*1024}")
    n = 0
    for qt in range(2):
        for u in range(4):
            b = vF + (n % 2) * 24; n += 1
            for k in range(2):
                ft = 2 * u + k
                for r in range(4):
                    A(f"v_accvgpr_read_b32 v{b+4*k+r}, a{(ft*2+qt)*4+r}")
                    A(f"v_accvgpr_read_b32 v{b+8+4*k+r}, a{((ft+8)*2+qt)*4+r}")
            for e in range(8):
                A(f"v_mul_f32 v{b+e}, v{b+e}, v{b+8+e}")
            for e in range(4):
                A(f"v_cvt_pk_bf16_f32 v{b+16+e}, v{b+2*e}, v{b+2*e+1}")
            A(f"buffer_store_dwordx4 v[{b+16}:{b+19}], v{vL16}, s[{S_AF}:{S_AF+3}], s{sT0} offen offset:{u*1024}")
        A(f"s_add_u32 s{sT0}, s{sT0}, {184*1024}")
    A(f"s_cmp_eq_u32 s{sNG}, 0")
    A("s_cbranch_scc0 K2_GU")
    A("s_branch K2_FIN")
    A.label("K2_BLO")
    A(f"s_mov_b32 s{sT3}, s{sROW0}")
    A(f"s_mov_b32 s{sSTATE}, 2")
    A(f"s_sub_u32 s{sQB}, 15, s{sI_}")
    A(f"s_mov_b32 s{sF}, s{sA}")
    A(f"s_lshl_b32 s{sE}, s{sQB}, 2")
    A(f"s_add_u32 s{sE}, s{sE}, 4")
    A(f"s_mov_b32 s{sJ}, s{sROW0}")
    attn_params(A)
    for j in range(3): issue_group(A, kv_group("K", j))
    A("s_nop 7")
    xreduce(A, [vL, vL + 1], "v_add_f32", [vT[2], vT[3]])
    A(f"v_rcp_f32 v{vT[0]}, v{vL}")
    A(f"v_rcp_f32 v{vT[1]}, v{vL+1}")
    af_off(A)
    fin_norm_store(A, S_AF, 184 * 1024)
    row0(A, sROW0, sQB)
    flag_wait(A, 0)
    h_off(A, 0)
    for k in range(16):
        if k % 4 == 0 and k: A(f"s_add_u32 s{sT0}, s{sT0}, 4096")
        A(f"buffer_load_dwordx4 v[{vQ+4*k}:{vQ+4*k+3}], v{vL16}, s[{S_H}:{S_H+3}], s{sT0} offen offset:{(k%4)*1024} sc1")
    for g in (kv_group("V", 0), kv_group("V", 1), kv_group("K", 3), kv_group("V", 2)): issue_group(A, g)
    A(f"s_add_u32 s{sOFF}, s{sOFF}, {4*16384}")
    A(f"s_mov_b32 s{sHOOK}, -1")
    o_zero(A)
    A("s_waitcnt vmcnt(16)")
    A("s_branch K2_GO")
    A.label("K2_MERGE")
    A("s_nop 7")
    xreduce(A, [vL, vL + 1], "v_add_f32", [vT[2], vT[3]])
    flag_wait(A, 1)
    A(f"s_lshl_b32 s{sT0}, s{sPAIR}, 12")
    A(f"s_lshl_b32 s{sT1}, s{sW}, 10")
    A(f"s_add_u32 s{sT0}, s{sT0}, s{sT1}")
    A(f"s_add_u32 s{sT0}, s{sT0}, {OPS_OFF}")
    A(f"buffer_load_dwordx4 v[72:75], v{vL16}, s[{S_H}:{S_H+3}], s{sT0} offen sc1")
    h_off(A, OPB_OFF)
    for k in range(16):
        if k % 4 == 0 and k: A(f"s_add_u32 s{sT0}, s{sT0}, 4096")
        A(f"buffer_load_dwordx4 v[{vQ+4*k}:{vQ+4*k+3}], v{vL16}, s[{S_H}:{S_H+3}], s{sT0} offen offset:{(k%4)*1024} sc1")
    A("s_waitcnt vmcnt(16)")
    wA = [76, 77]; wBf = [78, 79]
    for qt in range(2):
        A(f"v_min_f32 v80, v{72+qt}, v{vNEGM+4*qt}")
        A(f"v_sub_f32 v81, v80, v{72+qt}")
        A(f"v_sub_f32 v82, v80, v{vNEGM+4*qt}")
        A(f"v_exp_f32 v81, v81")
        A(f"v_exp_f32 v82, v82")
        A("s_nop 0")
        A(f"v_mul_f32 v81, v81, v{74+qt}")
        A(f"v_fma_f32 v83, v82, v{vL+qt}, v81")
        A(f"v_rcp_f32 v83, v83")
        A("s_nop 0")
        A(f"v_mul_f32 v{wA[qt]}, v81, v83")
        A(f"v_mul_f32 v{wBf[qt]}, v82, v83")
    af_off(A)
    n = 0
    for qt in range(2):
        for u in range(8):
            b = 84 + (n % 2) * 20; n += 1
            pa = vQ + (qt * 8 + u) * 4
            for k in range(2):
                for r in range(4):
                    A(f"v_accvgpr_read_b32 v{b+4*k+r}, a{((2*u+k)*2+qt)*4+r}")
            for e in range(8):
                A(f"v_mul_f32 v{b+e}, v{b+e}, v{wBf[qt]}")
            A(f"s_waitcnt vmcnt({min(15 - (qt*8+u) + (qt*8+u), 63) if False else 15})") if False else None
            A(f"s_waitcnt vmcnt(15)")
            for e in range(4):
                A(f"v_lshlrev_b32 v{b+8+2*e}, 16, v{pa+e}")
                A(f"v_and_b32 v{b+9+2*e}, 0xffff0000, v{pa+e}")
            for e in range(8):
                A(f"v_fmac_f32 v{b+e}, v{b+8+e}, v{wA[qt]}")
            for e in range(4):
                A(f"v_cvt_pk_bf16_f32 v{b+16+e}, v{b+2*e}, v{b+2*e+1}")
            if u == 4: A(f"s_add_u32 s{sT0}, s{sT0}, 4096")
            A(f"buffer_store_dwordx4 v[{b+16}:{b+19}], v{vL16}, s[{S_AF}:{S_AF+3}], s{sT0} offen offset:{(u%4)*1024}")
        A(f"s_add_u32 s{sT0}, s{sT0}, {184*1024 - 4096}")
    A.label("K2_FIN")

def gen_k2(A):
    name = "k2_attn_kernel"
    kernel_header(A, name)
    A("s_cmp_ge_u32 s2, 256")
    A("s_cbranch_scc1 K2_END")
    stamp(A, 0); rstamp(A, 5)
    A(f"s_load_dwordx2 s[{sWS}:{sWS+1}], s[0:1], {KA['ws']}")
    A(f"s_load_dwordx2 s[54:55], s[0:1], {KA['wq']}")
    A(f"s_load_dwordx4 s[56:59], s[0:1], {KA['wg']}")
    A("v_lshrrev_b32 v1, 6, v0")
    A(f"v_and_b32 v{vLANE}, 63, v0")
    A(f"v_readfirstlane_b32 s{sW}, v1")
    k2_body(A)
    if G.STAMP: A("s_waitcnt vmcnt(0) lgkmcnt(0)")
    stamp(A, 4)
    stamp_flush(A, 6, sWS, sWS + 1, sW, kidx=1)
    A.label("K2_END")
    A("s_endpgm")
    return name, NVGPR, 128
```

```python
from gen_common import *
import gen_common as G
import os

MF = "v_mfma_f32_16x16x32_bf16"
vLANE, vL16 = 2, 3
vT = [4, 5, 6, 7, 8, 9]
vVOW = 10
vXO = 12
vWR = 13
vFR = 28
vAF = 60
NFR = 8; DPRE = 5
STG = 32768

(sW, sCB, sRB, sS, sT0, sT1, sT2, sKS, sNST, sST, sAOFF, sWM0, sTT, sKL, sLD, sCOL) = range(30, 46)
S_A, S_W, S_P, S_X, S_O, S_D = 4, 8, 12, 16, 20, 24
sWS = 28
P3_WG = 4 * 6 * 1024

def gen_k3(A, fused=False):
    name = "k3_out_kernel"
    kernel_header(A, name)
    A("s_cmp_ge_u32 s2, 256")
    A("s_cbranch_scc1 K3_END")
    stamp(A, 0); rstamp(A, 5)
    A(f"s_load_dwordx2 s[{sWS}:{sWS+1}], s[0:1], {KA['ws']}")
    A(f"s_load_dwordx2 s[46:47], s[0:1], {KA['wo']}")
    A(f"s_load_dwordx2 s[48:49], s[0:1], {KA['wd']}")
    A(f"s_load_dwordx2 s[50:51], s[0:1], {KA['x']}")
    A(f"s_load_dwordx4 s[52:55], s[0:1], {KA['out']}")
    A("v_lshrrev_b32 v1, 6, v0")
    A(f"v_and_b32 v{vLANE}, 63, v0")
    A(f"v_readfirstlane_b32 s{sW}, v1")
    A(f"v_lshlrev_b32 v{vL16}, 4, v{vLANE}")
    A("s_and_b32 s3, s2, 7")
    A(f"s_lshr_b32 s{sT0}, s2, 3")
    A(f"s_and_b32 s{sCB}, s{sT0}, 3")
    A(f"s_lshr_b32 s{sRB}, s{sT0}, 2")
    A(f"s_lshr_b32 s{sT1}, s3, 2")
    A(f"s_lshl_b32 s{sT1}, s{sT1}, 3")
    A(f"s_add_u32 s{sRB}, s{sRB}, s{sT1}")
    A(f"s_and_b32 s{sS}, s3, 3")
    A(f"s_lshl_b32 s{sTT}, s{sRB}, 2")
    A(f"s_add_u32 s{sTT}, s{sTT}, s{sCB}")
    A(f"s_mul_i32 s{sKS}, s{sS}, 48")
    A(f"s_cmp_eq_u32 s{sS}, 3")
    A(f"s_cselect_b32 s{sKS}, 140, s{sKS}")
    A(f"s_cmp_ge_u32 s{sS}, 2")
    A(f"s_cselect_b32 s{sNST}, 11, 12")
    A(f"s_mul_i32 s{sCOL}, s{sCB}, 224")
    A(f"s_and_b32 s{sCOL}, s{sCOL}, 0xffffffc0")
    A("s_waitcnt lgkmcnt(0)")
    srd(A, S_A, sWS, sWS + 1, AF_SIZE, AF_OFF)
    srd(A, S_W, 46, 47, 4096 * 896)
    srd(A, S_P, sWS, sWS + 1, 64 * 4 * 3 * 4 * 2048, P3_OFF)
    srd(A, S_X, 50, 51, 2048 * 896)
    srd(A, S_O, 52, 53, 2048 * 896)
    srd(A, S_D, sWS, sWS + 1, 65536, FL_OFF + 65536)
    A(f"v_lshrrev_b32 v{vT[0]}, 4, v{vLANE}")
    A(f"v_and_b32 v{vT[1]}, 15, v{vLANE}")
    for par in range(2):
        A(f"v_add_u32 v{vT[2]}, {4*par}, v{vT[0]}")
        A(f"v_lshlrev_b32 v{vT[2]}, 1, v{vT[2]}")
        A(f"v_xor_b32 v{vT[2]}, v{vT[2]}, v{vT[1]}")
        A(f"v_lshlrev_b32 v{vT[2]}, 4, v{vT[2]}")
        A(f"v_mul_u32_u24 v{vT[3]}, 896, v{vT[0]}")
        A(f"v_add_u32 v{vVOW+par}, v{vT[2]}, v{vT[3]}")
    VQ = 188
    for q in range(8):
        A(f"v_add_u32 v{VQ+q}, {q*3584 - (q&3)*1024}, v{vVOW+(q&1)}")
    A(f"v_lshrrev_b32 v{vT[0]}, 4, v{vLANE}")
    A(f"v_bfe_u32 v{vT[1]}, v{vLANE}, 2, 2")
    A(f"v_lshl_add_u32 v{vT[2]}, v{vT[0]}, 2, v{vT[1]}")
    A(f"v_and_b32 v{vT[3]}, 7, v{vT[2]}")
    A(f"v_lshlrev_b32 v{vT[3]}, 1, v{vT[3]}")
    A(f"v_lshlrev_b32 v{vT[2]}, 8, v{vT[2]}")
    A(f"v_and_b32 v{vT[4]}, 1, v{vLANE}")
    A(f"v_lshl_add_u32 v{vT[2]}, v{vT[4]}, 3, v{vT[2]}")
    A(f"v_bfe_u32 v{vT[4]}, v{vLANE}, 1, 1")
    A(f"s_and_b32 s{sT0}, s{sCB}, 1")
    A(f"s_lshl_b32 s{sT0}, s{sT0}, 1")
    A(f"v_add_u32 v{vT[4]}, s{sT0}, v{vT[4]}")
    for ct in range(7):
        A(f"v_add_u32 v{vT[5]}, {2*ct}, v{vT[4]}")
        A(f"v_xor_b32 v{vT[5]}, v{vT[5]}, v{vT[3]}")
        A(f"v_lshl_add_u32 v{vWR+ct}, v{vT[5]}, 4, v{vT[2]}")
        A(f"v_add_u32 v{vWR+7+ct}, 65536, v{vWR+ct}")
    A(f"s_lshl_b32 s{sAOFF}, s{sRB}, 3")
    A(f"s_lshl_b32 s{sT0}, s{sW}, 1")
    A(f"s_add_u32 s{sAOFF}, s{sAOFF}, s{sT0}")
    A(f"s_mul_i32 s{sAOFF}, s{sAOFF}, {184*1024}")
    A(f"s_lshl_b32 s{sT0}, s{sKS}, 10")
    A(f"s_add_u32 s{sAOFF}, s{sAOFF}, s{sT0}")
    A(f"s_lshl_b32 s{sWM0}, s{sW}, 13")
    A(f"s_mov_b32 s{sLD}, 0")
    A("s_and_b32 s57, s47, 0xffff")
    A("s_and_b32 s56, s49, 0xffff")
    A(f"s_mov_b32 s58, {4096*896}")

    def loads(slot):
        o = []
        o.append([f"s_cmp_ge_u32 s{sLD}, s{sNST}",
                  f"s_cselect_b32 s{S_A+2}, 0, {0 if os.environ.get('K3NOA') else AF_SIZE}",
                  f"s_cselect_b32 s{sKL}, 1, 0"])
        o.append([f"s_cmp_ge_u32 s{sKS}, 128",
                  f"s_cselect_b32 s{S_W}, s48, s46",
                  f"s_cselect_b32 s{S_W+1}, s56, s57"])
        o.append([f"s_cselect_b32 s{S_W+2}, {1792*896}, s58",
                  f"s_cselect_b32 s{sT1}, 128, 0",
                  f"s_sub_u32 s{sT0}, s{sKS}, s{sT1}"])
        o.append([f"s_add_u32 s{sT0}, s{sT0}, s{sW}",
                  f"s_mul_i32 s{sT0}, s{sT0}, {32*896}",
                  f"s_add_u32 s{sT0}, s{sT0}, s{sCOL}"])
        o.append([f"s_cmp_eq_u32 s{sKL}, 1" if not os.environ.get('K3NOW') else f"s_cmp_eq_u32 s{sKL}, s{sKL}",
                  f"s_cselect_b32 s{S_W+2}, 0, s{S_W+2}",
                  f"s_add_u32 m0, s{sWM0}, {slot*STG}"])
        d = []
        for q in range(8):
            if q == 4: d.append(f"s_add_u32 m0, s{sWM0}, {slot*STG + 4096}")
            d.append(f"buffer_load_dwordx4 v{VQ+q}, s[{S_W}:{S_W+3}], s{sT0} offen offset:{(q%4)*1024} lds")
        al = [f"s_add_u32 s{sT2}, s{sAOFF}, {184*1024}"]
        for kk in range(4):
            for rt in range(2):
                r = vAF + ((slot * 4 + kk) * 2 + rt) * 4
                al.append(f"buffer_load_dwordx4 v[{r}:{r+3}], v{vL16}, s[{S_A}:{S_A+3}], s{sAOFF if rt == 0 else sT2} offen offset:{kk*1024}")
        adv = [f"s_add_u32 s{sAOFF}, s{sAOFF}, 4096", f"s_add_u32 s{sKS}, s{sKS}, 4", f"s_add_u32 s{sLD}, s{sLD}, 1"]
        return o, d, al, adv
    for slot in range(3):
        o, d, al, adv = loads(slot)
        for grp in o:
            for x in grp: A(x)
        A("s_nop 0")
        for x in d:
            A(x)
            if x.startswith("s_add_u32 m0"): A("s_nop 0")
        for x in al: A(x)
        for x in adv: A(x)
    for i in range(56):
        A(f"v_accvgpr_write_b32 a{i}, 0")
    A(f"s_mov_b32 s{sST}, 0")
    stamp(A, 1)

    def rd(n, slot, ringbase):
        kk, ct = n // 7, n % 7
        r = vFR + 4 * ((ringbase + n) % NFR)
        off = (slot % 2) * 32768 + kk * 8192
        a = vWR + ct + (7 if slot >= 2 else 0)
        return [f"ds_read_b64_tr_b16 v[{r}:{r+1}], v{a} offset:{off}",
                f"ds_read_b64_tr_b16 v[{r+2}:{r+3}], v{a} offset:{off + 4096}"]
    A("s_waitcnt vmcnt(32)")
    A("s_barrier")
    for n in range(DPRE):
        for x in rd(n, 0, 0): A(x)
    A(".p2align 6")
    A.label("K3_LOOP")
    for slot in range(4):
        mf = []
        for n in range(28):
            kk, ct = n // 7, n % 7
            r = vFR + 4 * ((slot * 28 + n) % NFR)
            for rt in range(2):
                acc = (rt * 7 + ct) * 4
                b = vAF + ((slot * 4 + kk) * 2 + rt) * 4
                mf.append(f"{MF} {ar(acc,4)}, {vr(r,4)}, {vr(b,4)}, {ar(acc,4)}")
        sc = Sched(mf, f"k3s{slot}")
        sc.S(-1, f"s_waitcnt vmcnt(16) lgkmcnt({2*(DPRE-1)})")
        sc.S(-1, "s_barrier")
        for n in range(28):
            sc.S(2 * n, f"s_waitcnt lgkmcnt({2*(DPRE-2)})")
            m = n + DPRE
            x = rd(m, slot, slot * 28) if m < 28 else rd(m - 28, (slot + 1) % 4, slot * 28 + 28)
            sc.V(2 * n, x[0]); sc.V(2 * n, x[1])
        o, d, al, adv = loads((slot + 3) % 4)
        for k, grp in enumerate(o): sc.s[2 * k + 1] += grp
        vm = d + al
        k = 0
        for x in vm:
            g = 11 + 2 * int(k * 22 / 15)
            if x.startswith("s_"):
                sc.s[g - 1].append(x)
            else:
                sc.v[g].append(x); k += 1
        free = [g for g in range(11, 56, 2) if not sc.v[g]]
        sc.s[free[0]].append(f"s_add_u32 s{sST}, s{sST}, 1")
        sc.s[free[1]].append(adv[1]); sc.s[free[1]].append(adv[2])
        post = [adv[0], f"s_cmp_ge_u32 s{sST}, s{sNST}"]
        sc.emit(A)
        for x in post: A(x)
        A("s_cbranch_scc1 K3_EPI" if slot < 3 else "s_cbranch_scc0 K3_LOOP")
    A.label("K3_EPI")
    A("s_waitcnt vmcnt(0) lgkmcnt(0)")
    stamp(A, 2)
    A("s_nop 7")
    B = 60
    for t in range(14):
        for r in range(4):
            A(f"v_accvgpr_read_b32 v{B+64+r}, a{t*4+r}") if False else None
    for t in range(16):
        if t < 14:
            for r in range(4):
                A(f"v_accvgpr_read_b32 v{vFR+4*(t%4)+r}, a{t*4+r}")
            A(f"v_cvt_pk_bf16_f32 v{B+PK(t)}, v{vFR+4*(t%4)}, v{vFR+4*(t%4)+1}")
            A(f"v_cvt_pk_bf16_f32 v{B+PK(t)+1}, v{vFR+4*(t%4)+2}, v{vFR+4*(t%4)+3}")
        else:
            A(f"v_mov_b32 v{B+PK(t)}, 0")
            A(f"v_mov_b32 v{B+PK(t)+1}, 0")
    for d in range(4):
        lab = f"K3_SK{d}"
        A(f"s_cmp_eq_u32 s{sS}, {d}")
        A(f"s_cbranch_scc1 {lab}")
        A(f"s_sub_u32 s{sT0}, s{sS}, {d+1}")
        A(f"s_and_b32 s{sT0}, s{sT0}, 3")
        A(f"s_lshl_b32 s{sT1}, s{sTT}, 2")
        A(f"s_add_u32 s{sT1}, s{sT1}, {d}")
        A(f"s_mul_i32 s{sT1}, s{sT1}, 3")
        A(f"s_add_u32 s{sT1}, s{sT1}, s{sT0}")
        A(f"s_lshl_b32 s{sT1}, s{sT1}, 2")
        A(f"s_add_u32 s{sT1}, s{sT1}, s{sW}")
        A(f"s_lshl_b32 s{sT1}, s{sT1}, 11")
        A(f"buffer_store_dwordx4 v[{B+8*d}:{B+8*d+3}], v{vL16}, s[{S_P}:{S_P+3}], s{sT1} offen sc1")
        A(f"buffer_store_dwordx4 v[{B+8*d+4}:{B+8*d+7}], v{vL16}, s[{S_P}:{S_P+3}], s{sT1} offen offset:1024 sc1")
        A.label(lab)
    A(f"v_and_b32 v{vT[0]}, 15, v{vLANE}")
    A(f"s_lshl_b32 s{sT0}, s{sRB}, 7")
    A(f"s_lshl_b32 s{sT1}, s{sW}, 5")
    A(f"s_add_u32 s{sT0}, s{sT0}, s{sT1}")
    A(f"v_add_u32 v{vT[0]}, s{sT0}, v{vT[0]}")
    A(f"v_mul_u32_u24 v{vXO}, 896, v{vT[0]}")
    A(f"v_lshrrev_b32 v{vT[2]}, 4, v{vLANE}")
    A(f"v_lshl_add_u32 v{vXO}, v{vT[2]}, 3, v{vXO}")
    A(f"s_mul_i32 s{sT1}, s{sCB}, 224")
    A(f"v_add_u32 v{vXO}, s{sT1}, v{vXO}")
    for k in range(4):
        A(f"s_add_u32 s{62+k}, s{sS}, {4*k}")
        A(f"s_cmp_ge_u32 s{62+k}, 7")
        A(f"s_cselect_b32 s{sT0}, {16*896 - 7*32}, 0")
        A(f"s_lshl_b32 s{66+k}, s{62+k}, 5")
        A(f"s_add_u32 s{66+k}, s{66+k}, s{sT0}")
    XB = 100
    for k in range(4):
        A(f"buffer_load_dwordx2 v[{XB+2*k}:{XB+2*k+1}], v{vXO}, s[{S_X}:{S_X+3}], s{66+k} offen")
    OW = 108
    for sv in range(4):
        A(f"s_cmp_eq_u32 s{sS}, {sv}")
        A(f"s_cbranch_scc0 K3_OW{sv}")
        for k in range(4):
            t = sv + 4 * k
            for r in range(4):
                if t < 14: A(f"v_accvgpr_read_b32 v{OW+4*k+r}, a{t*4+r}")
                else: A(f"v_mov_b32 v{OW+4*k+r}, 0")
        A.label(f"K3_OW{sv}")
    A("s_waitcnt vmcnt(0)")
    A("s_barrier")
    A(f"s_cmp_eq_u32 s{sW}, 0")
    A("s_cbranch_scc0 K3_GO")
    A(f"s_lshl_b32 s{sT0}, s{sTT}, 8")
    A(f"v_mov_b32 v{vT[1]}, s{sT0}")
    A(f"v_mov_b32 v{vT[0]}, 1")
    A(f"v_cmp_eq_u32 vcc, 0, v{vLANE}")
    A("s_and_saveexec_b64 s[60:61], vcc")
    A(f"buffer_atomic_add v{vT[0]}, v{vT[1]}, s[{S_D}:{S_D+3}], 0 offen sc0")
    A("s_waitcnt vmcnt(0)")
    A(f"v_readfirstlane_b32 s{sT0}, v{vT[0]}")
    A("s_mov_b64 exec, s[60:61]")
    A(f"s_cmp_ge_u32 s{sT0}, 3")
    A("s_cbranch_scc1 K3_GO")
    A(f"s_mov_b32 s{sT2}, 0x40000")
    A.label("K3_POLL")
    A(f"buffer_load_dword v{vT[0]}, v{vT[1]}, s[{S_D}:{S_D+3}], 0 offen sc1")
    A("s_waitcnt vmcnt(0)")
    A(f"v_readfirstlane_b32 s{sT0}, v{vT[0]}")
    A(f"s_cmp_ge_u32 s{sT0}, 4")
    A("s_cbranch_scc1 K3_GO")
    A(f"s_sub_u32 s{sT2}, s{sT2}, 1")
    A(f"s_cmp_eq_u32 s{sT2}, 0")
    A("s_cbranch_scc1 K3_GO")
    A("s_sleep 1")
    A("s_branch K3_POLL")
    A.label("K3_GO")
    A("s_barrier")
    A(f"s_lshl_b32 s{sT0}, s{sTT}, 2")
    A(f"s_add_u32 s{sT0}, s{sT0}, s{sS}")
    A(f"s_mul_i32 s{sT0}, s{sT0}, 12")
    A(f"s_add_u32 s{sT0}, s{sT0}, s{sW}")
    A(f"s_lshl_b32 s{sT0}, s{sT0}, 11")
    R = 130
    for idx in range(3):
        for h in range(2):
            r = R + (idx * 2 + h) * 4
            A(f"buffer_load_dwordx4 v[{r}:{r+3}], v{vL16}, s[{S_P}:{S_P+3}], s{sT0} offen offset:{h*1024} sc1")
        if idx < 2: A(f"s_add_u32 s{sT0}, s{sT0}, {4*2048}")
    A("s_waitcnt vmcnt(0)")
    for k in range(4):
        if k == 3:
            A(f"s_cmp_ge_u32 s{62+3}, 14")
            A("s_cbranch_scc1 K3_FIN")
        o = OW + 4 * k
        tmp = 160 + 8 * (k % 2)
        for idx in range(3):
            src = R + (idx * 2 + k // 2) * 4 + (k % 2) * 2
            A(f"v_lshlrev_b32 v{tmp}, 16, v{src}")
            A(f"v_and_b32 v{tmp+1}, 0xffff0000, v{src}")
            A(f"v_lshlrev_b32 v{tmp+2}, 16, v{src+1}")
            A(f"v_and_b32 v{tmp+3}, 0xffff0000, v{src+1}")
            for e in range(4):
                A(f"v_add_f32 v{o+e}, v{o+e}, v{tmp+e}")
        x0, x1 = XB + 2 * k, XB + 2 * k + 1
        A(f"v_lshlrev_b32 v{tmp}, 16, v{x0}")
        A(f"v_and_b32 v{tmp+1}, 0xffff0000, v{x0}")
        A(f"v_lshlrev_b32 v{tmp+2}, 16, v{x1}")
        A(f"v_and_b32 v{tmp+3}, 0xffff0000, v{x1}")
        for e in range(4):
            A(f"v_add_f32 v{o+e}, v{o+e}, v{tmp+e}")
        A(f"v_cvt_pk_bf16_f32 v{tmp+4}, v{o}, v{o+1}")
        A(f"v_cvt_pk_bf16_f32 v{tmp+5}, v{o+2}, v{o+3}")
        A(f"buffer_store_dwordx2 v[{tmp+4}:{tmp+5}], v{vXO}, s[{S_O}:{S_O+3}], s{66+k} offen")
    A.label("K3_FIN")
    stamp(A, 3)
    if G.STAMP: A("s_waitcnt vmcnt(0) lgkmcnt(0)")
    stamp(A, 4)
    stamp_flush(A, 6, sWS, sWS + 1, sW, kidx=2)
    A.label("K3_END")
    A("s_endpgm")
    return name, 196, 56

def PK(t):
    return 8 * (t & 3) + 2 * (t >> 2)
```

```python
import re, sys

RANGE = re.compile(r"^([vas])\[(\d+):(\d+)\]$")
SINGLE = re.compile(r"^([vas])(\d+)$")

def regs(tok):
    t = tok.strip()
    t = re.sub(r"^(neg|abs)\((.*)\)$", r"\2", t)
    t = t.lstrip("-").strip("|")
    m = RANGE.match(t)
    if m:
        return [(m.group(1), i) for i in range(int(m.group(2)), int(m.group(3)) + 1)]
    m = SINGLE.match(t)
    if m:
        return [(m.group(1), int(m.group(2)))]
    if t == "vcc": return [("s", 106), ("s", 107)]
    if t == "vcc_lo": return [("s", 106)]
    if t == "vcc_hi": return [("s", 107)]
    if t == "exec": return [("s", 126), ("s", 127)]
    if t == "m0": return [("s", 124)]
    return []

TRANS = ("v_exp_f32", "v_log_f32", "v_rcp_f32", "v_rsq_f32", "v_sqrt_f32", "v_sin_f32", "v_cos_f32")

class I:
    __slots__ = ("text", "op", "ops", "mods", "rd", "wr", "kind", "line", "passes", "srcC", "srcAB", "data", "dpp", "nstates", "lds_dma")
    def __init__(self, text, line):
        self.text = text; self.line = line
        parts = text.split(None, 1)
        self.op = parts[0]
        rest = parts[1] if len(parts) > 1 else ""
        toks = []; depth = 0; cur = ""
        for ch in rest:
            if ch == "[": depth += 1
            if ch == "]": depth -= 1
            if ch == "," and depth == 0:
                toks.append(cur.strip()); cur = ""
            else:
                cur += ch
        if cur.strip(): toks.append(cur.strip())
        mods = ""
        if toks:
            last = toks[-1].split(None, 1)
            toks[-1] = last[0]
            if len(last) > 1: mods = last[1]
        self.ops = toks; self.mods = mods
        self.rd = []; self.wr = []; self.passes = 0; self.srcC = []; self.srcAB = []; self.data = []
        self.dpp = ("quad_perm" in mods or "row_" in mods or "wave_" in mods)
        self.nstates = 1; self.lds_dma = False
        op = self.op
        R = lambda i: regs(toks[i]) if i < len(toks) else []
        allr = lambda a: sum((regs(t) for t in toks[a:]), [])
        if op.startswith("v_mfma"):
            self.kind = "mfma"
            self.passes = 8 if "32x32x16" in op else 4
            self.wr = R(0); self.srcAB = R(1) + R(2); self.srcC = R(3); self.rd = self.srcAB + self.srcC
        elif op.startswith("v_cmp"):
            self.kind = "valu"; self.wr = R(0); self.rd = allr(1)
            if op.startswith("v_cmpx"): self.wr += regs("exec")
        elif op in ("v_readfirstlane_b32", "v_readlane_b32"):
            self.kind = "valu"; self.wr = R(0); self.rd = allr(1)
        elif op.startswith("v_permlane") and "swap" in op:
            self.kind = "valu"; self.wr = R(0) + R(1); self.rd = R(0) + R(1)
        elif op.startswith("v_"):
            self.kind = "valu"; self.wr = R(0)
            s = 1
            if op.startswith(("v_add_co", "v_sub_co", "v_addc_co", "v_subb_co")):
                self.wr += R(1); s = 2
            self.rd = allr(s)
            if op.startswith(("v_fmac", "v_dot2c", "v_pk_fmac", "v_writelane")): self.rd += R(0)
            if op == "v_cndmask_b32" and len(toks) == 3: self.rd += regs("vcc")
            if op == "v_nop": self.wr = []; self.rd = []
        elif op.startswith("ds_read") or op.startswith("ds_bpermute") or op.startswith("ds_swizzle") or op.startswith("ds_permute"):
            self.kind = "lds"; self.wr = R(0); self.rd = allr(1)
        elif op.startswith("ds_write"):
            self.kind = "lds"; self.rd = allr(0); self.data = allr(1)
        elif op.startswith(("buffer_load", "global_load")):
            self.kind = "vmem"
            if "lds" in mods.split() or "_lds_" in op:
                self.lds_dma = True; self.rd = allr(0) + regs("m0")
            else:
                self.wr = R(0); self.rd = allr(1)
        elif op.startswith(("buffer_store", "global_store")):
            self.kind = "vmem"; self.rd = allr(0)
            self.data = R(0) if op.startswith("buffer") else R(1)
        elif op.startswith(("buffer_atomic", "global_atomic")):
            self.kind = "vmem"; self.rd = allr(0)
            if "sc0" in mods.split(): self.wr = R(0)
        elif op.startswith(("buffer_inv", "buffer_wbl2")):
            self.kind = "vmem"
        elif op.startswith("s_load") or op.startswith("s_memtime") or op.startswith("s_memrealtime"):
            self.kind = "smem"; self.wr = R(0); self.rd = allr(1)
        elif op == "s_nop":
            self.kind = "nop"; self.nstates = int(toks[0], 0) + 1
        elif op == "s_waitcnt":
            self.kind = "wait"
        elif op.startswith(("s_cbranch", "s_branch", "s_endpgm", "s_barrier", "s_setprio", "s_sleep")):
            self.kind = "ctl"
        elif op == "s_getpc_b64":
            self.kind = "salu"; self.wr = R(0)
        elif op.startswith("s_cmp") or op.startswith("s_bitcmp"):
            self.kind = "salu"; self.rd = allr(0)
        elif op.startswith("s_"):
            self.kind = "salu"; self.wr = R(0); self.rd = allr(1)
            if "saveexec" in op: self.wr += regs("exec"); self.rd += regs("exec")
        else:
            raise ValueError("unknown op: " + text)
    def vw(self): return [r for r in self.wr if r[0] in "va"]
    def sw(self): return [r for r in self.wr if r[0] == "s"]

def parse(text):
    out = {}; cur = None
    for n, raw in enumerate(text.splitlines(), 1):
        l = raw.split(";")[0].split("//")[0].strip()
        if not l: continue
        m = re.match(r"^([A-Za-z_.$][\w.$]*):$", l)
        if m:
            name = m.group(1)
            if name.endswith("_kernel"):
                cur = ([], {}); out[name] = cur
            elif cur is not None:
                cur[1][name] = len(cur[0])
            continue
        if l.startswith("."):
            if l.startswith(".section"): cur = None
            continue
        if cur is None: continue
        cur[0].append(I(l, n))
    return out

def ov(a, b):
    return bool(set(a) & set(b))

def hazards(seq, errs, tag):
    MAXW = 20
    for j, c in enumerate(seq):
        dist = 0
        for i in range(j - 1, max(-1, j - 1 - MAXW), -1):
            p = seq[i]
            if dist >= 20: break
            need = 0; why = ""
            def req(n, w):
                nonlocal need, why
                if n > need: need, why = n, w
            if p.kind == "valu":
                pv = p.vw(); ps = p.sw()
                if c.kind == "mfma" and ov(pv, c.rd): req(2, "VALU->MFMA src")
                if c.kind == "mfma" and ov(ps, regs("exec")): req(4, "VALU exec->MFMA")
                if p.op in TRANS and c.kind == "valu" and c.op not in TRANS and ov(pv, c.rd): req(1, "trans->valu")
                if p.op in TRANS and c.kind == "valu" and c.op in TRANS and ov(pv, c.rd): req(1, "trans->trans (conservative)")
                if c.kind == "valu" and ov(ps, c.rd) and c.op not in ("v_readlane_b32",): req(2, "VALU sgpr->VALU const")
                if c.kind == "valu" and c.op in ("v_readlane_b32", "v_writelane_b32") and len(c.ops) > 2 and ov(ps, regs(c.ops[2])): req(4, "VALU sgpr->lane select")
                if c.kind == "vmem" and ov(ps, c.rd): req(5, "VALU sgpr->VMEM")
                if c.op in ("v_readfirstlane_b32", "v_readlane_b32") and ov(pv, c.rd): req(1, "VALU->readlane")
                if c.dpp and ov(pv, c.rd): req(2, "VALU->DPP")
                if c.dpp and ov(ps, regs("exec")): req(5, "exec->DPP")
                if c.op.startswith("v_permlane") and ov(pv, c.rd): req(2, "VALU->permlane")
                if p.op.startswith("v_dot2") and c.kind in ("valu", "mfma") and ov(pv, c.rd + c.wr):
                    if not (c.op == p.op and len(c.ops) > 3 and ov(pv, regs(c.ops[3])) and not ov(pv, regs(c.ops[1]) + regs(c.ops[2]))): req(3, "dot2->other")
                if ("sdwa" in p.op or "op_sel" in p.mods) and c.kind == "valu" and ov(pv, c.rd + c.wr) and "dst_sel:DWORD" not in p.mods: req(1, "sdwa/opsel->valu")
            if p.kind == "mfma":
                d = p.wr
                if c.kind == "mfma":
                    if ov(d, c.srcC) and not (c.srcC == d and c.passes == p.passes): req(p.passes + 2, "MFMA D->srcC overlap")
                    if ov(d, c.srcAB): req(p.passes + 4, "MFMA D->srcAB")
                    if ov(d, c.wr) and not (c.wr == d and c.srcC == d): req(p.passes + 2, "MFMA D->MFMA D (WAW, conservative)")
                elif c.kind in ("valu", "vmem", "lds") and (ov(d, c.rd) or ov(d, c.wr)): req(p.passes + 4, "MFMA D->VALU/mem")
                if c.kind == "valu" and ov(p.srcC, c.vw()): req(p.passes - 1, "MFMA srcC WAR")
                if c.kind in ("lds", "vmem") and ov(p.srcC, c.vw()): req(p.passes - 1, "MFMA srcC WAR (load, conservative)")
            if p.kind == "salu" and ov(p.wr, regs("m0")) and c.lds_dma: req(1, "M0->LDS DMA")
            if p.kind in ("vmem",) and p.data and len(p.data) >= 3:
                if c.kind == "valu" and ov(p.data, c.vw()): req(2, "wide store WAR")
                elif ov(p.data, c.vw()): req(1, "wide store WAR")
            if p.kind == "lds" and p.data and len(p.data) >= 3 and ov(p.data, c.vw()):
                req(2, "wide ds_write WAR (conservative)")
            if need > dist:
                errs.add((c.line, f"{tag}: {why}: need {need} have {dist}: L{p.line} '{p.text}' -> L{c.line} '{c.text}'"))
            dist += p.nstates

def waits_cfg(ins, labels, errs, tag, cap=4):
    seen = {}
    stack = [(0, (), ())]
    steps = 0
    while stack:
        pc, lg, vm = stack.pop()
        lg = list(lg); vm = list(vm)
        while pc < len(ins):
            steps += 1
            if steps > 6_000_000:
                errs.add((0, tag + ": walk too long")); return
            c = ins[pc]
            if pc in LABELPC:
                sig = (tuple(x.line for x in lg), tuple(x.line for x in vm if x.wr))
                st = seen.setdefault(pc, [])
                if sig in st or len(st) >= cap: break
                st.append(sig)
            if c.kind == "wait":
                m = re.search(r"lgkmcnt\((\d+)\)", c.text)
                if m:
                    n = int(m.group(1))
                    while len(lg) > n: lg.pop(0)
                m = re.search(r"vmcnt\((\d+)\)", c.text)
                if m:
                    n = int(m.group(1))
                    while len(vm) > n: vm.pop(0)
                pc += 1; continue
            touched = set(c.rd) | set(c.wr)
            for q, nm in ((lg, "lgkm"), (vm, "vm")):
                for x in q:
                    if x.wr and touched & set(x.wr):
                        if nm == "lgkm" and x.kind == "lds" and c.kind == "lds" and not (set(c.rd) & set(x.wr)): continue
                        if nm == "vm" and c.kind == "vmem" and not (set(c.rd) & set(x.wr)): continue
                        errs.add((c.line, f"{tag}: pending {nm} result: L{x.line} '{x.text}' used by L{c.line} '{c.text}'"))
            if c.kind in ("lds", "smem"):
                lg.append(c)
                if c.kind == "smem" and len(c.wr) >= 2: lg.append(c)
            if c.kind == "vmem":
                vm.append(c)
                if len(vm) > 63: vm.pop(0)
            if c.op == "s_endpgm": break
            if c.op.startswith(("s_cbranch", "s_branch")):
                tgt = labels.get(c.ops[0])
                if tgt is None: break
                if c.op == "s_branch":
                    pc = tgt; continue
                stack.append((tgt, tuple(lg), tuple(vm)))
            pc += 1

def ptrcheck(ins, labels, errs, tag):
    n = len(ins)
    succ = [[] for _ in range(n)]
    for i, c in enumerate(ins):
        if c.op == "s_endpgm": continue
        if c.op.startswith(("s_cbranch", "s_branch")):
            t = labels.get(c.ops[0])
            if t is not None and t < n: succ[i].append(t)
            if c.op == "s_branch": continue
        if i + 1 < n: succ[i].append(i + 1)
    ALL = None
    state = [ALL] * n
    state[0] = frozenset()
    work = [0]
    def transfer(c, st):
        st = set(st)
        w = [r[1] for r in c.wr if r[0] == "s"]
        if c.op.startswith("s_load"):
            off = int(c.ops[2], 0) if len(c.ops) > 2 else 0
            for k, r in enumerate(w):
                st = {x for x in st if x[0] != r}
                st.add((r, "lo" if k % 2 == 0 else "hi"))
            return frozenset(st)
        if not w: return frozenset(st)
        srcs = [r[1] for r in c.rd if r[0] == "s"]
        kinds = {k for (r, k) in st if r in srcs}
        for r in w: st = {x for x in st if x[0] != r}
        if c.op in ("s_mov_b32", "s_add_u32", "s_addc_u32", "s_and_b32", "s_cselect_b32") and len(w) == 1:
            if c.op == "s_cselect_b32":
                ks = [{k for (r, k) in set(STATE_IN) if r == x} for x in srcs]
                if len(srcs) == 2 and ks[0] and ks[0] == ks[1]: st.add((w[0], next(iter(ks[0]))))
            elif len(kinds) == 1:
                k = next(iter(kinds))
                if (c.op == "s_add_u32" and k == "lo") or (c.op in ("s_addc_u32", "s_and_b32") and k == "hi") or c.op == "s_mov_b32":
                    st.add((w[0], k))
        return frozenset(st)
    global STATE_IN
    it = 0
    while work:
        i = work.pop(); it += 1
        if it > 3_000_000: errs.add((0, tag + " ptrcheck too long")); return
        STATE_IN = state[i]
        out = transfer(ins[i], state[i])
        for j in succ[i]:
            new = out if state[j] is ALL else (state[j] & out)
            if state[j] is ALL or new != state[j]:
                state[j] = new; work.append(j)
    for i, c in enumerate(ins):
        if state[i] is ALL: continue
        if c.kind == "vmem" and c.op.startswith("buffer_") and not c.op.startswith(("buffer_inv", "buffer_wbl2")):
            srd = [t for t in c.ops if re.match(r"^s\[\d+:\d+\]$", t)]
            if not srd: continue
            b = int(srd[0][2:].split(":")[0])
            if (b, "lo") not in state[i] or (b + 1, "hi") not in state[i]:
                errs.add((c.line, f"{tag}: SRD s[{b}:{b+3}] base not derived from a kernarg pointer on every path: L{c.line} '{c.text}'"))

def check(text, verbose=True):
    errs = set()
    ks = parse(text)
    W = 24
    for name, (ins, labels) in ks.items():
        hazards(ins, errs, name)
        for idx, c in enumerate(ins):
            if c.op.startswith(("s_cbranch", "s_branch")):
                tgt = labels.get(c.ops[0])
                if tgt is None:
                    errs.add((c.line, "unknown label " + c.ops[0])); continue
                hazards(ins[max(0, idx - W): idx + 1] + ins[tgt: tgt + W], errs, name + " branch")
        global LABELPC
        LABELPC = set(labels.values())
        waits_cfg(ins, labels, errs, name)
        ptrcheck(ins, labels, errs, name)
    for e in sorted(errs)[:60]:
        print("HAZARD", e[1])
    return len(errs)

if __name__ == "__main__":
    n = check(open(sys.argv[1]).read())
    print("problems:", n)
```

```python
import struct

def f32(x):
    return "0x%08x" % struct.unpack("<I", struct.pack("<f", x))[0]

class Asm:
    def __init__(self):
        self.L = []
    def __call__(self, s):
        for l in s.split("\n"):
            l = l.strip()
            if l:
                self.L.append(l)
    def label(self, n):
        self.L.append(n + ":")
    def text(self):
        return "\n".join(self.L) + "\n"

def vr(a, n=1):
    return f"v{a}" if n == 1 else f"v[{a}:{a+n-1}]"
def ar(a, n=1):
    return f"a{a}" if n == 1 else f"a[{a}:{a+n-1}]"
def sr(a, n=1):
    return f"s{a}" if n == 1 else f"s[{a}:{a+n-1}]"

KA = dict(x=0, ckv=8, wq=16, wuk=24, wuv=32, wo=40, bx=48, wg=56, wu=64, wd=72, out=80, dbg=88, ws=96)

XN_OFF = 0x0000000; XN_SIZE = 128 * 14 * 1024
KF_OFF = 0x0200000; KF_SIZE = 16 * 64 * 16 * 1024
VF_OFF = 0x1200000
AF_OFF = 0x2200000; AF_STEPS = 368; AF_SIZE = 64 * AF_STEPS * 1024
QH_OFF = 0x3A00000
OP_OFF = 0x4200000
ST_OFF = 0x5200000
P3_OFF = 0x5400000
FL_OFF = 0x6000000; FL_SIZE = 0x20000
FL_K3 = 65536; FL_KV = 81920; FL_AF = 86016; FL_SP = 102400
FUSED = False

def kernel_header(A, name):
    A(f".text\n.globl {name}\n.p2align 8\n.type {name},@function")
    A.label(name)

def kernel_desc(name, vgpr, agpr, sgpr=102):
    acc = (vgpr + 3) // 4 * 4
    nfv = acc + agpr if agpr else vgpr
    return f""".section .rodata,"a"
.p2align 6
.amdhsa_kernel {name}
  .amdhsa_next_free_vgpr {nfv}
  .amdhsa_next_free_sgpr {sgpr}
  .amdhsa_accum_offset {acc}
  .amdhsa_group_segment_fixed_size 0
  .amdhsa_kernarg_size 104
  .amdhsa_user_sgpr_count 2
  .amdhsa_user_sgpr_kernarg_segment_ptr 1
  .amdhsa_system_sgpr_workgroup_id_x 1
  .amdhsa_float_denorm_mode_32 3
.end_amdhsa_kernel
"""

def srd(A, s, base_lo, base_hi, size, off=0):
    if off:
        A(f"s_add_u32 s{s}, s{base_lo}, {off}")
        A(f"s_addc_u32 s{s+1}, s{base_hi}, 0")
        A(f"s_and_b32 s{s+1}, s{s+1}, 0xffff")
    else:
        A(f"s_mov_b32 s{s}, s{base_lo}")
        A(f"s_and_b32 s{s+1}, s{base_hi}, 0xffff")
    A(f"s_mov_b32 s{s+2}, {size}")
    A(f"s_mov_b32 s{s+3}, 0x20000")

def interleave(A, mf, fill):
    for s in fill.get(-1, []):
        A(s)
    for i, m in enumerate(mf):
        A(m)
        for s in fill.get(i, []):
            A(s)


STAMP = False
def stamp(A, idx, sbase=90):
    if STAMP and not FUSED:
        A(f"s_memtime s[{sbase+2*idx}:{sbase+2*idx+1}]")
        A("s_waitcnt lgkmcnt(0)")

def rstamp(A, idx, sbase=90):
    if STAMP or FUSED:
        A(f"s_memrealtime s[{sbase+2*idx}:{sbase+2*idx+1}]")
        A("s_waitcnt lgkmcnt(0)")

def stamp_flush(A, n, ws_lo, ws_hi, swave, sbase=90, kidx=0):
    if not STAMP:
        return
    A("s_waitcnt vmcnt(0) lgkmcnt(0)")
    srd(A, 60, ws_lo, ws_hi, 0x100000, ST_OFF + 0x100000)
    A(f"s_lshl_b32 s64, s2, 2")
    A(f"s_add_u32 s64, s64, s{swave}")
    A(f"s_lshl_b32 s64, s64, 5")
    A(f"s_add_u32 s64, s64, {kidx * 32768}")
    A("v_mov_b32 v1, s64")
    for i in range(n):
        A(f"v_mov_b32 v2, s{sbase+2*i}")
        A(f"buffer_store_dword v2, v1, s[60:63], 0 offen offset:{4*i}")
    A("s_memrealtime s[86:87]")
    A("s_waitcnt lgkmcnt(0)")
    A("v_mov_b32 v2, s86")
    A("buffer_store_dword v2, v1, s[60:63], 0 offen offset:28")


class Sched:
    def __init__(self, mf, name=""):
        self.mf = mf; self.n = len(mf); self.name = name
        self.pre = []
        self.s = [[] for _ in mf]; self.v = [[] for _ in mf]
    @staticmethod
    def cost(x):
        op = x.split()[0]
        if op in ("v_exp_f32", "v_rcp_f32", "v_log_f32", "v_rsq_f32"): return 2
        if op.startswith("buffer_") or op.startswith("global_"): return 2
        return 1
    def used(self, g): return sum(self.cost(x) for x in self.v[g])
    def S(self, g, x):
        (self.pre if g < 0 else self.s[g]).append(x)
    def V(self, g, x):
        (self.pre if g < 0 else self.v[g]).append(x)
    def place(self, x, lo, hi=None, parity=None):
        c = self.cost(x)
        hi = self.n - 1 if hi is None else hi
        for g in range(lo, hi + 1):
            if parity is not None and g % 2 != parity: continue
            if self.used(g) + c <= 2 and not any(y.startswith(("buffer_", "global_")) for y in self.v[g]) and not (x.startswith(("buffer_", "global_")) and (self.v[g] or self.s[g])):
                self.v[g].append(x); return g
        raise RuntimeError(f"no room for {x} from {lo} in {self.name}")
    def place_s(self, x, lo, hi=None):
        hi = self.n - 1 if hi is None else hi
        for g in range(lo, hi + 1):
            if not self.s[g] and not any(y.startswith(("buffer_", "global_")) for y in self.v[g]):
                self.s[g].append(x); return g
        raise RuntimeError(f"no scalar room for {x} from {lo} in {self.name}")
    def chain(self, xs, lo, gap=1):
        g = lo
        for x in xs:
            g = self.place(x, g) + gap
        return g
    def emit(self, A, verbose=False):
        for x in self.pre: A(x)
        over = 0
        for i, m in enumerate(self.mf):
            A(m)
            for x in self.s[i]: A(x)
            for x in self.v[i]: A(x)
            u = self.used(i)
            if u > 2 or (len(self.s[i]) > 1 and u > 0) or len(self.s[i]) > 3: over += 1
        if verbose or over:
            print(f"  sched {self.name}: {over} overfull gaps of {self.n}")


def fstamp(A, idx, sbase=90):
    if STAMP and FUSED:
        A(f"s_memrealtime s[{sbase+2*idx}:{sbase+2*idx+1}]")
        A("s_waitcnt lgkmcnt(0)")
```

```python
from gen_common import *
import gen_common as G
import gen_k1, gen_k2, gen_k3

NAME = "parallel_sum__compressed_kv_cla__glu_gated_bilinear__prompt_kernel"

def k2_final_arrive(A):
    lab = "K2_FA"
    A(f"s_cmp_eq_u32 s{gen_k2.sPENDK}, 2")
    A(f"s_cbranch_scc0 {lab}")
    A(f"s_cmp_eq_u32 s30, 0")
    A(f"s_cbranch_scc0 {lab}")
    A(f"v_mov_b32 v4, s{gen_k2.sPCELL}")
    A("v_mov_b32 v5, 1")
    A("v_cmp_eq_u32 s[78:79], 0, v2")
    A("s_and_saveexec_b64 s[76:77], s[78:79]")
    A(f"s_cbranch_execz {lab}X")
    A("buffer_atomic_add v5, v4, s[72:75], 0 offen")
    A.label(lab + "X")
    A("s_mov_b64 exec, s[76:77]")
    A.label(lab)
G.k2_final_arrive = k2_final_arrive

def gen_fused(A):
    G.FUSED = True
    kernel_header(A, NAME)
    A("s_cmp_ge_u32 s2, 256")
    A("s_cbranch_scc1 KF_END")
    rstamp(A, 5)
    gen_k1.k1_body(A, True)
    gen_k2.k2_body(A)
    A(f"s_mov_b32 s{gen_k2.sPENDK}, s{gen_k2.sPEND}")
    gen_k3.k3_body(A)
    if G.STAMP:
        A("s_waitcnt vmcnt(0) lgkmcnt(0)")
        stamp_flush(A, 6, 28, 29, 30)
    A.label("KF_END")
    A("s_endpgm")
    return NAME, 256, 256
```

```python
from gen_common import *
import gen_common as G
import os, math

MF = "v_mfma_f32_16x16x32_bf16"
XB = [16, 48]; WB = [80, 112]
VOA = 144; VOW = 152; VX = 156; VW = 158
T = 168
VQO = 216
VPOLL = 220
(sW, sHEAD, sRB, sISV, sAOFF, sWOFF, sM0A, sM0W, sCNT, sDA, sHK, sT0, sT1, sOUT, sWX, sWW) = range(30, 46)
sW0M, sW1M, sWOFF1, sMOD, sC32, sCM64 = 54, 55, 56, 57, 58, 59
sBM, sBO, sAM, sAOf, sLIM = 66, 67, 68, 69, 70
NV1 = 224

def small_store(A, val_v, off_expr_s, srd_, op="buffer_store_dword", flags="sc1"):
    pass

def k1_body(A, fused):
    ST = " sc1" if fused else os.environ.get("K1ST", "")
    A(f"s_load_dwordx4 s[24:27], s[0:1], {KA['x']}")
    A(f"s_load_dwordx4 s[48:51], s[0:1], {KA['wuk']}")
    A(f"s_load_dwordx2 s[28:29], s[0:1], {KA['ws']}")
    A(f"s_load_dwordx2 s[76:77], s[0:1], {KA['wq']}")
    A(f"s_load_dwordx2 s[78:79], s[0:1], {KA['wo']}")
    A(f"s_load_dwordx4 s[80:83], s[0:1], {KA['wg']}")
    A(f"s_load_dwordx2 s[84:85], s[0:1], {KA['wd']}")
    A(f"s_load_dwordx2 s[88:89], s[0:1], {KA['dbg']}") if fused and not G.STAMP else None
    A(f"s_load_dwordx2 s[74:75], s[0:1], {KA['dbg']}") if fused and G.STAMP else None
    DBG = (74 if G.STAMP else 88)
    A("v_lshrrev_b32 v1, 6, v0")
    A("v_and_b32 v2, 63, v0")
    A(f"v_readfirstlane_b32 s{sW}, v1")
    A("s_and_b32 s3, s2, 7")
    A(f"s_lshr_b32 s{sT0}, s2, 3")
    A(f"s_and_b32 s{sT1}, s{sT0}, 1")
    A(f"s_lshl_b32 s{sHEAD}, s3, 1")
    A(f"s_add_u32 s{sHEAD}, s{sHEAD}, s{sT1}")
    A(f"s_bfe_u32 s{sISV}, s{sT0}, 0x10001")
    A(f"s_lshr_b32 s{sRB}, s{sT0}, 2")
    A(f"s_and_b32 s{sWX}, s{sW}, 1")
    A(f"s_lshr_b32 s{sWW}, s{sW}, 1")
    A("v_lshrrev_b32 v3, 5, v2")
    A("v_and_b32 v4, 31, v2")
    A("v_lshrrev_b32 v11, 3, v2")
    A("v_lshlrev_b32 v11, 11, v11")
    A("v_and_b32 v12, 7, v2")
    A("v_lshrrev_b32 v13, 4, v2")
    A("v_xor_b32 v12, v12, v13")
    A("v_xor_b32 v13, 4, v12")
    A("v_lshl_add_u32 v12, v12, 4, v11")
    A("v_lshl_add_u32 v13, v13, 4, v11")
    for q in range(8):
        A(f"v_add_u32 v{VOA+q}, {q*16384 - (q&3)*1024}, v{12 + (q&1)}")
    A(f"s_lshl_b32 s{sT0}, s{sWX}, 3")
    for q in range(4):
        A(f"v_add_u32 v11, {2*q}, v3")
        A("v_and_b32 v12, 3, v11")
        A("v_lshlrev_b32 v12, 1, v12")
        A(f"v_or_b32 v12, s{sT0}, v12")
        A("v_xor_b32 v12, v12, v4")
        A("v_lshlrev_b32 v12, 4, v12")
        A("v_lshl_add_u32 v12, v11, 13, v12")
        A(f"v_subrev_u32 v{VOW+q}, {q*1024}, v12")
    A(f"s_lshl_b32 s{sAOFF}, s{sRB}, 8")
    A(f"s_lshl_b32 s{sT0}, s{sW}, 6")
    A(f"s_add_u32 s{sAOFF}, s{sAOFF}, s{sT0}")
    A(f"s_lshl_b32 s{sAOFF}, s{sAOFF}, 11")
    A(f"s_lshl_b32 s{sWOFF}, s{sW}, 16")
    A(f"s_lshl_b32 s{sT0}, s{sHEAD}, 9")
    A(f"s_add_u32 s{sWOFF}, s{sWOFF}, s{sT0}")
    A(f"s_lshl_b32 s{sM0A}, s{sW}, 13")
    A(f"s_lshl_b32 s{sM0W}, s{sW}, 12")
    A(f"s_lshl_b32 s{sT0}, s2, 3")
    A(f"s_lshl_b32 s{sT1}, s{sW}, 1")
    A(f"s_add_u32 s{sT0}, s{sT0}, s{sT1}")
    A(f"v_add_u32 v5, s{sT0}, v3")
    A("v_mul_u32_u24 v6, 896, v5")
    A("v_lshl_add_u32 v6, v4, 4, v6")
    A("v_add_u32 v7, 512, v6")
    A("v_cmp_gt_u32 vcc, 24, v4")
    A("v_mov_b32 v8, 0x7ffffff0")
    A("s_waitcnt lgkmcnt(0)")
    A("v_cndmask_b32 v7, v8, v7, vcc")
    srd(A, 4, 26, 27, 2048 * 2048)
    A(f"s_cmp_eq_u32 s{sISV}, 0")
    A("s_cselect_b32 s52, s48, s50")
    A("s_cselect_b32 s53, s49, s51")
    srd(A, 8, 52, 53, 1024 * 8192)
    srd(A, 16, 24, 25, 2048 * 896)
    A(f"buffer_load_dwordx4 v[{T}:{T+3}], v6, s[16:19], 0 offen")
    A(f"buffer_load_dwordx4 v[{T+4}:{T+7}], v7, s[16:19], 0 offen")

    def dma_A(half, sm0, soff):
        return ([f"s_add_u32 m0, s{sm0}, {half*4096}"],
                [f"buffer_load_dwordx4 v{VOA+half*4+q}, s[4:7], s{soff} offen offset:{q*1024} lds" for q in range(4)])
    def dma_W(sm0, soff):
        return ([f"s_mov_b32 m0, s{sm0}"],
                [f"buffer_load_dwordx4 v{VOW+q}, s[8:11], s{soff} offen offset:{q*1024} lds" for q in range(4)])
    bg = []
    B = bg.append
    for x in ("v_lshrrev_b32 v9, 4, v5", "v_mul_u32_u24 v9, 14, v9", "v_lshrrev_b32 v10, 2, v4", "v_add_u32 v9, v9, v10",
              "v_lshlrev_b32 v9, 6, v9", "v_and_b32 v10, 15, v5", "v_add_u32 v9, v9, v10", "v_and_b32 v10, 3, v4",
              "v_lshl_add_u32 v9, v10, 4, v9", "v_lshlrev_b32 v9, 4, v9", "v_add_u32 v10, 8192, v9", "v_cndmask_b32 v10, v8, v10, vcc"):
        B(x)
    for x in ("v_and_b32 v11, 15, v2", "v_lshrrev_b32 v14, 4, v2", "v_bfe_u32 v13, v2, 1, 3"): B(x)
    B(f"s_lshl_b32 s{sT1}, s{sWX}, 14")
    B(f"s_add_u32 s{sT1}, s{sT1}, 65536")
    B("v_lshlrev_b32 v12, 7, v11")
    B(f"v_add_u32 v12, s{sT1}, v12")
    for ks in range(2):
        B(f"v_add_u32 v15, {4*ks}, v14")
        B("v_xor_b32 v15, v15, v13")
        B(f"v_lshl_add_u32 v{VX+ks}, v15, 4, v12")
    for x in ("v_bfe_u32 v12, v2, 2, 2", "v_lshl_add_u32 v13, v14, 3, v12", "v_lshlrev_b32 v13, 9, v13", "v_and_b32 v15, 1, v2",
              "v_lshl_add_u32 v13, v15, 3, v13", "v_bfe_u32 v15, v2, 4, 1", "v_lshl_add_u32 v12, v15, 2, v12", "v_lshlrev_b32 v12, 1, v12",
              "v_bfe_u32 v15, v2, 1, 1"): B(x)
    B(f"s_lshl_b32 s{sT1}, s{sWW}, 4")
    B(f"v_add_u32 v15, s{sT1}, v15")
    for wt in range(8):
        B(f"v_add_u32 v11, {2*wt}, v15")
        B("v_xor_b32 v11, v11, v12")
        B(f"v_lshl_add_u32 v{VW+wt}, v11, 4, v13")
    if fused:
        B("v_lshrrev_b32 v11, 4, v2"); B("v_and_b32 v12, 15, v2")
        for q in range(4):
            B(f"v_or_b32 v13, {((q>>1)&1)<<2}, v11"); B("v_lshlrev_b32 v13, 1, v13"); B("v_xor_b32 v13, v13, v12")
            B("v_lshlrev_b32 v13, 4, v13"); B(f"v_add_u32 v{VQO+q}, {4*q}, v11"); B(f"v_lshlrev_b32 v{VQO+q}, 13, v{VQO+q}")
            B(f"v_add_u32 v{VQO+q}, v{VQO+q}, v13"); B(f"v_subrev_u32 v{VQO+q}, {q*1024}, v{VQO+q}")
    for i in range(256):
        B(f"v_accvgpr_write_b32 a{i}, 0")
    sAS = [60, 61, 62]; sAO = [63, 64, 65]
    for k in range(3):
        A(f"s_add_u32 s{sAS[k]}, s{sM0A}, {65536 + k*32768}")
    A(f"s_mov_b32 s{sAO[0]}, s{sAOFF}")
    A(f"s_add_u32 s{sAO[1]}, s{sAOFF}, 128")
    A(f"s_add_u32 s{sAO[2]}, s{sAOFF}, 256")
    A(f"s_mov_b32 s{sW0M}, s{sM0W}")
    A(f"s_add_u32 s{sW1M}, s{sM0W}, 16384")
    A(f"s_add_u32 s{sWOFF1}, s{sWOFF}, {32*8192}")
    A(f"s_add_u32 s71, s{sM0W}, 32768")
    A(f"s_add_u32 s72, s{sM0W}, 49152")
    A(f"s_add_u32 s73, s{sWOFF}, {64*8192}")
    A(f"s_add_u32 s86, s{sWOFF}, {96*8192}") if not G.STAMP else A(f"s_add_u32 s87, s{sWOFF}, {96*8192}")
    sW11 = 87 if G.STAMP else 86
    seq = [dma_A(0, sAS[0], sAO[0]), dma_A(1, sAS[0], sAO[0]), dma_W(sW0M, sWOFF), dma_W(sW1M, sWOFF1), dma_A(0, sAS[1], sAO[1]),
           dma_A(1, sAS[1], sAO[1]), dma_W(71, 73), dma_W(72, sW11), dma_A(0, sAS[2], sAO[2])]
    per = (len(bg) + 35) // 36
    bi = 0
    for o, d in seq:
        for x in o: A(x)
        A("s_nop 0")
        for x in d:
            A(x)
            for y in bg[bi: bi + per]: A(y)
            bi += per
    for y in bg[bi:]: A(y)
    A(f"s_mul_i32 s{sT0}, s{sISV}, {VF_OFF - KF_OFF}")
    A(f"s_add_u32 s{sT0}, s{sT0}, {KF_OFF}")
    A(f"s_add_u32 s12, s28, s{sT0}")
    A("s_addc_u32 s13, s29, 0")
    A("s_and_b32 s13, s13, 0xffff")
    A(f"s_mov_b32 s14, {KF_SIZE}")
    A("s_mov_b32 s15, 0x20000")
    srd(A, 20, 28, 29, XN_SIZE, XN_OFF)
    srd(A, 60, 28, 29, FL_SIZE, FL_OFF)
    A(f"s_cmp_eq_u32 s{sW}, 0")
    A("s_cbranch_scc0 K1_NOZ")
    A("v_lshlrev_b32 v11, 3, v2")
    A("s_lshl_b32 s64, s2, 9")
    A("v_mov_b32 v12, 0")
    A("v_mov_b32 v13, 0")
    A(f"buffer_store_dwordx2 v[12:13], v11, s[60:63], s64 offen{ST}")
    A.label("K1_NOZ")
    A(f"s_add_u32 s{sWOFF}, s{sWOFF}, {128*8192}")
    A(f"s_add_u32 s{sWOFF1}, s{sWOFF}, {32*8192}")
    A(f"s_add_u32 s{sBM}, s{sM0A}, {65536 + 2*32768}")
    A(f"s_add_u32 s{sBO}, s{sAOFF}, 256")
    A(f"s_add_u32 s{sAM}, s{sM0A}, 65536")
    A(f"s_add_u32 s{sAOf}, s{sAOFF}, 384")
    A(f"s_add_u32 s{sLIM}, s{sM0A}, {65536 + 3*32768}")
    A("s_waitcnt vmcnt(36)" if False else "s_waitcnt vmcnt(37)") if False else None
    A("s_waitcnt vmcnt(36)")
    S1, S2, ONE = T+8, T+9, T+10
    A(f"v_mov_b32 v{ONE}, 0x3f803f80")
    A(f"v_mov_b32 v{S1}, 0")
    A(f"v_mov_b32 v{S2}, 0")
    for i in range(8):
        A(f"v_dot2_f32_bf16 v{S1}, v{T+i}, v{ONE}, v{S1}")
        A(f"v_dot2_f32_bf16 v{S2}, v{T+i}, v{T+i}, v{S2}")
    A("s_nop 2")
    a_, b_ = T+11, T+12
    for off in (0x041F, 0x081F, 0x101F, 0x201F, 0x401F):
        A(f"ds_swizzle_b32 v{a_}, v{S1} offset:{off}")
        A(f"ds_swizzle_b32 v{b_}, v{S2} offset:{off}")
        A("s_waitcnt lgkmcnt(0)")
        A(f"v_add_f32 v{S1}, v{S1}, v{a_}")
        A(f"v_add_f32 v{S2}, v{S2}, v{b_}")
    A(f"v_mul_f32 v{S1}, {f32(1/448)}, v{S1}")
    A(f"v_mul_f32 v{S2}, {f32(1/448)}, v{S2}")
    A(f"v_fma_f32 v{S2}, -v{S1}, v{S1}, v{S2}")
    A(f"v_max_f32 v{S2}, 0, v{S2}")
    A(f"v_add_f32 v{S2}, {f32(1e-5)}, v{S2}")
    A(f"v_rsq_f32 v{S2}, v{S2}")
    A("s_nop 0")
    for i in range(8):
        A(f"v_lshlrev_b32 v{a_}, 16, v{T+i}")
        A(f"v_and_b32 v{b_}, 0xffff0000, v{T+i}")
        A(f"v_sub_f32 v{a_}, v{a_}, v{S1}")
        A(f"v_sub_f32 v{b_}, v{b_}, v{S1}")
        A(f"v_mul_f32 v{a_}, v{a_}, v{S2}")
        A(f"v_mul_f32 v{b_}, v{b_}, v{S2}")
        A(f"v_cvt_pk_bf16_f32 v{T+i}, v{a_}, v{b_}")
    A(f"buffer_store_dwordx4 v[{T}:{T+3}], v9, s[20:23], 0 offen{ST}")
    A(f"buffer_store_dwordx4 v[{T+4}:{T+7}], v10, s[20:23], 0 offen{ST}")

    def rdX(buf, ks, xt):
        return [f"ds_read_b128 v[{XB[buf]+4*xt}:{XB[buf]+4*xt+3}], v{VX+ks} offset:{xt*2048}"]
    def rdW(buf, ks, wt):
        r = WB[buf] + 4 * wt
        return [f"ds_read_b64_tr_b16 v[{r}:{r+1}], v{VW+wt} offset:{ks*16384}",
                f"ds_read_b64_tr_b16 v[{r+2}:{r+3}], v{VW+wt} offset:{ks*16384 + 2048}"]
    def reads(buf, ks):
        o = [rdX(buf, ks, 0)] + [rdW(buf, ks, wt) for wt in range(8)] + [rdX(buf, ks, xt) for xt in range(1, 8)]
        return o
    A("s_waitcnt vmcnt(26)")
    A("s_barrier")
    stamp(A, 1)
    for grp in reads(0, 0):
        for x in grp: A(x)
    A(f"s_mov_b32 s{sCNT}, 0")
    A(f"s_mov_b32 s{sDA}, 32768")
    A(f"s_mov_b32 s{sMOD}, 0")
    A(f"s_mov_b32 s{sC32}, 32768")
    A(f"s_mov_b32 s{sCM64}, 0xffff0000")
    A(f"s_mov_b32 s{sHK}, 2")
    A(f"s_cmp_eq_u32 s{sISV}, 0")
    A("s_cbranch_scc0 K1_LOOP_V")

    for variant in ("K", "V"):
        A(".p2align 6")
        A.label(f"K1_LOOP_{variant}")
        for ks in range(2):
            buf = ks
            mf = []
            for xt in range(8):
                for wt in range(8):
                    acc = (xt * 8 + wt) * 4
                    x = vr(XB[buf] + 4 * xt, 4); w = vr(WB[buf] + 4 * wt, 4)
                    a, b = (w, x) if variant == "K" else (x, w)
                    mf.append(f"{MF} {ar(acc,4)}, {a}, {b}, {ar(acc,4)}")
            sc = Sched(mf, f"k1{variant}{ks}")
            sc.S(-1, f"s_waitcnt vmcnt({20 if ks == 0 else 16}) lgkmcnt(0)")
            sc.S(-1, "s_barrier")
            g0 = 0
            if ks == 1:
                sc.V(0, f"v_add_u32 v{VX}, s{sDA}, v{VX}"); sc.V(0, f"v_add_u32 v{VX+1}, s{sDA}, v{VX+1}")
                for k in range(8): sc.V(1 + k // 2, f"v_xor_b32 v{VW+k}, 0x8000, v{VW+k}")
                g0 = 6
            for i, grp in enumerate(reads(buf ^ 1, ks ^ 1)):
                for x in grp: sc.V(g0 + 2 * i, x)
            if ks == 0:
                g1 = dma_A(1, sBM, sBO); g2 = dma_W(sW0M, sWOFF)
                sc.S(0, f"s_cmp_eq_u32 s{sCNT}, s{sHK}")
                sc.S(1, f"s_cbranch_scc1 K1_HOOK_{variant}")
                sc.S(1, f"K1_BACK_{variant}:")
            else:
                g1 = dma_W(sW1M, sWOFF1); g2 = dma_A(0, sAM, sAOf)
            sc.S(2, g1[0][0])
            for q in range(4): sc.V(5 + 6 * q, g1[1][q])
            sc.S(30, g2[0][0])
            for q in range(4): sc.V(33 + 6 * q, g2[1][q])
            if ks == 0:
                sc.S(26, f"s_cmp_ge_u32 s{sCNT}, 13"); sc.S(27, f"s_cselect_b32 s6, 0, {2048*2048}")
                adv = [[f"s_add_u32 s{sBM}, s{sBM}, 32768"], [f"s_cmp_eq_u32 s{sBM}, s{sLIM}", f"s_cselect_b32 s{sT1}, {3*32768}, 0", f"s_sub_u32 s{sBM}, s{sBM}, s{sT1}"],
                       [f"s_add_u32 s{sBO}, s{sBO}, 128"], [f"s_add_u32 s{sMOD}, s{sMOD}, 1"],
                       [f"s_cmp_eq_u32 s{sMOD}, 3", f"s_cselect_b32 s{sDA}, s{sCM64}, s{sC32}", f"s_cselect_b32 s{sMOD}, 0, s{sMOD}"]]
                pos = [32, 35, 36, 38, 41]
                for p, grp in zip(pos, adv): sc.s[p] += grp
                sc.s[54].append(f"s_add_u32 s{sWOFF}, s{sWOFF}, {64*8192}")
                sc.s[56].append(f"s_xor_b32 s{sW0M}, s{sW0M}, 0x8000")
            else:
                sc.s[26].append(f"s_add_u32 s{sWOFF1}, s{sWOFF1}, {64*8192}")
                sc.s[28].append(f"s_xor_b32 s{sW1M}, s{sW1M}, 0x8000")
                sc.s[54].append(f"s_add_u32 s{sAM}, s{sAM}, 32768")
                sc.s[55] += [f"s_cmp_eq_u32 s{sAM}, s{sLIM}", f"s_cselect_b32 s{sT1}, {3*32768}, 0", f"s_sub_u32 s{sAM}, s{sAM}, s{sT1}"]
                sc.s[56].append(f"s_add_u32 s{sAOf}, s{sAOf}, 128")
                sc.s[58].append(f"s_add_u32 s{sCNT}, s{sCNT}, 1")
                sc.s[63].append(f"s_cmp_lt_u32 s{sCNT}, 16")
            sc.emit(A)
        A(f"s_cbranch_scc1 K1_LOOP_{variant}")
        A(f"s_branch K1_EPI_{variant}")
        A.label(f"K1_HOOK_{variant}")
        lab = f"K1H{variant}"
        A(f"s_cmp_eq_u32 s{sCNT}, 2"); A(f"s_cbranch_scc0 {lab}_3")
        if fused:
            srd(A, 48, DBG, DBG + 1, 256)
            A(f"s_cmp_eq_u32 s{sW}, 0"); A(f"s_cbranch_scc0 {lab}_2E")
            A("v_mov_b32 v11, 0"); A("v_mov_b32 v12, 1")
            A("v_cmp_eq_u32 vcc, 0, v2"); A("s_and_saveexec_b64 s[52:53], vcc")
            A(f"s_cbranch_execz {lab}_2X")
            A("buffer_atomic_add v12, v11, s[48:51], 0 offen")
            A.label(f"{lab}_2X")
            A("s_mov_b64 exec, s[52:53]")
            A.label(f"{lab}_2E")
        A("s_mov_b32 s53, 0")
        if not fused: A("s_mov_b32 s53, 0")
        A(f"s_lshr_b32 s{sHK}, s2, 3"); A(f"s_and_b32 s{sHK}, s{sHK}, 3"); A(f"s_add_u32 s{sHK}, s{sHK}, 3"); A(f"s_branch K1_BACK_{variant}")
        A.label(f"{lab}_3")
        A(f"s_cmp_eq_u32 s{sCNT}, 14"); A(f"s_cbranch_scc1 {lab}_14")
        A(f"s_cmp_eq_u32 s53, 2"); A(f"s_cbranch_scc1 {lab}_12")
        A(f"s_lshl_b32 s{sT0}, s2, 2"); A(f"s_add_u32 s{sT0}, s{sT0}, s{sW}")
        A(f"s_lshl_b32 s{sT1}, s53, 10"); A(f"s_add_u32 s{sT0}, s{sT0}, s{sT1}")
        A(f"s_cselect_b32 s{sHK}, 12, 6") if False else None
        bounds = [(76, 448, 448*8192), (80, 196, 448*3584), (82, 196, 448*3584), (78, 448, 4096*896), (84, 196, 1792*896)]
        A("s_mov_b32 s48, s76"); A("s_mov_b32 s49, s77"); A(f"s_mov_b32 s50, {bounds[0][2]}"); A(f"s_mov_b32 s{sT1}, 0")
        cum = 0
        for k in range(1, 5):
            cum += bounds[k - 1][1]
            A(f"s_cmp_ge_u32 s{sT0}, {cum}")
            A(f"s_cselect_b32 s48, s{bounds[k][0]}, s48"); A(f"s_cselect_b32 s49, s{bounds[k][0]+1}, s49")
            A(f"s_cselect_b32 s50, {bounds[k][2]}, s50")
            A(f"s_cselect_b32 s{sT1}, {cum}, s{sT1}")
        A(f"s_sub_u32 s{sT0}, s{sT0}, s{sT1}")
        A("s_and_b32 s49, s49, 0xffff"); A("s_mov_b32 s51, 0x20000")
        A(f"s_lshl_b32 s{sT0}, s{sT0}, 13")
        A("v_lshlrev_b32 v11, 7, v2")
        if int(os.environ.get("TG", 128)):
            A(f"buffer_load_dword v{VPOLL+1}, v11, s[48:51], s{sT0} offen")
        A("s_add_u32 s53, s53, 1"); A(f"s_cmp_eq_u32 s53, 2"); A(f"s_cselect_b32 s{sT1}, 3, 4"); A(f"s_add_u32 s{sHK}, s{sCNT}, s{sT1}"); A(f"s_branch K1_BACK_{variant}")
        A.label(f"{lab}_12")
        if fused:
            srd(A, 48, DBG, DBG + 1, 256)
            A(f"s_cmp_eq_u32 s{sW}, 0"); A(f"s_cbranch_scc0 {lab}_12E")
            A("v_mov_b32 v11, 0")
            A(f"buffer_load_dword v{VPOLL}, v11, s[48:51], 0 offen sc1")
            A.label(f"{lab}_12E")
        A(f"s_mov_b32 s{sHK}, 14"); A(f"s_branch K1_BACK_{variant}")
        A.label(f"{lab}_14")
        if fused:
            for q in range(4): A(f"v_mov_b32 v{VOW+q}, v{VQO+q}")
            srd(A, 8, 76, 77, 448 * 8192)
            A(f"s_lshl_b32 s{sWOFF}, s{sW}, 17"); A(f"s_lshl_b32 s{sT0}, s{sHEAD}, 9"); A(f"s_add_u32 s{sWOFF}, s{sWOFF}, s{sT0}")
            A(f"s_add_u32 s{sWOFF1}, s{sWOFF}, 256")
        else:
            A("s_mov_b32 s10, 0")
        A(f"s_mov_b32 s{sHK}, 99"); A(f"s_branch K1_BACK_{variant}")

    for variant in ("K", "V"):
        A.label(f"K1_EPI_{variant}")
        stamp(A, 2)
        A("s_waitcnt lgkmcnt(0)")
        if fused: G.k1_pre_epilogue(A, variant, DBG)
        A(f"s_lshl_b32 s{sOUT}, s{sHEAD}, 6")
        A(f"s_lshl_b32 s{sT0}, s{sRB}, 3")
        A(f"s_add_u32 s{sOUT}, s{sOUT}, s{sT0}")
        A(f"s_lshl_b32 s{sT0}, s{sWX}, 2")
        A(f"s_add_u32 s{sOUT}, s{sOUT}, s{sT0}")
        A(f"s_lshl_b32 s{sOUT}, s{sOUT}, 14")
        A(f"s_lshl_b32 s{sT0}, s{sWW}, {12 if variant == 'K' else 13}")
        A(f"s_add_u32 s{sOUT}, s{sOUT}, s{sT0}")
        A(f"s_mov_b32 s{sT1}, {f32(math.log2(math.e) / 16.0)}")
        A("v_lshlrev_b32 v5, 4, v2")
        A("v_add_u32 v6, 4096, v5")
        A("s_nop 7")
        n = 0; prev = 0
        items = [(xt, u) for xt in range(8) for u in range(4)] if variant == "K" else [(u, wt) for u in range(4) for wt in range(8)]
        for it in items:
            b = T + (n % 4) * 12
            n += 1
            if variant == "K":
                xt, u = it
                t0, t1 = (xt * 8 + 2 * u) * 4, (xt * 8 + 2 * u + 1) * 4
                soff = xt * 8192 + u * 1024
            else:
                u, wt = it
                t0, t1 = ((2 * u) * 8 + wt) * 4, ((2 * u + 1) * 8 + wt) * 4
                soff = u * 16384 + wt * 1024
            for i in range(4):
                A(f"v_accvgpr_read_b32 v{b+i}, a{t0+i}")
                A(f"v_accvgpr_read_b32 v{b+4+i}, a{t1+i}")
            if variant == "K":
                for i in range(8): A(f"v_mul_f32 v{b+i}, s{sT1}, v{b+i}")
            for i in range(4):
                A(f"v_cvt_pk_bf16_f32 v{b+8+i}, v{b+2*i}, v{b+2*i+1}")
            base = soff // 8192 * 8192
            rem = soff - base
            if base != prev: A(f"s_add_u32 s{sOUT}, s{sOUT}, {base - prev}")
            prev = base
            vo = 5 if rem < 4096 else 6
            A(f"buffer_store_dwordx4 v[{b+8}:{b+11}], v{vo}, s[12:15], s{sOUT} offen offset:{rem & 4095}{ST}")
        if variant == "K": A("s_branch K1_FIN")
    A.label("K1_FIN")

def gen_k1(A):
    name = "k1_proj_kernel"
    kernel_header(A, name)
    A("s_cmp_ge_u32 s2, 256")
    A("s_cbranch_scc1 K1_END")
    stamp(A, 0); rstamp(A, 5)
    k1_body(A, False)
    stamp(A, 3)
    if G.STAMP: A("s_waitcnt vmcnt(0) lgkmcnt(0)")
    stamp(A, 4)
    stamp_flush(A, 6, 28, 29, sW)
    A.label("K1_END")
    A("s_endpgm")
    return name, NV1, 256
```

```python
from gen_common import *
import gen_common as G
import math, os
from gen_attn import *

A2 = int(os.environ.get("A2", 27))
A1 = int(os.environ.get("A1", 31))
sSTATE, sPAIR, sI_, sA, sNG, sGI, sC, sPEND, sNC, sNROW = 61, 62, 63, 64, 65, 66, 67, 50, 51, 52
sNWOFF, sNJ = 53, 60
S_H, S_D = 68, 72
S_WG, S_WU = 80, 84
QH_SZ = 128 * 65536
OPB_OFF = QH_SZ
OPS_OFF = 2 * QH_SZ

def frag(i):
    return vFR + 4 * (i % NFR)

def voffs(A, dst, stride):
    t0, t1, t2 = vT[0], vT[1], vT[2]
    A(f"v_lshrrev_b32 v{t0}, 4, v{vLANE}")
    A(f"v_and_b32 v{t1}, 15, v{vLANE}")
    for q in range(4):
        A(f"v_or_b32 v{t2}, {((q>>1)&1)<<2}, v{t0}")
        A(f"v_lshlrev_b32 v{t2}, 1, v{t2}")
        A(f"v_xor_b32 v{t2}, v{t2}, v{t1}")
        A(f"v_lshlrev_b32 v{t2}, 4, v{t2}")
        A(f"v_add_u32 v{dst+q}, {4*q}, v{t0}")
        A(f"v_mul_u32_u24 v{dst+q}, {stride}, v{dst+q}")
        A(f"v_add_u32 v{dst+q}, v{dst+q}, v{t2}")
        A(f"v_subrev_u32 v{dst+q}, {q*1024}, v{dst+q}")

def wr_setup(A):
    t0, t1, t2 = vT[0], vT[1], vT[2]
    A(f"v_bfe_u32 v{t0}, v{vLANE}, 2, 2")
    A(f"v_lshrrev_b32 v{t1}, 4, v{vLANE}")
    A(f"v_lshl_add_u32 v{t1}, v{t1}, 3, v{t0}")
    A(f"v_lshlrev_b32 v{t1}, 8, v{t1}")
    A(f"v_and_b32 v{t2}, 1, v{vLANE}")
    A(f"v_lshl_add_u32 v{t1}, v{t2}, 3, v{t1}")
    A(f"v_bfe_u32 v{t2}, v{vLANE}, 4, 1")
    A(f"v_lshl_add_u32 v{t0}, v{t2}, 2, v{t0}")
    A(f"v_lshlrev_b32 v{t0}, 1, v{t0}")
    A(f"v_bfe_u32 v{t2}, v{vLANE}, 1, 1")
    for ft in range(8):
        A(f"v_add_u32 v{vT[3]}, {2*ft}, v{t2}")
        A(f"v_xor_b32 v{vT[3]}, v{vT[3]}, v{t0}")
        A(f"v_lshl_add_u32 v{vWR+ft}, v{vT[3]}, 4, v{t1}")

class Proj:
    def __init__(self, kind):
        self.kind = kind
        self.stride = 8192 if kind == "Q" else 3584
        self.vo = vVOW if kind == "Q" else vVOG
        self.srd = (S_WL, S_WL) if kind == "Q" else (S_WG, S_WU)
    def wgroup(self, j, woff, tmp):
        o = []
        for half in range(2):
            add = j * 64 * self.stride + (256 * half if self.kind == "Q" else 0)
            o.append(("s", f"s_add_u32 s{tmp}, s{woff}, {add}"))
            o.append(("s", f"s_add_u32 m0, s{sWB}, {(j % 4) * 32768 + half*16384}"))
            for q in range(4):
                o.append(("v", f"buffer_load_dwordx4 v{self.vo+q}, s[{self.srd[half]}:{self.srd[half]+3}], s{tmp} offen offset:{q*1024} lds"))
        return o
    def xgroup(self, j, xoff, tmp):
        o = []
        for qt in range(2):
            o.append(("s", f"s_add_u32 s{tmp}, s{xoff}, {qt*14*1024 + j*2048}"))
            for k in range(2):
                r = vXN + ((2*j + k) * 2 + qt) * 4
                o.append(("v", f"buffer_load_dwordx4 v[{r}:{r+3}], v{vL16}, s[{S_X}:{S_X+3}], s{tmp} offen offset:{k*1024}{SC()}"))
        return o
    def issue(self, A, items):
        prev_s = False
        for k, x in items:
            if k == "v" and prev_s: A("s_nop 0")
            A(x); prev_s = (k == "s")
    def rd(self, n, slotoff):
        ks_, dt = n // 16, n % 16
        r = frag(n)
        off = slotoff + (dt // 8) * 16384 + ks_ * 8192
        return [f"ds_read_b64_tr_b16 v[{r}:{r+1}], v{vWR + dt % 8} offset:{off}",
                f"ds_read_b64_tr_b16 v[{r+2}:{r+3}], v{vWR + dt % 8} offset:{off + 1024}"]
    def main(self, A, waits, tails, hooks):
        for n in range(DPRE):
            for x in self.rd(n, 0): A(x)
        for j in range(7):
            slot = j % 4
            mf = []
            for n in range(32):
                ks_, dt = n // 16, n % 16
                ks = 2 * j + ks_
                for qt in range(2):
                    acc = (dt * 2 + qt) * 4
                    x = vXN + (ks * 2 + qt) * 4
                    mf.append(f"{MF} {ar(acc,4)}, {vr(frag(n),4)}, {vr(x,4)}, " + ("0" if ks == 0 else ar(acc,4)))
            sc = Sched(mf, f"proj{self.kind}{j}")
            for x in waits[j]: A(x)
            A("s_barrier")
            if j in hooks: hooks[j](A)
            A(f"s_waitcnt lgkmcnt({2*(DPRE-1)})")
            for n in range(32):
                last = 31 if j == 6 else 10**9
                issued = min(last, n - 1 + DPRE)
                if n + 1 <= 31 or j < 6:
                    sc.S(2 * n, f"s_waitcnt lgkmcnt({max(0, 2 * (issued - (n + 1)))})")
                m = n + DPRE
                if m < 32:
                    x = self.rd(m, (slot % 2) * 32768)
                elif j < 6:
                    nslot = (j + 1) % 4
                    x = self.rd(m - 32, (nslot % 2) * 32768)
                    if m == 32 and (nslot // 2) != (slot // 2):
                        d = 65536 if nslot // 2 == 1 else -65536
                        for ft in range(8):
                            sc.V(2 * n - 1 - 2 * (3 - ft // 2) if False else 2 * n - 1, f"v_add_u32 v{vWR+ft}, {d & 0xffffffff}, v{vWR+ft}")
                else:
                    continue
                sc.V(2 * n, x[0]); sc.V(2 * n, x[1])
            items = tails.get(j, [])
            nv = sum(1 for k, _ in items if k == "v")
            if nv:
                gaps = [g for g in range(3, 62, 2) if not sc.v[g]]
                pos = [gaps[int(k * (len(gaps) - 1) / max(1, nv - 1))] for k in range(nv)] if nv > 1 else [gaps[0]]
                k = 0; pend = []
                for kind, x in items:
                    if kind == "s": pend.append(x)
                    else:
                        g = pos[k]; k += 1
                        if pend:
                            tgt = g - 2 if (g - 2 >= 1 and not sc.v[g - 2]) else g - 1
                            sc.s[tgt] += pend; pend = []
                        sc.v[g].append(x)
                assert not pend
            sc.emit(A)
        for ft in range(8):
            A(f"v_subrev_u32 v{vWR+ft}, 65536, v{vWR+ft}")

def q_convert(A, store=None):
    n = 0
    for qt in range(2):
        for u in range(8):
            b = vF + (n % 4) * 8; n += 1
            for k in range(2):
                for r in range(4):
                    A(f"v_accvgpr_read_b32 v{b+4*k+r}, a{((2*u+k)*2+qt)*4+r}")
            for e in range(4):
                A(f"v_cvt_pk_bf16_f32 v{vQ+(qt*8+u)*4+e}, v{b+2*e}, v{b+2*e+1}")

def o_zero(A):
    for i in range(128):
        A(f"v_accvgpr_write_b32 a{i}, 0")

def flag_set(A, which):
    lab = f"FS_{len(A.L)}"
    A(f"s_cmp_eq_u32 s{sW}, 0")
    A(f"s_cbranch_scc0 {lab}")
    A(f"s_lshl_b32 s{sT0}, s{sPAIR}, 9")
    A(f"s_add_u32 s{sT0}, s{sT0}, {which*256}")
    A(f"v_mov_b32 v{vT[0]}, s{sT0}")
    A(f"v_mov_b32 v{vT[1]}, 1")
    A(f"v_cmp_eq_u32 s[78:79], 0, v{vLANE}")
    A("s_and_saveexec_b64 s[76:77], s[78:79]")
    A(f"s_cbranch_execz {lab}X")
    A(f"buffer_store_dword v{vT[1]}, v{vT[0]}, s[{S_D}:{S_D+3}], 0 offen sc1")
    A.label(lab + "X")
    A("s_mov_b64 exec, s[76:77]")
    A.label(lab)

sPCELL = 88
sPENDK = 89
VPOLL2 = 255
def arrive(A, off_sgpr):
    lab = f"AR_{len(A.L)}"
    A(f"s_cmp_eq_u32 s{sW}, 0")
    A(f"s_cbranch_scc0 {lab}")
    A(f"v_mov_b32 v{vT[0]}, s{off_sgpr}")
    A(f"v_mov_b32 v{vT[1]}, 1")
    A(f"v_cmp_eq_u32 s[78:79], 0, v{vLANE}")
    A("s_and_saveexec_b64 s[76:77], s[78:79]")
    A(f"s_cbranch_execz {lab}X")
    A(f"buffer_atomic_add v{vT[1]}, v{vT[0]}, s[{S_D}:{S_D+3}], 0 offen")
    A.label(lab + "X")
    A("s_mov_b64 exec, s[76:77]")
    A.label(lab)

def af_cell_head(A, dst, rb_sgpr):
    A(f"s_lshl_b32 s{dst}, s{rb_sgpr}, 2")
    A(f"s_cmp_ge_u32 s{sHEAD}, 6"); A(f"s_addc_u32 s{dst}, s{dst}, 0")
    A(f"s_cmp_ge_u32 s{sHEAD}, 12"); A(f"s_addc_u32 s{dst}, s{dst}, 0")
    A(f"s_lshl_b32 s{dst}, s{dst}, 8"); A(f"s_add_u32 s{dst}, s{dst}, {FL_AF}")

def flag_wait(A, which):
    lab = f"FW_{len(A.L)}"
    A(f"s_cmp_eq_u32 s{sW}, 0")
    A(f"s_cbranch_scc0 {lab}_OK")
    A(f"s_lshl_b32 s{sT0}, s{sPAIR}, 9")
    A(f"s_add_u32 s{sT0}, s{sT0}, {which*256}")
    A(f"v_mov_b32 v{vT[0]}, s{sT0}")
    A(f"s_mov_b32 s{sT2}, 0x10000")
    A.label(lab)
    A(f"buffer_load_dword v{vT[1]}, v{vT[0]}, s[{S_D}:{S_D+3}], 0 offen sc1")
    A("s_waitcnt vmcnt(0)")
    A(f"v_readfirstlane_b32 s{sT0}, v{vT[1]}")
    A(f"s_cmp_eq_u32 s{sT0}, 1")
    A(f"s_cbranch_scc1 {lab}_OK")
    A(f"s_sub_u32 s{sT2}, s{sT2}, 1")
    A(f"s_cmp_eq_u32 s{sT2}, 0")
    A(f"s_cbranch_scc1 {lab}_OK")
    A("s_sleep 4")
    A(f"s_branch {lab}")
    A.label(f"{lab}_OK")
    A("s_barrier")

def fin_norm_store(A, srd_, qt_stride, flags=""):
    n = 0
    for qt in range(2):
        for u in range(8):
            b = vF + (n % 4) * 12; n += 1
            for k in range(2):
                for r in range(4):
                    A(f"v_accvgpr_read_b32 v{b+4*k+r}, a{((2*u+k)*2+qt)*4+r}")
            for e in range(8):
                A(f"v_mul_f32 v{b+e}, v{b+e}, v{vT[qt]}")
            for e in range(4):
                A(f"v_cvt_pk_bf16_f32 v{b+8+e}, v{b+2*e}, v{b+2*e+1}")
            if u == 4: A(f"s_add_u32 s{sT0}, s{sT0}, 4096")
            A(f"buffer_store_dwordx4 v[{b+8}:{b+11}], v{vL16}, s[{srd_}:{srd_+3}], s{sT0} offen offset:{(u%4)*1024}{flags}")
        A(f"s_add_u32 s{sT0}, s{sT0}, {qt_stride - 4096}")

def af_off(A):
    A(f"s_mul_i32 s{sT0}, s{sROW0}, {184*1024}")
    A(f"s_lshl_b32 s{sT1}, s{sHEAD}, 13")
    A(f"s_add_u32 s{sT0}, s{sT0}, s{sT1}")

def row0(A, dst, blk):
    A(f"s_lshl_b32 s{dst}, s{blk}, 3")
    A(f"s_lshl_b32 s{sT0}, s{sW}, 1")
    A(f"s_add_u32 s{dst}, s{dst}, s{sT0}")

def h_off(A, base):
    A(f"s_lshl_b32 s{sT0}, s{sPAIR}, 16")
    A(f"s_lshl_b32 s{sT1}, s{sW}, 14")
    A(f"s_add_u32 s{sT0}, s{sT0}, s{sT1}")
    if base: A(f"s_add_u32 s{sT0}, s{sT0}, {base}")

def gu_next_params(A):
    A(f"s_cmp_eq_u32 s{sNG}, 0")
    A(f"s_cselect_b32 s{S_WG+2}, 0, {448*3584}")
    A(f"s_cselect_b32 s{S_WU+2}, 0, {448*3584}")
    A(f"s_lshr_b32 s{sNC}, s{sGI}, 4")
    A(f"s_and_b32 s{sT2}, s{sGI}, 15")
    row0(A, sNROW, sT2)
    A(f"s_mul_i32 s{sNJ}, s{sNROW}, {14*1024}")
    A(f"s_mul_i32 s{sNWOFF}, s{sW}, {16*3584}")
    A(f"s_lshl_b32 s{sT0}, s{sNC}, 8")
    A(f"s_add_u32 s{sNWOFF}, s{sNWOFF}, s{sT0}")

def k2_body(A):
    PQ, PG = Proj("Q"), Proj("G")
    if G.FUSED:
        A(f"s_load_dwordx4 s[56:59], s[0:1], {KA['wg']}")
    lane_setup(A)
    A("s_and_b32 s3, s2, 7")
    A(f"s_lshr_b32 s{sT0}, s2, 3")
    A(f"s_and_b32 s{sT1}, s{sT0}, 1")
    A(f"s_lshl_b32 s{sHEAD}, s3, 1")
    A(f"s_add_u32 s{sHEAD}, s{sHEAD}, s{sT1}")
    A(f"s_bfe_u32 s{sI_}, s{sT0}, 0x30001")
    A(f"s_lshr_b32 s{sSTATE}, s2, 7")
    A(f"s_lshl_b32 s{sPAIR}, s{sHEAD}, 3")
    A(f"s_add_u32 s{sPAIR}, s{sPAIR}, s{sI_}")
    A(f"s_and_b32 s{sT1}, s{sT0}, 15")
    A(f"s_cmp_lt_u32 s{sT1}, 12")
    A(f"s_cselect_b32 s{sNG}, 2, 1")
    A(f"s_cselect_b32 s{sA}, {A2}, {A1}")
    A(f"s_mul_i32 s{sGI}, s3, 28")
    A(f"s_add_u32 s{sGI}, s{sGI}, s{sT1}")
    A("s_waitcnt lgkmcnt(0)")
    if not G.FUSED:
        srd(A, S_X, sWS, sWS + 1, XN_SIZE, XN_OFF)
        srd(A, S_WL, 54, 55, 448 * 8192)
    A(f"s_sub_u32 s{sT0}, 15, s{sI_}")
    A(f"s_cmp_eq_u32 s{sSTATE}, 0")
    A(f"s_cselect_b32 s{sQB}, s{sT0}, s{sI_}")
    row0(A, sROW0, sQB)
    A(f"s_mul_i32 s{sJ}, s{sROW0}, {14*1024}")
    A(f"s_lshl_b32 s{sWOFFL}, s{sW}, 17")
    A(f"s_lshl_b32 s{sT0}, s{sHEAD}, 9")
    A(f"s_add_u32 s{sWOFFL}, s{sWOFFL}, s{sT0}")
    if not G.FUSED:
        voffs(A, vVOW, 8192)
        for j in range(3):
            PQ.issue(A, PQ.wgroup(j, sWOFFL, sT3) + PQ.xgroup(j, sJ, sT3))
    srd(A, S_K, sWS, sWS + 1, KF_SIZE, KF_OFF)
    srd(A, S_V, sWS, sWS + 1, KF_SIZE, VF_OFF - 16384)
    srd(A, S_AF, sWS, sWS + 1, AF_SIZE, AF_OFF)
    srd(A, S_H, sWS, sWS + 1, 2 * QH_SZ + 128 * 4096, QH_OFF)
    srd(A, S_D, sWS, sWS + 1, FL_SIZE, FL_OFF)
    srd(A, S_WG, 56, 57, 448 * 3584)
    srd(A, S_WU, 58, 59, 448 * 3584)
    voffs(A, vVOG, 3584)
    wr_setup(A)
    A(f"s_lshl_b32 s{sE}, s{sI_}, 2")
    A(f"s_add_u32 s{sE}, s{sE}, 4")
    A(f"s_cmp_eq_u32 s{sSTATE}, 0")
    A(f"s_cselect_b32 s{sE}, s{sA}, s{sE}")
    A(f"s_mov_b32 s{sF}, 0")
    A(f"s_mov_b32 s{sPEND}, 0")
    A(f"s_mov_b32 s{sPCELL}, 0")
    attn_params(A)
    A("s_waitcnt vmcnt(32)" if G.FUSED else "s_waitcnt vmcnt(24)")
    A("s_barrier")
    sv = lambda g: [("s", x) for x in g[0]] + [("v", x) for x in g[1]]
    waitsQ = {0: ["s_waitcnt vmcnt(12)"], 1: ["s_waitcnt vmcnt(12)"], 2: ["s_waitcnt vmcnt(12)"], 3: ["s_waitcnt vmcnt(12)"],
              4: ["s_waitcnt vmcnt(12)"], 5: ["s_waitcnt vmcnt(8)"], 6: []}
    tailsQ = {j: PQ.wgroup(j + 3, sWOFFL, sT3) + PQ.xgroup(j + 3, sJ, sT3) for j in range(4)}
    tailsQ[4] = sv(kv_group("V", 0)) + sv(kv_group("V", 1))
    tailsQ[5] = sv(kv_group("K", 0)) + sv(kv_group("K", 1))
    tailsQ[6] = sv(kv_group("K", 2)) + sv(kv_group("K", 3)) + sv(kv_group("V", 2))
    hooksQ = {}
    if G.FUSED:
        waitsQ[0] = ["s_waitcnt vmcnt(32)"]; waitsQ[1] = ["s_waitcnt vmcnt(44)"]
        def h2(A):
            A(f"s_lshl_b32 s{sT0}, s{sHEAD}, 8"); A(f"s_add_u32 s{sT0}, s{sT0}, {FL_KV}")
            arrive(A, sT0)
        def h3(A):
            A(f"s_cmp_eq_u32 s{sW}, 0"); A("s_cbranch_scc0 K2_H3E")
            A(f"s_lshl_b32 s{sT0}, s{sHEAD}, 8"); A(f"s_add_u32 s{sT0}, s{sT0}, {FL_KV}")
            A(f"v_mov_b32 v{vT[0]}, s{sT0}")
            A(f"buffer_load_dword v{VPOLL2}, v{vT[0]}, s[{S_D}:{S_D+3}], 0 offen sc1")
            A.label("K2_H3E")
        hooksQ = {2: h2, 3: h3}
        chk = Asm()
        chk(f"s_cmp_eq_u32 s{sW}, 0"); chk("s_cbranch_scc0 K2_KVOK")
        chk(f"s_mov_b32 s{sT2}, 0x10000")
        chk.label("K2_KVP")
        chk(f"v_readfirstlane_b32 s{sT0}, v{VPOLL2}")
        chk(f"s_cmp_ge_u32 s{sT0}, 16"); chk("s_cbranch_scc1 K2_KVOK")
        chk(f"s_sub_u32 s{sT2}, s{sT2}, 1"); chk(f"s_cmp_eq_u32 s{sT2}, 0"); chk("s_cbranch_scc1 K2_KVOK")
        chk("s_sleep 2")
        chk(f"buffer_load_dword v{VPOLL2}, v{vT[0]}, s[{S_D}:{S_D+3}], 0 offen sc1")
        chk("s_waitcnt vmcnt(0)")
        chk("s_branch K2_KVP")
        chk.label("K2_KVOK")
        waitsQ[4] = ["s_waitcnt vmcnt(12)"] + chk.L
    fstamp(A, 1)
    PQ.main(A, waitsQ, tailsQ, hooksQ)
    fstamp(A, 2)
    stamp(A, 1)
    A(f"s_add_u32 s{sOFF}, s{sOFF}, {4*16384}")
    A("s_nop 4")
    q_convert(A)
    A(f"s_mov_b32 s{sHOOK}, -1")
    A(f"s_cmp_eq_u32 s{sSTATE}, 0")
    A("s_cbranch_scc0 K2_NOPUBQ")
    h_off(A, 0)
    for k in range(16):
        if k % 4 == 0 and k: A(f"s_add_u32 s{sT0}, s{sT0}, 4096")
        A(f"buffer_store_dwordx4 v[{vQ+4*k}:{vQ+4*k+3}], v{vL16}, s[{S_H}:{S_H+3}], s{sT0} offen offset:{(k%4)*1024} sc1")
    A(f"s_sub_u32 s{sHOOK}, s{sREM}, 1")
    o_zero(A)
    A("s_waitcnt vmcnt(28)")
    A("s_branch K2_GO")
    A.label("K2_NOPUBQ")
    o_zero(A)
    A("s_waitcnt vmcnt(12)")
    A.label("K2_GO")
    A("s_barrier")
    A.label("K2_CORE")
    def core_hook(A):
        lab = f"CH_{len(A.L)}"
        A(f"s_cmp_eq_u32 s{sSTATE}, 0")
        A(f"s_cbranch_scc0 {lab}")
        flag_set(A, 0)
        A(f"s_branch {lab}E")
        A.label(lab)
        if G.FUSED:
            af_cell_head(A, sT0, sI_)
            arrive(A, sT0)
        A.label(lab + "E")
    attn_core(A, "K2A", core_hook)
    A(f"s_cmp_eq_u32 s{sSTATE}, 1")
    A("s_cbranch_scc1 K2_BLO")
    A(f"s_cmp_eq_u32 s{sSTATE}, 2")
    A("s_cbranch_scc1 K2_MERGE")
    gu_next_params(A)
    for j in range(2):
        PG.issue(A, PG.wgroup(j, sNWOFF, sT3) + PG.xgroup(j, sNJ, sT3))
    A("s_nop 7")
    xreduce(A, [vL, vL + 1], "v_add_f32", [vT[2], vT[3]])
    A(f"v_rcp_f32 v{vT[0]}, v{vL}")
    A(f"v_rcp_f32 v{vT[1]}, v{vL+1}")
    h_off(A, OPB_OFF)
    fin_norm_store(A, S_H, 8192, " sc1")
    A(f"v_mov_b32 v{vF}, v{vNEGM}")
    A(f"v_mov_b32 v{vF+1}, v{vNEGM+4}")
    A(f"v_mov_b32 v{vF+2}, v{vL}")
    A(f"v_mov_b32 v{vF+3}, v{vL+1}")
    A(f"s_lshl_b32 s{sT0}, s{sPAIR}, 12")
    A(f"s_lshl_b32 s{sT1}, s{sW}, 10")
    A(f"s_add_u32 s{sT0}, s{sT0}, s{sT1}")
    A(f"s_add_u32 s{sT0}, s{sT0}, {OPS_OFF}")
    A(f"buffer_store_dwordx4 v[{vF}:{vF+3}], v{vL16}, s[{S_H}:{S_H+3}], s{sT0} offen sc1")
    A(f"s_mov_b32 s{sPEND}, 1")
    A.label("K2_GU")
    A(f"s_mov_b32 s{sC}, s{sNC}")
    A(f"s_mov_b32 s{sROW0}, s{sNROW}")
    A(f"s_mov_b32 s{sWOFFL}, s{sNWOFF}")
    A(f"s_mov_b32 s{sJ}, s{sNJ}")
    A(f"s_sub_u32 s{sNG}, s{sNG}, 1")
    A(f"s_add_u32 s{sGI}, s{sGI}, 16")
    PG.issue(A, PG.wgroup(2, sWOFFL, sT3) + PG.xgroup(2, sJ, sT3))
    A("s_waitcnt vmcnt(32)")
    A("s_barrier")
    def w0(A): pass
    def pend_hook(A):
        lab = f"PH_{len(A.L)}"
        A(f"s_cmp_eq_u32 s{sPEND}, 0")
        A(f"s_cbranch_scc1 {lab}")
        A(f"s_cmp_eq_u32 s{sPEND}, 1")
        A(f"s_cbranch_scc0 {lab}B")
        flag_set(A, 1)
        A(f"s_branch {lab}C")
        A.label(lab + "B")
        arrive(A, sPCELL)
        A.label(lab + "C")
        A(f"s_mov_b32 s{sPEND}, 0")
        A.label(lab)
    def nextp(A):
        gu_next_params_keep(A)
    waitsG = {0: [f"s_cmp_eq_u32 s{sPEND}, 1", "s_cbranch_scc0 K2_W8", "s_waitcnt vmcnt(29)", "s_branch K2_W9", "K2_W8:", "s_waitcnt vmcnt(20)", "K2_W9:"],
              1: ["s_waitcnt vmcnt(12)"], 2: ["s_waitcnt vmcnt(12)"], 3: ["s_waitcnt vmcnt(12)"],
              4: ["s_waitcnt vmcnt(12)"], 5: ["s_waitcnt vmcnt(0)"], 6: []}
    tailsG = {j: PG.wgroup(j + 3, sWOFFL, sT3) + PG.xgroup(j + 3, sJ, sT3) for j in range(4)}
    tailsG[5] = PG.wgroup(0, sNWOFF, sT3) + PG.xgroup(0, sNJ, sT3)
    tailsG[6] = PG.wgroup(1, sNWOFF, sT3) + PG.xgroup(1, sNJ, sT3)
    def hook4(A):
        gu_next_params(A)
        A(f"s_cmp_eq_u32 s{sNG}, 0")
        A(f"s_cselect_b32 s{S_X+2}, 0, {XN_SIZE}")
    PG.main(A, waitsG, tailsG, {1: pend_hook, 4: hook4})
    A(f"s_mul_i32 s{sT0}, s{sROW0}, {184*1024}")
    A(f"s_lshl_b32 s{sT1}, s{sC}, 12")
    A(f"s_add_u32 s{sT0}, s{sT0}, s{sT1}")
    A(f"s_add_u32 s{sT0}, s{sT0}, {128*1024}")
    n = 0
    for qt in range(2):
        for u in range(4):
            b = vF + (n % 2) * 24; n += 1
            for k in range(2):
                ft = 2 * u + k
                for r in range(4):
                    A(f"v_accvgpr_read_b32 v{b+4*k+r}, a{(ft*2+qt)*4+r}")
                    A(f"v_accvgpr_read_b32 v{b+8+4*k+r}, a{((ft+8)*2+qt)*4+r}")
            for e in range(8):
                A(f"v_mul_f32 v{b+e}, v{b+e}, v{b+8+e}")
            for e in range(4):
                A(f"v_cvt_pk_bf16_f32 v{b+16+e}, v{b+2*e}, v{b+2*e+1}")
            A(f"buffer_store_dwordx4 v[{b+16}:{b+19}], v{vL16}, s[{S_AF}:{S_AF+3}], s{sT0} offen offset:{u*1024}{SC()}")
        A(f"s_add_u32 s{sT0}, s{sT0}, {184*1024}")
    if G.FUSED:
        A(f"s_lshr_b32 s{sPCELL}, s{sROW0}, 3"); A(f"s_lshl_b32 s{sPCELL}, s{sPCELL}, 2"); A(f"s_add_u32 s{sPCELL}, s{sPCELL}, 2")
        A(f"s_cmp_ge_u32 s{sC}, 3"); A(f"s_addc_u32 s{sPCELL}, s{sPCELL}, 0")
        A(f"s_lshl_b32 s{sPCELL}, s{sPCELL}, 8"); A(f"s_add_u32 s{sPCELL}, s{sPCELL}, {FL_AF}")
        A(f"s_mov_b32 s{sPEND}, 2")
    A(f"s_cmp_eq_u32 s{sNG}, 0")
    A("s_cbranch_scc0 K2_GU")
    A("s_branch K2_FIN")
    A.label("K2_BLO")
    A(f"s_mov_b32 s{sT3}, s{sROW0}")
    A(f"s_mov_b32 s{sSTATE}, 2")
    A(f"s_sub_u32 s{sQB}, 15, s{sI_}")
    A(f"s_mov_b32 s{sF}, s{sA}")
    A(f"s_lshl_b32 s{sE}, s{sQB}, 2")
    A(f"s_add_u32 s{sE}, s{sE}, 4")
    A(f"s_mov_b32 s{sJ}, s{sROW0}")
    attn_params(A)
    for j in range(3): issue_group(A, kv_group("K", j))
    A("s_nop 7")
    xreduce(A, [vL, vL + 1], "v_add_f32", [vT[2], vT[3]])
    A(f"v_rcp_f32 v{vT[0]}, v{vL}")
    A(f"v_rcp_f32 v{vT[1]}, v{vL+1}")
    af_off(A)
    fin_norm_store(A, S_AF, 184 * 1024, SC())
    row0(A, sROW0, sQB)
    flag_wait(A, 0)
    h_off(A, 0)
    for k in range(16):
        if k % 4 == 0 and k: A(f"s_add_u32 s{sT0}, s{sT0}, 4096")
        A(f"buffer_load_dwordx4 v[{vQ+4*k}:{vQ+4*k+3}], v{vL16}, s[{S_H}:{S_H+3}], s{sT0} offen offset:{(k%4)*1024} sc1")
    for g in (kv_group("V", 0), kv_group("V", 1), kv_group("K", 3), kv_group("V", 2)): issue_group(A, g)
    A(f"s_add_u32 s{sOFF}, s{sOFF}, {4*16384}")
    if G.FUSED: A(f"s_mov_b32 s{sHOOK}, s{sREM}")
    else: A(f"s_mov_b32 s{sHOOK}, -1")
    o_zero(A)
    A("s_waitcnt vmcnt(16)")
    A("s_branch K2_GO")
    A.label("K2_MERGE")
    A("s_nop 7")
    xreduce(A, [vL, vL + 1], "v_add_f32", [vT[2], vT[3]])
    flag_wait(A, 1)
    A(f"s_lshl_b32 s{sT0}, s{sPAIR}, 12")
    A(f"s_lshl_b32 s{sT1}, s{sW}, 10")
    A(f"s_add_u32 s{sT0}, s{sT0}, s{sT1}")
    A(f"s_add_u32 s{sT0}, s{sT0}, {OPS_OFF}")
    A(f"buffer_load_dwordx4 v[72:75], v{vL16}, s[{S_H}:{S_H+3}], s{sT0} offen sc1")
    h_off(A, OPB_OFF)
    for k in range(16):
        if k % 4 == 0 and k: A(f"s_add_u32 s{sT0}, s{sT0}, 4096")
        A(f"buffer_load_dwordx4 v[{vQ+4*k}:{vQ+4*k+3}], v{vL16}, s[{S_H}:{S_H+3}], s{sT0} offen offset:{(k%4)*1024} sc1")
    A("s_waitcnt vmcnt(16)")
    wA = [76, 77]; wBf = [78, 79]
    for qt in range(2):
        A(f"v_min_f32 v80, v{72+qt}, v{vNEGM+4*qt}")
        A(f"v_sub_f32 v81, v80, v{72+qt}")
        A(f"v_sub_f32 v82, v80, v{vNEGM+4*qt}")
        A(f"v_exp_f32 v81, v81")
        A(f"v_exp_f32 v82, v82")
        A("s_nop 0")
        A(f"v_mul_f32 v81, v81, v{74+qt}")
        A(f"v_fma_f32 v83, v82, v{vL+qt}, v81")
        A(f"v_rcp_f32 v83, v83")
        A("s_nop 0")
        A(f"v_mul_f32 v{wA[qt]}, v81, v83")
        A(f"v_mul_f32 v{wBf[qt]}, v82, v83")
    af_off(A)
    n = 0
    for qt in range(2):
        for u in range(8):
            b = 84 + (n % 2) * 20; n += 1
            pa = vQ + (qt * 8 + u) * 4
            for k in range(2):
                for r in range(4):
                    A(f"v_accvgpr_read_b32 v{b+4*k+r}, a{((2*u+k)*2+qt)*4+r}")
            for e in range(8):
                A(f"v_mul_f32 v{b+e}, v{b+e}, v{wBf[qt]}")
            A(f"s_waitcnt vmcnt({min(15 - (qt*8+u) + (qt*8+u), 63) if False else 15})") if False else None
            A(f"s_waitcnt vmcnt(15)")
            for e in range(4):
                A(f"v_lshlrev_b32 v{b+8+2*e}, 16, v{pa+e}")
                A(f"v_and_b32 v{b+9+2*e}, 0xffff0000, v{pa+e}")
            for e in range(8):
                A(f"v_fmac_f32 v{b+e}, v{b+8+e}, v{wA[qt]}")
            for e in range(4):
                A(f"v_cvt_pk_bf16_f32 v{b+16+e}, v{b+2*e}, v{b+2*e+1}")
            if u == 4: A(f"s_add_u32 s{sT0}, s{sT0}, 4096")
            A(f"buffer_store_dwordx4 v[{b+16}:{b+19}], v{vL16}, s[{S_AF}:{S_AF+3}], s{sT0} offen offset:{(u%4)*1024}{SC()}")
        A(f"s_add_u32 s{sT0}, s{sT0}, {184*1024 - 4096}")
    if G.FUSED:
        af_cell_head(A, sPCELL, sQB)
        A(f"s_mov_b32 s{sPEND}, 2")
    A.label("K2_FIN")

def gen_k2(A):
    name = "k2_attn_kernel"
    kernel_header(A, name)
    A("s_cmp_ge_u32 s2, 256")
    A("s_cbranch_scc1 K2_END")
    stamp(A, 0); rstamp(A, 5)
    A(f"s_load_dwordx2 s[{sWS}:{sWS+1}], s[0:1], {KA['ws']}")
    A(f"s_load_dwordx2 s[54:55], s[0:1], {KA['wq']}")
    A(f"s_load_dwordx4 s[56:59], s[0:1], {KA['wg']}")
    A("v_lshrrev_b32 v1, 6, v0")
    A(f"v_and_b32 v{vLANE}, 63, v0")
    A(f"v_readfirstlane_b32 s{sW}, v1")
    k2_body(A)
    if G.STAMP: A("s_waitcnt vmcnt(0) lgkmcnt(0)")
    stamp(A, 4)
    stamp_flush(A, 6, sWS, sWS + 1, sW, kidx=1)
    A.label("K2_END")
    A("s_endpgm")
    return name, NVGPR, 128


def k1_pre_epilogue(A, variant, DBG):
    PQ = Proj("Q")
    fstamp(A, 0)
    lab = f"PE{variant}"
    K1POLL = 220
    A(f"s_cmp_eq_u32 s{sW}, 0"); A(f"s_cbranch_scc0 {lab}_OK")
    A("s_waitcnt vmcnt(16)")
    srd(A, 48, DBG, DBG + 1, 256)
    A("v_mov_b32 v11, 0")
    A("s_mov_b32 s52, 0x10000")
    A.label(f"{lab}_P")
    A(f"v_readfirstlane_b32 s53, v{K1POLL}")
    A("s_cmp_ge_u32 s53, 256"); A(f"s_cbranch_scc1 {lab}_OK")
    A("s_sub_u32 s52, s52, 1"); A("s_cmp_eq_u32 s52, 0"); A(f"s_cbranch_scc1 {lab}_OK")
    A("s_sleep 2")
    A(f"buffer_load_dword v{K1POLL}, v11, s[48:51], 0 offen sc1")
    A("s_waitcnt vmcnt(0)")
    A(f"s_branch {lab}_P")
    A.label(f"{lab}_OK")
    A("s_barrier")
    A("s_lshr_b32 s52, s2, 3")
    A("s_bfe_u32 s53, s52, 0x30001")
    A("s_sub_u32 s52, 15, s53")
    A("s_cmp_lt_u32 s2, 128")
    A("s_cselect_b32 s52, s52, s53")
    A("s_lshl_b32 s52, s52, 3"); A(f"s_lshl_b32 s53, s{sW}, 1"); A("s_add_u32 s52, s52, s53")
    A(f"s_mul_i32 s{sJ}, s52, {14*1024}")
    srd(A, S_X, sWS, sWS + 1, XN_SIZE, XN_OFF)
    A(f"v_lshlrev_b32 v{vL16}, 4, v{vLANE}")
    for q in range(4): A(f"v_mov_b32 v{vVOW+q}, v{216+q}")
    A(f"s_lshl_b32 s{sWB}, s{sW}, 12")
    A(f"s_lshl_b32 s46, s{sW}, 17"); A(f"s_lshl_b32 s52, s{sHEAD}, 9"); A("s_add_u32 s46, s46, s52")
    PQ.issue(A, PQ.xgroup(0, sJ, sT3) + PQ.xgroup(1, sJ, sT3) + PQ.wgroup(2, 46, sT3) + PQ.xgroup(2, sJ, sT3))
G.k1_pre_epilogue = k1_pre_epilogue
```

```python
from gen_common import *
import gen_common as G
import os

MF = "v_mfma_f32_16x16x32_bf16"
vLANE, vL16 = 2, 3
vT = [4, 5, 6, 7, 8, 9]
vVOW = 10
vXO = 12
vWR = 13
vFR = 28
vAF = 60
NFR = 8; DPRE = 5
STG = 32768

(sW, sCB, sRB, sS, sT0, sT1, sT2, sKS, sNST, sST, sAOFF, sWM0, sTT, sKL, sLD, sCOL) = range(30, 46)
S_A, S_W, S_P, S_X, S_O, S_D = 4, 8, 12, 16, 20, 24
sWS = 28
P3_WG = 4 * 6 * 1024

def k3_body(A):
    fused = G.FUSED
    A(f"s_load_dwordx2 s[{sWS}:{sWS+1}], s[0:1], {KA['ws']}")
    A(f"s_load_dwordx2 s[46:47], s[0:1], {KA['wo']}")
    A(f"s_load_dwordx2 s[48:49], s[0:1], {KA['wd']}")
    A(f"s_load_dwordx2 s[50:51], s[0:1], {KA['x']}")
    A(f"s_load_dwordx4 s[52:55], s[0:1], {KA['out']}")
    A("v_lshrrev_b32 v1, 6, v0")
    A(f"v_and_b32 v{vLANE}, 63, v0")
    A(f"v_readfirstlane_b32 s{sW}, v1")
    A(f"v_lshlrev_b32 v{vL16}, 4, v{vLANE}")
    A("s_and_b32 s3, s2, 7")
    A(f"s_lshr_b32 s{sT0}, s2, 3")
    A(f"s_and_b32 s{sCB}, s{sT0}, 3")
    A(f"s_lshr_b32 s{sRB}, s{sT0}, 2")
    A(f"s_lshr_b32 s{sT1}, s3, 2")
    A(f"s_lshl_b32 s{sT1}, s{sT1}, 3")
    A(f"s_add_u32 s{sRB}, s{sRB}, s{sT1}")
    A(f"s_and_b32 s{sS}, s3, 3")
    A(f"s_lshl_b32 s{sTT}, s{sRB}, 2")
    A(f"s_add_u32 s{sTT}, s{sTT}, s{sCB}")
    A(f"s_mul_i32 s{sKS}, s{sS}, 48")
    A(f"s_cmp_eq_u32 s{sS}, 3")
    A(f"s_cselect_b32 s{sKS}, 140, s{sKS}")
    A(f"s_cmp_ge_u32 s{sS}, 2")
    A(f"s_cselect_b32 s{sNST}, 11, 12")
    A(f"s_mul_i32 s{sCOL}, s{sCB}, 224")
    A(f"s_and_b32 s{sCOL}, s{sCOL}, 0xffffffc0")
    A("s_waitcnt lgkmcnt(0)")
    srd(A, S_A, sWS, sWS + 1, AF_SIZE, AF_OFF)
    srd(A, S_W, 46, 47, 4096 * 896)
    srd(A, S_P, sWS, sWS + 1, 64 * 4 * 3 * 4 * 2048, P3_OFF)
    srd(A, S_X, 50, 51, 2048 * 896)
    srd(A, S_O, 52, 53, 2048 * 896)
    srd(A, S_D, sWS, sWS + 1, 65536, FL_OFF + FL_K3)
    A(f"v_lshrrev_b32 v{vT[0]}, 4, v{vLANE}")
    A(f"v_and_b32 v{vT[1]}, 15, v{vLANE}")
    for par in range(2):
        A(f"v_add_u32 v{vT[2]}, {4*par}, v{vT[0]}")
        A(f"v_lshlrev_b32 v{vT[2]}, 1, v{vT[2]}")
        A(f"v_xor_b32 v{vT[2]}, v{vT[2]}, v{vT[1]}")
        A(f"v_lshlrev_b32 v{vT[2]}, 4, v{vT[2]}")
        A(f"v_mul_u32_u24 v{vT[3]}, 896, v{vT[0]}")
        A(f"v_add_u32 v{vVOW+par}, v{vT[2]}, v{vT[3]}")
    VQ = 188
    for q in range(8):
        A(f"v_add_u32 v{VQ+q}, {q*3584 - (q&3)*1024}, v{vVOW+(q&1)}")
    A(f"v_lshrrev_b32 v{vT[0]}, 4, v{vLANE}")
    A(f"v_bfe_u32 v{vT[1]}, v{vLANE}, 2, 2")
    A(f"v_lshl_add_u32 v{vT[2]}, v{vT[0]}, 2, v{vT[1]}")
    A(f"v_and_b32 v{vT[3]}, 7, v{vT[2]}")
    A(f"v_lshlrev_b32 v{vT[3]}, 1, v{vT[3]}")
    A(f"v_lshlrev_b32 v{vT[2]}, 8, v{vT[2]}")
    A(f"v_and_b32 v{vT[4]}, 1, v{vLANE}")
    A(f"v_lshl_add_u32 v{vT[2]}, v{vT[4]}, 3, v{vT[2]}")
    A(f"v_bfe_u32 v{vT[4]}, v{vLANE}, 1, 1")
    A(f"s_and_b32 s{sT0}, s{sCB}, 1")
    A(f"s_lshl_b32 s{sT0}, s{sT0}, 1")
    A(f"v_add_u32 v{vT[4]}, s{sT0}, v{vT[4]}")
    for ct in range(7):
        A(f"v_add_u32 v{vT[5]}, {2*ct}, v{vT[4]}")
        A(f"v_xor_b32 v{vT[5]}, v{vT[5]}, v{vT[3]}")
        A(f"v_lshl_add_u32 v{vWR+ct}, v{vT[5]}, 4, v{vT[2]}")
        A(f"v_add_u32 v{vWR+7+ct}, 65536, v{vWR+ct}")
    A(f"s_lshl_b32 s{sAOFF}, s{sRB}, 3")
    A(f"s_lshl_b32 s{sT0}, s{sW}, 1")
    A(f"s_add_u32 s{sAOFF}, s{sAOFF}, s{sT0}")
    A(f"s_mul_i32 s{sAOFF}, s{sAOFF}, {184*1024}")
    A(f"s_lshl_b32 s{sT0}, s{sKS}, 10")
    A(f"s_add_u32 s{sAOFF}, s{sAOFF}, s{sT0}")
    A(f"s_lshl_b32 s{sWM0}, s{sW}, 13")
    A(f"s_mov_b32 s{sLD}, 0")
    A("s_and_b32 s57, s47, 0xffff")
    A("s_and_b32 s56, s49, 0xffff")
    A(f"s_mov_b32 s58, {4096*896}")

    def loads(slot):
        o = []
        o.append([f"s_cmp_ge_u32 s{sLD}, s{sNST}",
                  f"s_cselect_b32 s{S_A+2}, 0, {0 if os.environ.get('K3NOA') else AF_SIZE}",
                  f"s_cselect_b32 s{sKL}, 1, 0"])
        o.append([f"s_cmp_ge_u32 s{sKS}, 128",
                  f"s_cselect_b32 s{S_W}, s48, s46",
                  f"s_cselect_b32 s{S_W+1}, s56, s57"])
        o.append([f"s_cselect_b32 s{S_W+2}, {1792*896}, s58",
                  f"s_cselect_b32 s{sT1}, 128, 0",
                  f"s_sub_u32 s{sT0}, s{sKS}, s{sT1}"])
        o.append([f"s_add_u32 s{sT0}, s{sT0}, s{sW}",
                  f"s_mul_i32 s{sT0}, s{sT0}, {32*896}",
                  f"s_add_u32 s{sT0}, s{sT0}, s{sCOL}"])
        o.append([f"s_cmp_eq_u32 s{sKL}, 1" if not os.environ.get('K3NOW') else f"s_cmp_eq_u32 s{sKL}, s{sKL}",
                  f"s_cselect_b32 s{S_W+2}, 0, s{S_W+2}",
                  f"s_add_u32 m0, s{sWM0}, {slot*STG}"])
        d = []
        for q in range(8):
            if q == 4: d.append(f"s_add_u32 m0, s{sWM0}, {slot*STG + 4096}")
            d.append(f"buffer_load_dwordx4 v{VQ+q}, s[{S_W}:{S_W+3}], s{sT0} offen offset:{(q%4)*1024} lds")
        al = [f"s_add_u32 s{sT2}, s{sAOFF}, {184*1024}"]
        for kk in range(4):
            for rt in range(2):
                r = vAF + ((slot * 4 + kk) * 2 + rt) * 4
                al.append(f"buffer_load_dwordx4 v[{r}:{r+3}], v{vL16}, s[{S_A}:{S_A+3}], s{sAOFF if rt == 0 else sT2} offen offset:{kk*1024}{' sc1' if fused else ''}")
        adv = [f"s_add_u32 s{sAOFF}, s{sAOFF}, 4096", f"s_add_u32 s{sKS}, s{sKS}, 4", f"s_add_u32 s{sLD}, s{sLD}, 1"]
        return o, d, al, adv
    if not fused:
        for slot in range(3):
            o, d, al, adv = loads(slot)
            for grp in o:
                for x in grp: A(x)
            A("s_nop 0")
            for x in d:
                A(x)
                if x.startswith("s_add_u32 m0"): A("s_nop 0")
            for x in al: A(x)
            for x in adv: A(x)
    else:
        fstamp(A, 3)
        A("s_barrier")
        A(f"s_mov_b32 s59, s{sAOFF}")
        for slot in range(3):
            o, d, al, adv = loads(slot)
            for grp in o:
                for x in grp: A(x)
            A("s_nop 0")
            for x in d:
                A(x)
                if x.startswith("s_add_u32 m0"): A("s_nop 0")
            for x in adv[1:]: A(x)
        A("s_waitcnt vmcnt(24)")
        A("s_barrier")
        G.k2_final_arrive(A)
        A(f"s_cmp_eq_u32 s{sW}, 0"); A("s_cbranch_scc0 K3_AFOK")
        A(f"s_lshl_b32 s{sT0}, s{sRB}, 2"); A(f"s_add_u32 s{sT0}, s{sT0}, s{sS}"); A(f"s_lshl_b32 s{sT0}, s{sT0}, 8")
        A(f"s_add_u32 s{sT0}, s{sT0}, {FL_AF - FL_K3}")
        A(f"v_mov_b32 v{vT[1]}, s{sT0}")
        A(f"s_cmp_ge_u32 s{sS}, 2"); A(f"s_cselect_b32 s{sT1}, 7, 6"); A(f"s_cmp_eq_u32 s{sS}, 3"); A(f"s_cselect_b32 s{sT1}, 11, s{sT1}")
        A(f"s_mov_b32 s{sT2}, 0x10000")
        A.label("K3_AFP")
        A(f"buffer_load_dword v{vT[0]}, v{vT[1]}, s[{S_D}:{S_D+3}], 0 offen sc1")
        A("s_waitcnt vmcnt(0)")
        A(f"v_readfirstlane_b32 s{sT0}, v{vT[0]}")
        A(f"s_cmp_ge_u32 s{sT0}, s{sT1}"); A("s_cbranch_scc1 K3_AFOK")
        A(f"s_sub_u32 s{sT2}, s{sT2}, 1"); A(f"s_cmp_eq_u32 s{sT2}, 0"); A("s_cbranch_scc1 K3_AFOK")
        A("s_sleep 4")
        A("s_branch K3_AFP")
        A.label("K3_AFOK")
        A("s_barrier")
        A(f"s_mov_b32 s{S_A+2}, {AF_SIZE}")
        for slot in range(3):
            o, d, al, adv = loads(slot)
            for x in al: A(x)
            A(adv[0])
    for i in range(56):
        A(f"v_accvgpr_write_b32 a{i}, 0")
    A(f"s_mov_b32 s{sST}, 0")
    stamp(A, 1)

    def rd(n, slot, ringbase):
        kk, ct = n // 7, n % 7
        r = vFR + 4 * ((ringbase + n) % NFR)
        off = (slot % 2) * 32768 + kk * 8192
        a = vWR + ct + (7 if slot >= 2 else 0)
        return [f"ds_read_b64_tr_b16 v[{r}:{r+1}], v{a} offset:{off}",
                f"ds_read_b64_tr_b16 v[{r+2}:{r+3}], v{a} offset:{off + 4096}"]
    fstamp(A, 4)
    A("s_waitcnt vmcnt(16)" if fused else "s_waitcnt vmcnt(32)")
    A("s_barrier")
    for n in range(DPRE):
        for x in rd(n, 0, 0): A(x)
    A(".p2align 6")
    A.label("K3_LOOP")
    for slot in range(4):
        mf = []
        for n in range(28):
            kk, ct = n // 7, n % 7
            r = vFR + 4 * ((slot * 28 + n) % NFR)
            for rt in range(2):
                acc = (rt * 7 + ct) * 4
                b = vAF + ((slot * 4 + kk) * 2 + rt) * 4
                mf.append(f"{MF} {ar(acc,4)}, {vr(r,4)}, {vr(b,4)}, {ar(acc,4)}")
        sc = Sched(mf, f"k3s{slot}")
        sc.S(-1, f"s_waitcnt vmcnt(16) lgkmcnt({2*(DPRE-1)})")
        sc.S(-1, "s_barrier")
        for n in range(28):
            sc.S(2 * n, f"s_waitcnt lgkmcnt({2*(DPRE-2)})")
            m = n + DPRE
            x = rd(m, slot, slot * 28) if m < 28 else rd(m - 28, (slot + 1) % 4, slot * 28 + 28)
            sc.V(2 * n, x[0]); sc.V(2 * n, x[1])
        o, d, al, adv = loads((slot + 3) % 4)
        for k, grp in enumerate(o): sc.s[2 * k + 1] += grp
        vm = d + al
        k = 0
        for x in vm:
            g = 11 + 2 * int(k * 22 / 15)
            if x.startswith("s_"):
                sc.s[g - 1].append(x)
            else:
                sc.v[g].append(x); k += 1
        free = [g for g in range(11, 56, 2) if not sc.v[g]]
        sc.s[free[0]].append(f"s_add_u32 s{sST}, s{sST}, 1")
        sc.s[free[1]].append(adv[1]); sc.s[free[1]].append(adv[2])
        post = [adv[0], f"s_cmp_ge_u32 s{sST}, s{sNST}"]
        sc.emit(A)
        for x in post: A(x)
        A("s_cbranch_scc1 K3_EPI" if slot < 3 else "s_cbranch_scc0 K3_LOOP")
    A.label("K3_EPI")
    A("s_waitcnt vmcnt(0) lgkmcnt(0)")
    stamp(A, 2)
    A("s_nop 7")
    B = 60
    for t in range(14):
        for r in range(4):
            A(f"v_accvgpr_read_b32 v{B+64+r}, a{t*4+r}") if False else None
    for t in range(16):
        if t < 14:
            for r in range(4):
                A(f"v_accvgpr_read_b32 v{vFR+4*(t%4)+r}, a{t*4+r}")
            A(f"v_cvt_pk_bf16_f32 v{B+PK(t)}, v{vFR+4*(t%4)}, v{vFR+4*(t%4)+1}")
            A(f"v_cvt_pk_bf16_f32 v{B+PK(t)+1}, v{vFR+4*(t%4)+2}, v{vFR+4*(t%4)+3}")
        else:
            A(f"v_mov_b32 v{B+PK(t)}, 0")
            A(f"v_mov_b32 v{B+PK(t)+1}, 0")
    for d in range(4):
        lab = f"K3_SK{d}"
        A(f"s_cmp_eq_u32 s{sS}, {d}")
        A(f"s_cbranch_scc1 {lab}")
        A(f"s_sub_u32 s{sT0}, s{sS}, {d+1}")
        A(f"s_and_b32 s{sT0}, s{sT0}, 3")
        A(f"s_lshl_b32 s{sT1}, s{sTT}, 2")
        A(f"s_add_u32 s{sT1}, s{sT1}, {d}")
        A(f"s_mul_i32 s{sT1}, s{sT1}, 3")
        A(f"s_add_u32 s{sT1}, s{sT1}, s{sT0}")
        A(f"s_lshl_b32 s{sT1}, s{sT1}, 2")
        A(f"s_add_u32 s{sT1}, s{sT1}, s{sW}")
        A(f"s_lshl_b32 s{sT1}, s{sT1}, 11")
        A(f"buffer_store_dwordx4 v[{B+8*d}:{B+8*d+3}], v{vL16}, s[{S_P}:{S_P+3}], s{sT1} offen sc1")
        A(f"buffer_store_dwordx4 v[{B+8*d+4}:{B+8*d+7}], v{vL16}, s[{S_P}:{S_P+3}], s{sT1} offen offset:1024 sc1")
        A.label(lab)
    A(f"v_and_b32 v{vT[0]}, 15, v{vLANE}")
    A(f"s_lshl_b32 s{sT0}, s{sRB}, 7")
    A(f"s_lshl_b32 s{sT1}, s{sW}, 5")
    A(f"s_add_u32 s{sT0}, s{sT0}, s{sT1}")
    A(f"v_add_u32 v{vT[0]}, s{sT0}, v{vT[0]}")
    A(f"v_mul_u32_u24 v{vXO}, 896, v{vT[0]}")
    A(f"v_lshrrev_b32 v{vT[2]}, 4, v{vLANE}")
    A(f"v_lshl_add_u32 v{vXO}, v{vT[2]}, 3, v{vXO}")
    A(f"s_mul_i32 s{sT1}, s{sCB}, 224")
    A(f"v_add_u32 v{vXO}, s{sT1}, v{vXO}")
    for k in range(4):
        A(f"s_add_u32 s{62+k}, s{sS}, {4*k}")
        A(f"s_cmp_ge_u32 s{62+k}, 7")
        A(f"s_cselect_b32 s{sT0}, {16*896 - 7*32}, 0")
        A(f"s_lshl_b32 s{66+k}, s{62+k}, 5")
        A(f"s_add_u32 s{66+k}, s{66+k}, s{sT0}")
    XB = 100
    for k in range(4):
        A(f"buffer_load_dwordx2 v[{XB+2*k}:{XB+2*k+1}], v{vXO}, s[{S_X}:{S_X+3}], s{66+k} offen")
    OW = 108
    for sv in range(4):
        A(f"s_cmp_eq_u32 s{sS}, {sv}")
        A(f"s_cbranch_scc0 K3_OW{sv}")
        for k in range(4):
            t = sv + 4 * k
            for r in range(4):
                if t < 14: A(f"v_accvgpr_read_b32 v{OW+4*k+r}, a{t*4+r}")
                else: A(f"v_mov_b32 v{OW+4*k+r}, 0")
        A.label(f"K3_OW{sv}")
    A("s_waitcnt vmcnt(0)")
    A("s_barrier")
    A(f"s_cmp_eq_u32 s{sW}, 0")
    A("s_cbranch_scc0 K3_GO")
    A(f"s_lshl_b32 s{sT0}, s{sTT}, 8")
    A(f"v_mov_b32 v{vT[1]}, s{sT0}")
    A(f"v_mov_b32 v{vT[0]}, 1")
    A(f"v_cmp_eq_u32 vcc, 0, v{vLANE}")
    A("s_and_saveexec_b64 s[60:61], vcc")
    A(f"s_mov_b32 s{sT0}, 0")
    A("s_cbranch_execz K3_ATX")
    A(f"buffer_atomic_add v{vT[0]}, v{vT[1]}, s[{S_D}:{S_D+3}], 0 offen sc0")
    A("s_waitcnt vmcnt(0)")
    A(f"v_readfirstlane_b32 s{sT0}, v{vT[0]}")
    A.label("K3_ATX")
    A("s_mov_b64 exec, s[60:61]")
    A(f"s_cmp_ge_u32 s{sT0}, 3")
    A("s_cbranch_scc1 K3_GO")
    A(f"s_mov_b32 s{sT2}, 0x10000")
    A.label("K3_POLL")
    A(f"buffer_load_dword v{vT[0]}, v{vT[1]}, s[{S_D}:{S_D+3}], 0 offen sc1")
    A("s_waitcnt vmcnt(0)")
    A(f"v_readfirstlane_b32 s{sT0}, v{vT[0]}")
    A(f"s_cmp_ge_u32 s{sT0}, 4")
    A("s_cbranch_scc1 K3_GO")
    A(f"s_sub_u32 s{sT2}, s{sT2}, 1")
    A(f"s_cmp_eq_u32 s{sT2}, 0")
    A("s_cbranch_scc1 K3_GO")
    A("s_sleep 1")
    A("s_branch K3_POLL")
    A.label("K3_GO")
    A("s_barrier")
    A(f"s_lshl_b32 s{sT0}, s{sTT}, 2")
    A(f"s_add_u32 s{sT0}, s{sT0}, s{sS}")
    A(f"s_mul_i32 s{sT0}, s{sT0}, 12")
    A(f"s_add_u32 s{sT0}, s{sT0}, s{sW}")
    A(f"s_lshl_b32 s{sT0}, s{sT0}, 11")
    R = 130
    for idx in range(3):
        for h in range(2):
            r = R + (idx * 2 + h) * 4
            A(f"buffer_load_dwordx4 v[{r}:{r+3}], v{vL16}, s[{S_P}:{S_P+3}], s{sT0} offen offset:{h*1024} sc1")
        if idx < 2: A(f"s_add_u32 s{sT0}, s{sT0}, {4*2048}")
    A("s_waitcnt vmcnt(0)")
    for k in range(4):
        if k == 3:
            A(f"s_cmp_ge_u32 s{62+3}, 14")
            A("s_cbranch_scc1 K3_FIN")
        o = OW + 4 * k
        tmp = 160 + 8 * (k % 2)
        for idx in range(3):
            src = R + (idx * 2 + k // 2) * 4 + (k % 2) * 2
            A(f"v_lshlrev_b32 v{tmp}, 16, v{src}")
            A(f"v_and_b32 v{tmp+1}, 0xffff0000, v{src}")
            A(f"v_lshlrev_b32 v{tmp+2}, 16, v{src+1}")
            A(f"v_and_b32 v{tmp+3}, 0xffff0000, v{src+1}")
            for e in range(4):
                A(f"v_add_f32 v{o+e}, v{o+e}, v{tmp+e}")
        x0, x1 = XB + 2 * k, XB + 2 * k + 1
        A(f"v_lshlrev_b32 v{tmp}, 16, v{x0}")
        A(f"v_and_b32 v{tmp+1}, 0xffff0000, v{x0}")
        A(f"v_lshlrev_b32 v{tmp+2}, 16, v{x1}")
        A(f"v_and_b32 v{tmp+3}, 0xffff0000, v{x1}")
        for e in range(4):
            A(f"v_add_f32 v{o+e}, v{o+e}, v{tmp+e}")
        A(f"v_cvt_pk_bf16_f32 v{tmp+4}, v{o}, v{o+1}")
        A(f"v_cvt_pk_bf16_f32 v{tmp+5}, v{o+2}, v{o+3}")
        A(f"buffer_store_dwordx2 v[{tmp+4}:{tmp+5}], v{vXO}, s[{S_O}:{S_O+3}], s{66+k} offen")
    A.label("K3_FIN")

def gen_k3(A):
    name = "k3_out_kernel"
    kernel_header(A, name)
    A("s_cmp_ge_u32 s2, 256")
    A("s_cbranch_scc1 K3_END")
    stamp(A, 0); rstamp(A, 5)
    k3_body(A)
    stamp(A, 3)
    if G.STAMP: A("s_waitcnt vmcnt(0) lgkmcnt(0)")
    stamp(A, 4)
    stamp_flush(A, 6, sWS, sWS + 1, sW, kidx=2)
    A.label("K3_END")
    A("s_endpgm")
    return name, 196, 56

def PK(t):
    return 8 * (t & 3) + 2 * (t >> 2)
```

```python
import sys, os
sys.path.insert(0, os.path.dirname(os.path.abspath(__file__)))
from gen_common import *
import check

HEADER = open("parallel_sum__compressed_kv_cla__glu_gated_bilinear__prompt.s.ref").read().split("; Override")[0]

def build(kernels, opts=None):
    body = Asm()
    descs = []
    launches = []
    for gf, grid, block, lds in kernels:
        name, vg, ag = gf(body)
        descs.append(kernel_desc(name, vg, ag))
        launches.append(f"; @launch kernel={name} grid=({grid},1,1) block=({block},1,1) lds={lds}")
    txt = HEADER + "\n".join(launches) + "\n" + '.amdgcn_target "amdgcn-amd-amdhsa--gfx950"\n' + body.text() + "".join(descs)
    return txt

if __name__ == "__main__":
    import gen_common as G
    if os.environ.get("STAMP"): G.STAMP = True
    from gen_k1 import gen_k1
    ks = [(gen_k1, 256, 256, 163840)]
    which = sys.argv[2] if len(sys.argv) > 2 else "all"
    try:
        from gen_k2 import gen_k2
        from gen_k3 import gen_k3
        if True:
            ks += [(gen_k2, 256, 256, 163840), (gen_k3, 256, 256, 163840)]
    except ImportError:
        pass
    if os.environ.get("FUSE"):
        from gen_fused import gen_fused, NAME
        body = Asm()
        name, vg, ag = gen_fused(body)
        txt = HEADER + "; @launch grid=(256,1,1) block=(256,1,1) lds=163840\n" + '.amdgcn_target "amdgcn-amd-amdhsa--gfx950"\n' + body.text() + kernel_desc(name, vg, ag)
    else:
        txt = build(ks)
    n = check.check(txt)
    print("checker problems:", n)
    out = sys.argv[1] if len(sys.argv) > 1 else "k.s"
    open(out, "w").write(txt)
    print("wrote", out, len(txt), "bytes")
```

```python
from gen_common import *
import gen_common as G
import gen_k1, gen_k2, gen_k3, os

NAME = "parallel_sum__compressed_kv_cla__glu_gated_bilinear__prompt_kernel"

def k2_final_arrive(A):
    lab = "K2_FA"
    A(f"s_cmp_eq_u32 s{gen_k2.sPENDK}, 2")
    A(f"s_cbranch_scc0 {lab}")
    A(f"s_cmp_eq_u32 s30, 0")
    A(f"s_cbranch_scc0 {lab}")
    A(f"v_mov_b32 v4, s{gen_k2.sPCELL}")
    A("v_mov_b32 v5, 1")
    A("v_cmp_eq_u32 s[78:79], 0, v2")
    A("s_and_saveexec_b64 s[76:77], s[78:79]")
    A(f"s_cbranch_execz {lab}X")
    A("buffer_atomic_add v5, v4, s[72:75], 0 offen")
    A.label(lab + "X")
    A("s_mov_b64 exec, s[76:77]")
    A.label(lab)
G.k2_final_arrive = k2_final_arrive

def gen_fused(A):
    G.FUSED = True
    kernel_header(A, NAME)
    A("s_cmp_ge_u32 s2, 256")
    A("s_cbranch_scc1 KF_END")
    A("s_memrealtime s[100:101]")
    if not os.environ.get("NOCODEPF"):
        A("s_getpc_b64 s[4:5]")
        A.label("KF_PC0")
        A("s_lshr_b32 s3, s2, 3")
        A("v_lshrrev_b32 v1, 6, v0")
        A("s_cmp_ge_u32 s3, 13")
        A("v_readfirstlane_b32 s6, v1")
        A("s_cbranch_scc1 KF_NOPF")
        A("s_cmp_eq_u32 s6, 3")
        A("s_cbranch_scc0 KF_NOPF")
        A("v_and_b32 v1, 63, v0")
        A("v_lshlrev_b32 v1, 7, v1")
        A("s_lshl_b32 s3, s3, 13")
        A("v_add_u32 v1, s3, v1")
        A("v_min_u32 v1, KF_END - KF_PC0 - 4, v1") if False else None
        A("s_mov_b32 s7, KF_END-KF_PC0")
        A("v_min_u32 v1, s7, v1")
        A("global_load_dword v221, v1, s[4:5]")
        A.label("KF_NOPF")
    gen_k1.k1_body(A, True)
    gen_k2.k2_body(A)
    A(f"s_mov_b32 s{gen_k2.sPENDK}, s{gen_k2.sPEND}")
    gen_k3.k3_body(A)
    if G.STAMP:
        A("s_waitcnt vmcnt(0) lgkmcnt(0)")
        stamp_flush(A, 6, 28, 29, 30)
    A.label("KF_END")
    A("s_endpgm")
    return NAME, 256, 256
```

```python
from gen_common import *
import gen_common as G

MF = "v_mfma_f32_16x16x32_bf16"
THRESH = 2.0 ** 40
VBASE = 98304

vLANE = 2
vL16 = 3
vPA16, vPA32 = 4, 5
vDLT = 6
vVA = 7
vT = [9, 10, 11, 12, 13, 14, 15]
vVOW = 16
vWR = 20
vL = 28
vTS = 30
vNEGM = 32
vFR = 40
vS = [72, 88]
vE = 104
vP = [120, 128]
vQ = 136
vXN = 72
vSUM = [200, 201, 202, 203]
vVOG = 204
vF = 208
NVGPR = 256
NFR = 8
DPRE = 6

(sW, sHEAD, sQB, sT0, sT1, sT2, sREM, sMASKAT, sIDLE, sOFF, sWB, sF, sE, sTHR, sHOOK, sWOFFL, sWOFFR, sT3, sJ, sROW0) = range(30, 50)
S_X, S_WL, S_WR, S_K, S_V, S_AF = 4, 8, 12, 16, 20, 24
sWS = 28

def SC(): return ' sc1' if G.FUSED else ''
def fr(i): return vFR + 4 * (i % NFR)
def S(buf, kt, qt): return vS[buf] + (kt * 2 + qt) * 4
def E(kt, qt): return vE + (kt * 2 + qt) * 4
def kread(n, slot): return f"ds_read_b128 v[{fr(n)}:{fr(n)+3}], v{vL16} offset:{slot*16384 + n*1024}"
def vread(n, slot): return f"ds_read_b128 v[{fr(n)}:{fr(n)+3}], v{vVA} offset:{slot*16384 + n*1024}"
def kdma(slot, so=None):
    so = sOFF if so is None else so
    return (f"s_add_u32 m0, s{sWB}, {slot*16384}",
            [f"buffer_load_dwordx4 v{vL16}, s[{S_K}:{S_K+3}], s{so} offen offset:{q*1024}{SC()} lds" for q in range(4)])
def vdma(slot, so=None):
    so = sOFF if so is None else so
    return (f"s_add_u32 m0, s{sWB}, {VBASE + slot*16384}",
            [f"buffer_load_dwordx4 v{vL16}, s[{S_V}:{S_V+3}], s{so} offen offset:{q*1024}{SC()} lds" for q in range(4)])

def qk_mfmas(buf, cinit):
    mf = []
    for kt in range(2):
        for ks in range(8):
            r = fr(kt * 8 + ks)
            for qt in range(2):
                d = S(buf, kt, qt)
                c = (cinit(qt) if ks == 0 else vr(d, 4))
                mf.append(f"{MF} {vr(d,4)}, {vr(r,4)}, {vr(vQ + (qt*8+ks)*4, 4)}, {c}")
    return mf
def pv_mfmas(pb):
    mf = []
    for dt in range(16):
        r = fr(dt)
        for qt in range(2):
            acc = (dt * 2 + qt) * 4
            mf.append(f"{MF} {ar(acc,4)}, {vr(r,4)}, {vr(vP[pb] + qt*4, 4)}, {ar(acc,4)}")
    return mf
def exps(buf, kt, qt):
    return [f"v_exp_f32 v{E(kt,qt)+r}, v{S(buf,kt,qt)+r}" for r in range(4)]
def first(pb, qt):
    a = E(0, qt); t0, t1 = vSUM[2*qt], vSUM[2*qt+1]
    return [f"v_cvt_pk_bf16_f32 v{vP[pb]+qt*4}, v{a}, v{a+1}",
            f"v_add_f32 v{t0}, v{a}, v{a+1}",
            f"v_cvt_pk_bf16_f32 v{vP[pb]+qt*4+1}, v{a+2}, v{a+3}",
            f"v_add_f32 v{t1}, v{a+2}, v{a+3}",
            f"v_add_f32 v{t0}, v{t0}, v{t1}"]
def second(pb, qt):
    b = E(1, qt); t0, t1 = vSUM[2*qt], vSUM[2*qt+1]
    return [f"v_cvt_pk_bf16_f32 v{vP[pb]+qt*4+2}, v{b}, v{b+1}",
            f"v_add_f32 v{t1}, v{b}, v{b+1}",
            f"v_cvt_pk_bf16_f32 v{vP[pb]+qt*4+3}, v{b+2}, v{b+3}",
            f"v_add_f32 v{t0}, v{t0}, v{t1}",
            f"v_add_f32 v{t1}, v{b+2}, v{b+3}",
            f"v_add_f32 v{vTS+qt}, v{t0}, v{t1}"]
def check_ops():
    return [f"v_add_f32 v{vT[4]}, v{vTS}, v{vTS+1}",
            f"v_cmp_nge_f32 vcc, s{sTHR}, v{vT[4]}"]
def l_ops():
    return [f"v_add_f32 v{vL}, v{vL}, v{vTS}", f"v_add_f32 v{vL+1}, v{vL+1}, v{vTS+1}"]

def mask_block(A, buf):
    A("s_nop 7")
    A(f"v_mov_b32 v{vT[6]}, 0xff800000")
    for r in range(4):
        A(f"v_cmp_gt_i32 vcc, {r}, v{vDLT}")
        A("s_nop 1")
        A(f"v_cndmask_b32 v{S(buf,0,0)+r}, v{S(buf,0,0)+r}, v{vT[6]}, vcc")
        A(f"v_cndmask_b32 v{S(buf,1,1)+r}, v{S(buf,1,1)+r}, v{vT[6]}, vcc")
        A(f"v_mov_b32 v{S(buf,1,0)+r}, v{vT[6]}")

def rowmax(A, buf, qt, dst):
    a, b = S(buf, 0, qt), S(buf, 1, qt)
    A(f"v_max3_f32 v{dst}, v{a}, v{a+1}, v{a+2}")
    A(f"v_max3_f32 v{dst}, v{dst}, v{a+3}, v{b}")
    A(f"v_max3_f32 v{dst}, v{dst}, v{b+1}, v{b+2}")
    A(f"v_max_f32 v{dst}, v{dst}, v{b+3}")

def xreduce(A, regs, op, tmp):
    for pa in (vPA16, vPA32):
        for k, r in enumerate(regs):
            A(f"ds_bpermute_b32 v{tmp[k]}, v{pa}, v{r}")
        A("s_waitcnt lgkmcnt(0)")
        for k, r in enumerate(regs):
            A(f"{op} v{r}, v{r}, v{tmp[k]}")

def lane_setup(A):
    A(f"v_lshlrev_b32 v{vL16}, 4, v{vLANE}")
    A(f"v_add_u32 v{vVA}, {VBASE}, v{vL16}")
    A(f"v_xor_b32 v{vPA16}, 16, v{vLANE}")
    A(f"v_lshlrev_b32 v{vPA16}, 2, v{vPA16}")
    A(f"v_xor_b32 v{vPA32}, 32, v{vLANE}")
    A(f"v_lshlrev_b32 v{vPA32}, 2, v{vPA32}")
    A(f"v_and_b32 v{vDLT}, 15, v{vLANE}")
    A(f"v_lshrrev_b32 v{vT[0]}, 4, v{vLANE}")
    A(f"v_lshlrev_b32 v{vT[0]}, 2, v{vT[0]}")
    A(f"v_sub_u32 v{vDLT}, v{vDLT}, v{vT[0]}")
    A(f"s_lshl_b32 s{sWB}, s{sW}, 12")
    A(f"s_mov_b32 s{sTHR}, {f32(THRESH)}")

def attn_params(A):
    A(f"s_lshl_b32 s{sT0}, s{sQB}, 2")
    A(f"s_add_u32 s{sT0}, s{sT0}, s{sW}")
    A(f"s_sub_u32 s{sT1}, s{sE}, 1")
    A(f"s_min_u32 s{sT2}, s{sT0}, s{sT1}")
    A(f"s_sub_u32 s{sIDLE}, s{sT1}, s{sT2}")
    A(f"s_sub_u32 s{sREM}, s{sT2}, s{sF}")
    A(f"s_cmp_eq_u32 s{sT2}, s{sT0}")
    A(f"s_cselect_b32 s{sMASKAT}, 1, -1")
    A(f"s_lshl_b32 s{sT0}, s{sHEAD}, 6")
    A(f"s_add_u32 s{sT1}, s{sT0}, s{sE}")
    A(f"s_lshl_b32 s{S_K+2}, s{sT1}, 14")
    A(f"s_add_u32 s{S_V+2}, s{S_K+2}, 16384")
    A(f"s_add_u32 s{sOFF}, s{sT0}, s{sF}")
    A(f"s_lshl_b32 s{sOFF}, s{sOFF}, 14")
    A(f"s_add_u32 s{sOFF}, s{sOFF}, s{sWB}")

def kv_group(kind, j):
    if kind == "K":
        d = kdma(j, sT3); add = j * 16384
    else:
        d = vdma(j, sT3); add = (j + 1) * 16384
    return [d[0], f"s_add_u32 s{sT3}, s{sOFF}, {add}"], d[1]

def issue_group(A, g):
    for x in g[0]: A(x)
    A("s_nop 0")
    for x in g[1]: A(x)

def attn_core(A, tag, hook, fill_first=None, after_first=None):
    A(f"v_mov_b32 v{vL}, 0")
    A(f"v_mov_b32 v{vL+1}, 0")
    for n in range(8): A(kread(n, 0))
    sc = Sched(qk_mfmas(0, lambda qt: "0"), "first")
    sc.S(-1, "s_waitcnt lgkmcnt(0)")
    for n in range(8, 16): sc.V(2 * (n - 8) + 1, kread(n, 0))
    sc.S(15, "s_nop 0"); sc.V(15, "s_waitcnt lgkmcnt(0)")
    free = [g for g in range(0, 32) if not sc.v[g] and not sc.s[g]]
    fi = 0
    for g_ in (kv_group("V", 0), kv_group("K", 2), kv_group("V", 1), kv_group("K", 3), kv_group("V", 2)):
        first_v = True
        for x in g_[1]:
            g = free[fi]; fi += 1
            if first_v:
                sc.s[g] += g_[0]; first_v = False
            sc.v[g].append(x)
    sc.emit(A)
    A(f"s_add_u32 s{sOFF}, s{sOFF}, {4*16384}")
    if after_first: after_first(A)
    for n in range(DPRE): A(kread(n, 1))
    A(f"s_cmp_eq_u32 s{sREM}, 0")
    A(f"s_cbranch_scc0 {tag}_NM0")
    A(f"s_cmp_eq_u32 s{sMASKAT}, 1")
    A(f"s_cbranch_scc0 {tag}_NM0")
    mask_block(A, 0)
    A.label(f"{tag}_NM0")
    A("s_nop 7")
    for qt in range(2): rowmax(A, 0, qt, vT[qt])
    xreduce(A, [vT[0], vT[1]], "v_max_f32", [vT[2], vT[3]])
    for qt in range(2):
        for r in range(4):
            A(f"v_sub_f32 v{vNEGM+qt*4+r}, 0, v{vT[qt]}")
        for kt in range(2):
            for r in range(4):
                A(f"v_sub_f32 v{S(0,kt,qt)+r}, v{S(0,kt,qt)+r}, v{vT[qt]}")
    for qt in range(2):
        for x in exps(0, 0, qt): A(x)
    A("s_nop 0")
    for qt in range(2):
        for x in first(0, qt): A(x)
    stamp(A, 2)
    A(f"s_cmp_eq_u32 s{sREM}, 0")
    A(f"s_cbranch_scc1 {tag}_LAST0")

    slow = []
    A(".p2align 6")
    A.label(f"{tag}_LOOP")
    for u in range(4):
        cur = u & 1; nxt = cur ^ 1; pb = cur
        mf = qk_mfmas(nxt, lambda qt: vr(vNEGM + qt * 4, 4)) + pv_mfmas(pb)
        sc = Sched(mf, f"step{u}")
        sc.S(-1, f"s_waitcnt vmcnt(8) lgkmcnt({DPRE-2})")
        sc.S(-1, "s_barrier")
        for p in range(32):
            m = p + DPRE
            if m < 16: rd = kread(m, (u + 1) % 4)
            elif m < 32: rd = vread(m - 16, u % 4)
            else: rd = kread(m - 32, (u + 2) % 4)
            sc.V(2 * p, rd)
            if p % 2 == 0 and p > 0: sc.S(2 * p - 1, f"s_waitcnt lgkmcnt({DPRE-2})")
        kd = kdma(u % 4); vd = vdma((u + 3) % 4)
        sc.S(16, kd[0])
        for q in range(4): sc.V(17 + 4 * q, kd[1][q])
        sc.S(48, vd[0])
        for q in range(4): sc.V(49 + 4 * q, vd[1][q])
        sc.S(4, f"s_cmp_eq_u32 s{sREM}, s{sHOOK}")
        sc.S(5, f"s_cbranch_scc1 {tag}_HOOK{u}")
        sc.S(5, f"{tag}_BACKH{u}:")
        ex = exps(cur, 1, 0) + exps(cur, 1, 1)
        for e, x in enumerate(ex): sc.V(1 + 2 * e, x)
        g0 = sc.chain(second(pb, 0), 9 + 1)
        g1 = sc.chain(second(pb, 1), 17 + 1)
        g = sc.chain(check_ops(), max(g0, g1))
        assert g <= 31, g
        sc.S(31, f"s_cbranch_vccnz {tag}_SLOW{u}")
        sc.S(31, f"{tag}_BACK{u}:")
        sc.S(32, f"s_cmp_eq_u32 s{sREM}, s{sMASKAT}")
        sc.S(33, f"s_cbranch_scc1 {tag}_MASK{u}")
        sc.S(33, f"{tag}_BACKM{u}:")
        ex = exps(nxt, 0, 0) + exps(nxt, 0, 1)
        for e, x in enumerate(ex): sc.V(33 + 2 * e, x)
        sc.chain(l_ops(), 32, gap=0)
        sc.chain(first(pb ^ 1, 0), 41 + 1)
        sc.chain(first(pb ^ 1, 1), 49 + 1)
        sc.S(60, f"s_sub_u32 s{sREM}, s{sREM}, 1")
        sc.S(62, f"s_add_u32 s{sOFF}, s{sOFF}, 16384")
        sc.S(63, f"s_cmp_eq_u32 s{sREM}, 0")
        if u < 3: sc.S(63, f"s_cbranch_scc1 {tag}_LAST{u+1}")
        else: sc.S(63, f"s_cbranch_scc0 {tag}_LOOP")
        sc.emit(A)
        slow.append((f"{u}", cur, pb, True))
    for u in range(4):
        cur = u & 1; pb = cur
        A.label(f"{tag}_LAST{u}")
        A("s_waitcnt vmcnt(8) lgkmcnt(0)")
        A("s_barrier")
        for n in range(DPRE): A(vread(n, u % 4))
        for qt in range(2):
            for x in exps(cur, 1, qt): A(x)
        A("s_nop 0")
        for qt in range(2):
            for x in second(pb, qt): A(x)
        for x in check_ops(): A(x)
        A(f"s_cbranch_vccnz {tag}_SLOWL{u}")
        A.label(f"{tag}_BACKL{u}")
        for x in l_ops(): A(x)
        sc = Sched(pv_mfmas(pb), f"last{u}")
        for p in range(16):
            m = p + DPRE
            if m < 16: sc.V(2 * p, vread(m, u % 4))
            if p % 2 == 0:
                sc.S(2 * p - 1, f"s_waitcnt lgkmcnt({max(0, min(DPRE - 2, 14 - p))})")
        vd = vdma((u + 3) % 4)
        sc.S(2, vd[0])
        for q in range(4): sc.V(5 + 4 * q, vd[1][q])
        sc.emit(A)
        slow.append((f"L{u}", cur, pb, False))
        if u < 3: A(f"s_branch {tag}_IDLE")
    A.label(f"{tag}_IDLE")
    A(f"s_cmp_eq_u32 s{sIDLE}, 0")
    A(f"s_cbranch_scc1 {tag}_DONE")
    A(f"s_sub_u32 s{sIDLE}, s{sIDLE}, 1")
    A("s_waitcnt vmcnt(0)")
    A("s_barrier")
    A(f"s_branch {tag}_IDLE")
    for u in range(4):
        A.label(f"{tag}_HOOK{u}")
        hook(A)
        A(f"s_branch {tag}_BACKH{u}")
    for u in range(4):
        A.label(f"{tag}_MASK{u}")
        mask_block(A, (u & 1) ^ 1)
        A(f"s_branch {tag}_BACKM{u}")
    for nm, cur, pb, with_next in slow:
        A.label(f"{tag}_SLOW{nm}")
        A("s_nop 7")
        A("s_nop 7")
        nxt = cur ^ 1
        for qt in range(2): rowmax(A, cur, qt, vT[qt])
        xreduce(A, [vT[0], vT[1]], "v_max_f32", [vT[2], vT[3]])
        for qt in range(2):
            A(f"v_max_f32 v{vT[qt]}, 0, v{vT[qt]}")
            A(f"v_sub_f32 v{vT[2+qt]}, 0, v{vT[qt]}")
            A(f"v_exp_f32 v{vT[2+qt]}, v{vT[2+qt]}")
        A("s_nop 0")
        for qt in range(2):
            A(f"v_mul_f32 v{vL+qt}, v{vL+qt}, v{vT[2+qt]}")
            for r in range(4):
                A(f"v_sub_f32 v{vNEGM+qt*4+r}, v{vNEGM+qt*4+r}, v{vT[qt]}")
            for kt in range(2):
                for r in range(4):
                    A(f"v_sub_f32 v{S(cur,kt,qt)+r}, v{S(cur,kt,qt)+r}, v{vT[qt]}")
                    if with_next:
                        A(f"v_sub_f32 v{S(nxt,kt,qt)+r}, v{S(nxt,kt,qt)+r}, v{vT[qt]}")
            for dt in range(16):
                for r in range(4):
                    a = (dt * 2 + qt) * 4 + r
                    A(f"v_accvgpr_read_b32 v{vT[4]}, a{a}")
                    A(f"v_mul_f32 v{vT[4]}, v{vT[4]}, v{vT[2+qt]}")
                    A(f"v_accvgpr_write_b32 a{a}, v{vT[4]}")
        for qt in range(2):
            for x in exps(cur, 0, qt) + exps(cur, 1, qt): A(x)
        A("s_nop 0")
        for qt in range(2):
            for x in first(pb, qt) + second(pb, qt): A(x)
        A("s_nop 1")
        A(f"s_branch {tag}_BACK{nm}")
    A.label(f"{tag}_DONE")
    stamp(A, 3)
```

```python
from gen_common import *
import gen_common as G
import os, math

MF = "v_mfma_f32_16x16x32_bf16"
XB = [16, 48]; WB = [80, 112]
VOA = 144; VOW = 152; VX = 156; VW = 158
T = 168
VQO = 216
VPOLL = 220
(sW, sHEAD, sRB, sISV, sAOFF, sWOFF, sM0A, sM0W, sCNT, sDA, sHK, sT0, sT1, sOUT, sWX, sWW) = range(30, 46)
sW0M, sW1M, sWOFF1, sMOD, sC32, sCM64 = 54, 55, 56, 57, 58, 59
sBM, sBO, sAM, sAOf, sLIM = 66, 67, 68, 69, 70
NV1 = 224
sPK = 66

def small_store(A, val_v, off_expr_s, srd_, op="buffer_store_dword", flags="sc1"):
    pass

def k1_body(A, fused):
    ST = " sc1" if fused else os.environ.get("K1ST", "")
    A(f"s_load_dwordx4 s[24:27], s[0:1], {KA['x']}")
    A(f"s_load_dwordx4 s[48:51], s[0:1], {KA['wuk']}")
    A(f"s_load_dwordx2 s[28:29], s[0:1], {KA['ws']}")
    A(f"s_load_dwordx2 s[76:77], s[0:1], {KA['wq']}")
    A(f"s_load_dwordx2 s[78:79], s[0:1], {KA['wo']}")
    A(f"s_load_dwordx4 s[80:83], s[0:1], {KA['wg']}")
    A(f"s_load_dwordx2 s[84:85], s[0:1], {KA['wd']}")
    A(f"s_load_dwordx2 s[88:89], s[0:1], {KA['dbg']}") if fused and not G.STAMP else None
    A(f"s_load_dwordx2 s[74:75], s[0:1], {KA['dbg']}") if fused and G.STAMP else None
    DBG = (74 if G.STAMP else 88)
    A("v_lshrrev_b32 v1, 6, v0")
    A("v_and_b32 v2, 63, v0")
    A(f"v_readfirstlane_b32 s{sW}, v1")
    A("s_and_b32 s3, s2, 7")
    A(f"s_lshr_b32 s{sT0}, s2, 3")
    A(f"s_and_b32 s{sT1}, s{sT0}, 1")
    A(f"s_lshl_b32 s{sHEAD}, s3, 1")
    A(f"s_add_u32 s{sHEAD}, s{sHEAD}, s{sT1}")
    A(f"s_bfe_u32 s{sISV}, s{sT0}, 0x10001")
    A(f"s_lshr_b32 s{sRB}, s{sT0}, 2")
    A(f"s_and_b32 s{sWX}, s{sW}, 1")
    A(f"s_lshr_b32 s{sWW}, s{sW}, 1")
    A("v_lshrrev_b32 v3, 5, v2")
    A("v_and_b32 v4, 31, v2")
    A("v_lshrrev_b32 v11, 3, v2")
    A("v_lshlrev_b32 v11, 11, v11")
    A("v_and_b32 v12, 7, v2")
    A("v_lshrrev_b32 v13, 4, v2")
    A("v_xor_b32 v12, v12, v13")
    A("v_xor_b32 v13, 4, v12")
    A("v_lshl_add_u32 v12, v12, 4, v11")
    A("v_lshl_add_u32 v13, v13, 4, v11")
    for q in range(8):
        A(f"v_add_u32 v{VOA+q}, {q*16384 - (q&3)*1024}, v{12 + (q&1)}")
    A(f"s_lshl_b32 s{sT0}, s{sWX}, 3")
    for q in range(4):
        A(f"v_add_u32 v11, {2*q}, v3")
        A("v_and_b32 v12, 3, v11")
        A("v_lshlrev_b32 v12, 1, v12")
        A(f"v_or_b32 v12, s{sT0}, v12")
        A("v_xor_b32 v12, v12, v4")
        A("v_lshlrev_b32 v12, 4, v12")
        A("v_lshl_add_u32 v12, v11, 13, v12")
        A(f"v_subrev_u32 v{VOW+q}, {q*1024}, v12")
    A(f"s_lshl_b32 s{sAOFF}, s{sRB}, 8")
    A(f"s_lshl_b32 s{sT0}, s{sW}, 6")
    A(f"s_add_u32 s{sAOFF}, s{sAOFF}, s{sT0}")
    A(f"s_lshl_b32 s{sAOFF}, s{sAOFF}, 11")
    A(f"s_lshl_b32 s{sWOFF}, s{sW}, 16")
    A(f"s_lshl_b32 s{sT0}, s{sHEAD}, 9")
    A(f"s_add_u32 s{sWOFF}, s{sWOFF}, s{sT0}")
    A(f"s_lshl_b32 s{sM0A}, s{sW}, 13")
    A(f"s_lshl_b32 s{sM0W}, s{sW}, 12")
    A(f"s_lshl_b32 s{sT0}, s2, 3")
    A(f"s_lshl_b32 s{sT1}, s{sW}, 1")
    A(f"s_add_u32 s{sT0}, s{sT0}, s{sT1}")
    A(f"v_add_u32 v5, s{sT0}, v3")
    A("v_mul_u32_u24 v6, 896, v5")
    A("v_lshl_add_u32 v6, v4, 4, v6")
    A("v_add_u32 v7, 512, v6")
    A("v_cmp_gt_u32 vcc, 24, v4")
    A("v_mov_b32 v8, 0x7ffffff0")
    A("s_waitcnt lgkmcnt(0)")
    A("v_cndmask_b32 v7, v8, v7, vcc")
    srd(A, 4, 26, 27, 2048 * 2048)
    A(f"s_cmp_eq_u32 s{sISV}, 0")
    A("s_cselect_b32 s52, s48, s50")
    A("s_cselect_b32 s53, s49, s51")
    srd(A, 8, 52, 53, 1024 * 8192)
    srd(A, 16, 24, 25, 2048 * 896)
    A(f"buffer_load_dwordx4 v[{T}:{T+3}], v6, s[16:19], 0 offen")
    A(f"buffer_load_dwordx4 v[{T+4}:{T+7}], v7, s[16:19], 0 offen")

    def dma_A(half, sm0, soff):
        return ([f"s_add_u32 m0, s{sm0}, {half*4096}"],
                [f"buffer_load_dwordx4 v{VOA+half*4+q}, s[4:7], s{soff} offen offset:{q*1024} lds" for q in range(4)])
    def dma_W(sm0, soff):
        return ([f"s_mov_b32 m0, s{sm0}"],
                [f"buffer_load_dwordx4 v{VOW+q}, s[8:11], s{soff} offen offset:{q*1024} lds" for q in range(4)])
    bg = []
    B = bg.append
    for x in ("v_lshrrev_b32 v9, 4, v5", "v_mul_u32_u24 v9, 14, v9", "v_lshrrev_b32 v10, 2, v4", "v_add_u32 v9, v9, v10",
              "v_lshlrev_b32 v9, 6, v9", "v_and_b32 v10, 15, v5", "v_add_u32 v9, v9, v10", "v_and_b32 v10, 3, v4",
              "v_lshl_add_u32 v9, v10, 4, v9", "v_lshlrev_b32 v9, 4, v9", "v_add_u32 v10, 8192, v9", "v_cndmask_b32 v10, v8, v10, vcc"):
        B(x)
    for x in ("v_and_b32 v11, 15, v2", "v_lshrrev_b32 v14, 4, v2", "v_bfe_u32 v13, v2, 1, 3"): B(x)
    B(f"s_lshl_b32 s{sT1}, s{sWX}, 14")
    B(f"s_add_u32 s{sT1}, s{sT1}, 65536")
    B("v_lshlrev_b32 v12, 7, v11")
    B(f"v_add_u32 v12, s{sT1}, v12")
    for ks in range(2):
        B(f"v_add_u32 v15, {4*ks}, v14")
        B("v_xor_b32 v15, v15, v13")
        B(f"v_lshl_add_u32 v{VX+ks}, v15, 4, v12")
    for x in ("v_bfe_u32 v12, v2, 2, 2", "v_lshl_add_u32 v13, v14, 3, v12", "v_lshlrev_b32 v13, 9, v13", "v_and_b32 v15, 1, v2",
              "v_lshl_add_u32 v13, v15, 3, v13", "v_bfe_u32 v15, v2, 4, 1", "v_lshl_add_u32 v12, v15, 2, v12", "v_lshlrev_b32 v12, 1, v12",
              "v_bfe_u32 v15, v2, 1, 1"): B(x)
    B(f"s_lshl_b32 s{sT1}, s{sWW}, 4")
    B(f"v_add_u32 v15, s{sT1}, v15")
    for wt in range(8):
        B(f"v_add_u32 v11, {2*wt}, v15")
        B("v_xor_b32 v11, v11, v12")
        B(f"v_lshl_add_u32 v{VW+wt}, v11, 4, v13")
    if fused:
        B("v_lshrrev_b32 v11, 4, v2"); B("v_and_b32 v12, 15, v2")
        for q in range(4):
            B(f"v_or_b32 v13, {((q>>1)&1)<<2}, v11"); B("v_lshlrev_b32 v13, 1, v13"); B("v_xor_b32 v13, v13, v12")
            B("v_lshlrev_b32 v13, 4, v13"); B(f"v_add_u32 v{VQO+q}, {4*q}, v11"); B(f"v_lshlrev_b32 v{VQO+q}, 13, v{VQO+q}")
            B(f"v_add_u32 v{VQO+q}, v{VQO+q}, v13"); B(f"v_subrev_u32 v{VQO+q}, {q*1024}, v{VQO+q}")
    for i in range(256):
        B(f"v_accvgpr_write_b32 a{i}, 0")
    sAS = [60, 61, 62]; sAO = [63, 64, 65]
    for k in range(3):
        A(f"s_add_u32 s{sAS[k]}, s{sM0A}, {65536 + k*32768}")
    A(f"s_mov_b32 s{sAO[0]}, s{sAOFF}")
    A(f"s_add_u32 s{sAO[1]}, s{sAOFF}, 128")
    A(f"s_add_u32 s{sAO[2]}, s{sAOFF}, 256")
    A(f"s_mov_b32 s{sW0M}, s{sM0W}")
    A(f"s_add_u32 s{sW1M}, s{sM0W}, 16384")
    A(f"s_add_u32 s{sWOFF1}, s{sWOFF}, {32*8192}")
    A(f"s_add_u32 s71, s{sM0W}, 32768")
    A(f"s_add_u32 s72, s{sM0W}, 49152")
    A(f"s_add_u32 s73, s{sWOFF}, {64*8192}")
    A(f"s_add_u32 s86, s{sWOFF}, {96*8192}") if not G.STAMP else A(f"s_add_u32 s87, s{sWOFF}, {96*8192}")
    sW11 = 87 if G.STAMP else 86
    seq = [dma_A(0, sAS[0], sAO[0]), dma_A(1, sAS[0], sAO[0]), dma_W(sW0M, sWOFF), dma_W(sW1M, sWOFF1), dma_A(0, sAS[1], sAO[1]),
           dma_A(1, sAS[1], sAO[1]), dma_W(71, 73), dma_W(72, sW11), dma_A(0, sAS[2], sAO[2])]
    per = (len(bg) + 35) // 36
    bi = 0
    for o, d in seq:
        for x in o: A(x)
        A("s_nop 0")
        for x in d:
            A(x)
            for y in bg[bi: bi + per]: A(y)
            bi += per
    for y in bg[bi:]: A(y)
    A(f"s_mul_i32 s{sT0}, s{sISV}, {VF_OFF - KF_OFF}")
    A(f"s_add_u32 s{sT0}, s{sT0}, {KF_OFF}")
    A(f"s_add_u32 s12, s28, s{sT0}")
    A("s_addc_u32 s13, s29, 0")
    A("s_and_b32 s13, s13, 0xffff")
    A(f"s_mov_b32 s14, {KF_SIZE}")
    A("s_mov_b32 s15, 0x20000")
    srd(A, 20, 28, 29, XN_SIZE, XN_OFF)
    srd(A, 60, 28, 29, FL_SIZE, FL_OFF)
    A(f"s_cmp_eq_u32 s{sW}, 0")
    A("s_cbranch_scc0 K1_NOZ")
    A("v_lshlrev_b32 v11, 3, v2")
    A("s_lshl_b32 s64, s2, 9")
    A("v_mov_b32 v12, 0")
    A("v_mov_b32 v13, 0")
    A(f"buffer_store_dwordx2 v[12:13], v11, s[60:63], s64 offen{ST}")
    A.label("K1_NOZ")
    A(f"s_add_u32 s{sWOFF}, s{sWOFF}, {128*8192}")
    A(f"s_add_u32 s{sWOFF1}, s{sWOFF}, {32*8192}")
    A(f"s_add_u32 s{sBM}, s{sM0A}, {65536 + 2*32768}")
    A(f"s_add_u32 s{sBO}, s{sAOFF}, 256")
    A(f"s_add_u32 s{sAM}, s{sM0A}, 65536")
    A(f"s_add_u32 s{sAOf}, s{sAOFF}, 384")
    A(f"s_add_u32 s{sLIM}, s{sM0A}, {65536 + 3*32768}")
    A("s_waitcnt vmcnt(36)" if False else "s_waitcnt vmcnt(37)") if False else None
    A("s_waitcnt vmcnt(36)")
    S1, S2, ONE = T+8, T+9, T+10
    A(f"v_mov_b32 v{ONE}, 0x3f803f80")
    A(f"v_mov_b32 v{S1}, 0")
    A(f"v_mov_b32 v{S2}, 0")
    for i in range(8):
        A(f"v_dot2_f32_bf16 v{S1}, v{T+i}, v{ONE}, v{S1}")
        A(f"v_dot2_f32_bf16 v{S2}, v{T+i}, v{T+i}, v{S2}")
    A("s_nop 2")
    a_, b_ = T+11, T+12
    for off in (0x041F, 0x081F, 0x101F, 0x201F, 0x401F):
        A(f"ds_swizzle_b32 v{a_}, v{S1} offset:{off}")
        A(f"ds_swizzle_b32 v{b_}, v{S2} offset:{off}")
        A("s_waitcnt lgkmcnt(0)")
        A(f"v_add_f32 v{S1}, v{S1}, v{a_}")
        A(f"v_add_f32 v{S2}, v{S2}, v{b_}")
    A(f"v_mul_f32 v{S1}, {f32(1/448)}, v{S1}")
    A(f"v_mul_f32 v{S2}, {f32(1/448)}, v{S2}")
    A(f"v_fma_f32 v{S2}, -v{S1}, v{S1}, v{S2}")
    A(f"v_max_f32 v{S2}, 0, v{S2}")
    A(f"v_add_f32 v{S2}, {f32(1e-5)}, v{S2}")
    A(f"v_rsq_f32 v{S2}, v{S2}")
    A("s_nop 0")
    for i in range(8):
        A(f"v_lshlrev_b32 v{a_}, 16, v{T+i}")
        A(f"v_and_b32 v{b_}, 0xffff0000, v{T+i}")
        A(f"v_sub_f32 v{a_}, v{a_}, v{S1}")
        A(f"v_sub_f32 v{b_}, v{b_}, v{S1}")
        A(f"v_mul_f32 v{a_}, v{a_}, v{S2}")
        A(f"v_mul_f32 v{b_}, v{b_}, v{S2}")
        A(f"v_cvt_pk_bf16_f32 v{T+i}, v{a_}, v{b_}")
    A(f"buffer_store_dwordx4 v[{T}:{T+3}], v9, s[20:23], 0 offen{ST}")
    A(f"buffer_store_dwordx4 v[{T+4}:{T+7}], v10, s[20:23], 0 offen{ST}")

    def rdX(buf, ks, xt):
        return [f"ds_read_b128 v[{XB[buf]+4*xt}:{XB[buf]+4*xt+3}], v{VX+ks} offset:{xt*2048}"]
    def rdW(buf, ks, wt):
        r = WB[buf] + 4 * wt
        return [f"ds_read_b64_tr_b16 v[{r}:{r+1}], v{VW+wt} offset:{ks*16384}",
                f"ds_read_b64_tr_b16 v[{r+2}:{r+3}], v{VW+wt} offset:{ks*16384 + 2048}"]
    def reads(buf, ks):
        o = [rdX(buf, ks, 0)] + [rdW(buf, ks, wt) for wt in range(8)] + [rdX(buf, ks, xt) for xt in range(1, 8)]
        return o
    A("s_waitcnt vmcnt(26)")
    A("s_barrier")
    stamp(A, 1)
    for grp in reads(0, 0):
        for x in grp: A(x)
    A(f"s_mov_b32 s{sCNT}, 0")
    A(f"s_mov_b32 s{sDA}, 32768")
    A(f"s_mov_b32 s{sMOD}, 0")
    A(f"s_mov_b32 s{sC32}, 32768")
    A(f"s_mov_b32 s{sCM64}, 0xffff0000")
    A(f"s_mov_b32 s{sHK}, 2")
    A(f"s_cmp_eq_u32 s{sISV}, 0")
    A("s_cbranch_scc0 K1_LOOP_V")

    for variant in ("K", "V"):
        A(".p2align 6")
        A.label(f"K1_LOOP_{variant}")
        for ks in range(2):
            buf = ks
            mf = []
            for xt in range(8):
                for wt in range(8):
                    acc = (xt * 8 + wt) * 4
                    x = vr(XB[buf] + 4 * xt, 4); w = vr(WB[buf] + 4 * wt, 4)
                    a, b = (w, x) if variant == "K" else (x, w)
                    mf.append(f"{MF} {ar(acc,4)}, {a}, {b}, {ar(acc,4)}")
            sc = Sched(mf, f"k1{variant}{ks}")
            sc.S(-1, f"s_waitcnt vmcnt({20 if ks == 0 else 16}) lgkmcnt(0)")
            sc.S(-1, "s_barrier")
            g0 = 0
            if ks == 1:
                sc.V(0, f"v_add_u32 v{VX}, s{sDA}, v{VX}"); sc.V(0, f"v_add_u32 v{VX+1}, s{sDA}, v{VX+1}")
                for k in range(8): sc.V(1 + k // 2, f"v_xor_b32 v{VW+k}, 0x8000, v{VW+k}")
                g0 = 6
            for i, grp in enumerate(reads(buf ^ 1, ks ^ 1)):
                for x in grp: sc.V(g0 + 2 * i, x)
            if ks == 0:
                g1 = dma_A(1, sBM, sBO); g2 = dma_W(sW0M, sWOFF)
                sc.S(0, f"s_cmp_eq_u32 s{sCNT}, s{sHK}")
                sc.S(1, f"s_cbranch_scc1 K1_HOOK_{variant}")
                sc.S(1, f"K1_BACK_{variant}:")
            else:
                g1 = dma_W(sW1M, sWOFF1); g2 = dma_A(0, sAM, sAOf)
            sc.S(2, g1[0][0])
            for q in range(4): sc.V(5 + 6 * q, g1[1][q])
            sc.S(30, g2[0][0])
            for q in range(4): sc.V(33 + 6 * q, g2[1][q])
            if ks == 0:
                sc.S(26, f"s_cmp_ge_u32 s{sCNT}, 13"); sc.S(27, f"s_cselect_b32 s6, 0, {2048*2048}")
                adv = [[f"s_add_u32 s{sBM}, s{sBM}, 32768"], [f"s_cmp_eq_u32 s{sBM}, s{sLIM}", f"s_cselect_b32 s{sT1}, {3*32768}, 0", f"s_sub_u32 s{sBM}, s{sBM}, s{sT1}"],
                       [f"s_add_u32 s{sBO}, s{sBO}, 128"], [f"s_add_u32 s{sMOD}, s{sMOD}, 1"],
                       [f"s_cmp_eq_u32 s{sMOD}, 3", f"s_cselect_b32 s{sDA}, s{sCM64}, s{sC32}", f"s_cselect_b32 s{sMOD}, 0, s{sMOD}"]]
                pos = [32, 35, 36, 38, 41]
                for p, grp in zip(pos, adv): sc.s[p] += grp
                sc.s[54].append(f"s_add_u32 s{sWOFF}, s{sWOFF}, {64*8192}")
                sc.s[56].append(f"s_xor_b32 s{sW0M}, s{sW0M}, 0x8000")
            else:
                sc.s[26].append(f"s_add_u32 s{sWOFF1}, s{sWOFF1}, {64*8192}")
                sc.s[28].append(f"s_xor_b32 s{sW1M}, s{sW1M}, 0x8000")
                sc.s[54].append(f"s_add_u32 s{sAM}, s{sAM}, 32768")
                sc.s[55] += [f"s_cmp_eq_u32 s{sAM}, s{sLIM}", f"s_cselect_b32 s{sT1}, {3*32768}, 0", f"s_sub_u32 s{sAM}, s{sAM}, s{sT1}"]
                sc.s[56].append(f"s_add_u32 s{sAOf}, s{sAOf}, 128")
                sc.s[58].append(f"s_add_u32 s{sCNT}, s{sCNT}, 1")
                sc.s[63].append(f"s_cmp_lt_u32 s{sCNT}, 16")
            sc.emit(A)
        A(f"s_cbranch_scc1 K1_LOOP_{variant}")
        A(f"s_branch K1_EPI_{variant}")
        A.label(f"K1_HOOK_{variant}")
        lab = f"K1H{variant}"
        A(f"s_cmp_eq_u32 s{sCNT}, 2"); A(f"s_cbranch_scc0 {lab}_3")
        if fused:
            srd(A, 48, DBG, DBG + 1, 256)
            A(f"s_cmp_eq_u32 s{sW}, 0"); A(f"s_cbranch_scc0 {lab}_2E")
            A("v_mov_b32 v11, 0"); A("v_mov_b32 v12, 1")
            A("v_cmp_eq_u32 vcc, 0, v2"); A("s_and_saveexec_b64 s[52:53], vcc")
            A(f"s_cbranch_execz {lab}_2X")
            A("buffer_atomic_add v12, v11, s[48:51], 0 offen")
            A.label(f"{lab}_2X")
            A("s_mov_b64 exec, s[52:53]")
            A.label(f"{lab}_2E")
        A("s_mov_b32 s53, 0")
        if not fused: A("s_mov_b32 s53, 0")
        A(f"s_lshr_b32 s{sHK}, s2, 3"); A(f"s_and_b32 s{sHK}, s{sHK}, 3"); A(f"s_add_u32 s{sHK}, s{sHK}, 3"); A(f"s_branch K1_BACK_{variant}")
        A.label(f"{lab}_3")
        A(f"s_cmp_eq_u32 s{sCNT}, 14"); A(f"s_cbranch_scc1 {lab}_14")
        A(f"s_cmp_eq_u32 s53, 2"); A(f"s_cbranch_scc1 {lab}_12")
        A(f"s_lshl_b32 s{sT0}, s2, 2"); A(f"s_add_u32 s{sT0}, s{sT0}, s{sW}")
        A(f"s_lshl_b32 s{sT1}, s53, 10"); A(f"s_add_u32 s{sT0}, s{sT0}, s{sT1}")
        A(f"s_cselect_b32 s{sHK}, 12, 6") if False else None
        bounds = [(76, 448, 448*8192), (80, 196, 448*3584), (82, 196, 448*3584), (78, 448, 4096*896), (84, 196, 1792*896)]
        A("s_mov_b32 s48, s76"); A("s_mov_b32 s49, s77"); A(f"s_mov_b32 s50, {bounds[0][2]}"); A(f"s_mov_b32 s{sT1}, 0")
        cum = 0
        for k in range(1, 5):
            cum += bounds[k - 1][1]
            A(f"s_cmp_ge_u32 s{sT0}, {cum}")
            A(f"s_cselect_b32 s48, s{bounds[k][0]}, s48"); A(f"s_cselect_b32 s49, s{bounds[k][0]+1}, s49")
            A(f"s_cselect_b32 s50, {bounds[k][2]}, s50")
            A(f"s_cselect_b32 s{sT1}, {cum}, s{sT1}")
        A(f"s_sub_u32 s{sT0}, s{sT0}, s{sT1}")
        A("s_and_b32 s49, s49, 0xffff"); A("s_mov_b32 s51, 0x20000")
        A(f"s_lshl_b32 s{sT0}, s{sT0}, 13")
        A("v_lshlrev_b32 v11, 7, v2")
        if int(os.environ.get("TG", 128)):
            A(f"buffer_load_dword v{VPOLL+1}, v11, s[48:51], s{sT0} offen")
        A("s_add_u32 s53, s53, 1"); A(f"s_cmp_eq_u32 s53, 2"); A(f"s_cselect_b32 s{sT1}, 3, 4"); A(f"s_add_u32 s{sHK}, s{sCNT}, s{sT1}"); A(f"s_branch K1_BACK_{variant}")
        A.label(f"{lab}_12")
        if fused:
            srd(A, 48, DBG, DBG + 1, 256)
            A(f"s_cmp_eq_u32 s{sW}, 0"); A(f"s_cbranch_scc0 {lab}_12E")
            A("v_mov_b32 v11, 0")
            A(f"buffer_load_dword v{VPOLL}, v11, s[48:51], 0 offen sc1")
            A.label(f"{lab}_12E")
        A(f"s_mov_b32 s{sHK}, 14"); A(f"s_branch K1_BACK_{variant}")
        A.label(f"{lab}_14")
        if fused:
            for q in range(4): A(f"v_mov_b32 v{VOW+q}, v{VQO+q}")
            srd(A, 8, 76, 77, 448 * 8192)
            A(f"s_lshl_b32 s{sWOFF}, s{sW}, 17"); A(f"s_lshl_b32 s{sT0}, s{sHEAD}, 9"); A(f"s_add_u32 s{sWOFF}, s{sWOFF}, s{sT0}")
            A(f"s_add_u32 s{sWOFF1}, s{sWOFF}, 256")
        else:
            A("s_mov_b32 s10, 0")
        A(f"s_mov_b32 s{sHK}, 99"); A(f"s_branch K1_BACK_{variant}")

    for variant in ("K", "V"):
        A.label(f"K1_EPI_{variant}")
        stamp(A, 2)
        A("s_waitcnt lgkmcnt(0)")
        if fused:
            pack = []
            for k in range(32):
                if variant == "K": t0, t1 = 8 * k, 8 * k + 4
                else:
                    u, wt = k // 8, k % 8
                    t0, t1 = (16 * u + wt) * 4, (16 * u + 8 + wt) * 4
                tb = 184
                for i in range(4): pack.append(f"v_accvgpr_read_b32 v{tb+i}, a{t0+i}")
                for i in range(4): pack.append(f"v_accvgpr_read_b32 v{tb+4+i}, a{t1+i}")
                if variant == "K":
                    for i in range(8): pack.append(f"v_mul_f32 v{tb+i}, s{sPK}, v{tb+i}")
                if k < 16:
                    for i in range(4): pack.append(f"v_cvt_pk_bf16_f32 v{192+4*k+i}, v{tb+2*i}, v{tb+2*i+1}")
                else:
                    for i in range(4): pack.append(f"v_cvt_pk_bf16_f32 v{tb+i}, v{tb+2*i}, v{tb+2*i+1}")
                    for i in range(4): pack.append(f"v_accvgpr_write_b32 a{128+4*(k-16)+i}, v{tb+i}")
            pre = [f"s_lshl_b32 s60, s{sHEAD}, 6", f"s_lshl_b32 s{sT0}, s{sRB}, 3", f"s_add_u32 s60, s60, s{sT0}", f"s_lshl_b32 s{sT0}, s{sWX}, 2",
                   f"s_add_u32 s60, s60, s{sT0}", "s_lshl_b32 s60, s60, 14", f"s_lshl_b32 s{sT0}, s{sWW}, {12 if variant == 'K' else 13}",
                   f"s_add_u32 s60, s60, s{sT0}", f"s_mov_b32 s{sPK}, {f32(math.log2(math.e) / 16.0)}"]
            post = [f"s_mov_b32 s53, {8192 if variant == 'K' else 4096}", f"s_mov_b32 s52, {8192 if variant == 'K' else 12288}"]
            G.k1_pre_epilogue(A, variant, DBG, pre, pack, post)
            A("s_branch K1_FIN") if variant == "K" else None
            continue
        A(f"s_lshl_b32 s{sOUT}, s{sHEAD}, 6")
        A(f"s_lshl_b32 s{sT0}, s{sRB}, 3")
        A(f"s_add_u32 s{sOUT}, s{sOUT}, s{sT0}")
        A(f"s_lshl_b32 s{sT0}, s{sWX}, 2")
        A(f"s_add_u32 s{sOUT}, s{sOUT}, s{sT0}")
        A(f"s_lshl_b32 s{sOUT}, s{sOUT}, 14")
        A(f"s_lshl_b32 s{sT0}, s{sWW}, {12 if variant == 'K' else 13}")
        A(f"s_add_u32 s{sOUT}, s{sOUT}, s{sT0}")
        A(f"s_mov_b32 s{sT1}, {f32(math.log2(math.e) / 16.0)}")
        A("v_lshlrev_b32 v5, 4, v2")
        A("v_add_u32 v6, 4096, v5")
        A("s_nop 7")
        n = 0; prev = 0
        items = [(xt, u) for xt in range(8) for u in range(4)] if variant == "K" else [(u, wt) for u in range(4) for wt in range(8)]
        for it in items:
            b = T + (n % 4) * 12
            n += 1
            if variant == "K":
                xt, u = it
                t0, t1 = (xt * 8 + 2 * u) * 4, (xt * 8 + 2 * u + 1) * 4
                soff = xt * 8192 + u * 1024
            else:
                u, wt = it
                t0, t1 = ((2 * u) * 8 + wt) * 4, ((2 * u + 1) * 8 + wt) * 4
                soff = u * 16384 + wt * 1024
            for i in range(4):
                A(f"v_accvgpr_read_b32 v{b+i}, a{t0+i}")
                A(f"v_accvgpr_read_b32 v{b+4+i}, a{t1+i}")
            if variant == "K":
                for i in range(8): A(f"v_mul_f32 v{b+i}, s{sT1}, v{b+i}")
            for i in range(4):
                A(f"v_cvt_pk_bf16_f32 v{b+8+i}, v{b+2*i}, v{b+2*i+1}")
            base = soff // 8192 * 8192
            rem = soff - base
            if base != prev: A(f"s_add_u32 s{sOUT}, s{sOUT}, {base - prev}")
            prev = base
            vo = 5 if rem < 4096 else 6
            A(f"buffer_store_dwordx4 v[{b+8}:{b+11}], v{vo}, s[12:15], s{sOUT} offen offset:{rem & 4095}{ST}")
        if variant == "K": A("s_branch K1_FIN")
    A.label("K1_FIN")

def gen_k1(A):
    name = "k1_proj_kernel"
    kernel_header(A, name)
    A("s_cmp_ge_u32 s2, 256")
    A("s_cbranch_scc1 K1_END")
    stamp(A, 0); rstamp(A, 5)
    k1_body(A, False)
    stamp(A, 3)
    if G.STAMP: A("s_waitcnt vmcnt(0) lgkmcnt(0)")
    stamp(A, 4)
    stamp_flush(A, 6, 28, 29, sW)
    A.label("K1_END")
    A("s_endpgm")
    return name, NV1, 256
```

```python
from gen_common import *
import gen_common as G
import math, os
from gen_attn import *

A2 = int(os.environ.get("A2", 27))
A1 = int(os.environ.get("A1", 31))
sSTATE, sPAIR, sI_, sA, sNG, sGI, sC, sPEND, sNC, sNROW = 61, 62, 63, 64, 65, 66, 67, 50, 51, 52
sNWOFF, sNJ = 53, 60
S_H, S_D = 68, 72
S_WG, S_WU = 80, 84
QH_SZ = 128 * 65536
OPB_OFF = QH_SZ
OPS_OFF = 2 * QH_SZ

def frag(i):
    return vFR + 4 * (i % NFR)

def voffs(A, dst, stride):
    t0, t1, t2 = vT[0], vT[1], vT[2]
    A(f"v_lshrrev_b32 v{t0}, 4, v{vLANE}")
    A(f"v_and_b32 v{t1}, 15, v{vLANE}")
    for q in range(4):
        A(f"v_or_b32 v{t2}, {((q>>1)&1)<<2}, v{t0}")
        A(f"v_lshlrev_b32 v{t2}, 1, v{t2}")
        A(f"v_xor_b32 v{t2}, v{t2}, v{t1}")
        A(f"v_lshlrev_b32 v{t2}, 4, v{t2}")
        A(f"v_add_u32 v{dst+q}, {4*q}, v{t0}")
        A(f"v_mul_u32_u24 v{dst+q}, {stride}, v{dst+q}")
        A(f"v_add_u32 v{dst+q}, v{dst+q}, v{t2}")
        A(f"v_subrev_u32 v{dst+q}, {q*1024}, v{dst+q}")

def wr_setup(A):
    t0, t1, t2 = vT[0], vT[1], vT[2]
    A(f"v_bfe_u32 v{t0}, v{vLANE}, 2, 2")
    A(f"v_lshrrev_b32 v{t1}, 4, v{vLANE}")
    A(f"v_lshl_add_u32 v{t1}, v{t1}, 3, v{t0}")
    A(f"v_lshlrev_b32 v{t1}, 8, v{t1}")
    A(f"v_and_b32 v{t2}, 1, v{vLANE}")
    A(f"v_lshl_add_u32 v{t1}, v{t2}, 3, v{t1}")
    A(f"v_bfe_u32 v{t2}, v{vLANE}, 4, 1")
    A(f"v_lshl_add_u32 v{t0}, v{t2}, 2, v{t0}")
    A(f"v_lshlrev_b32 v{t0}, 1, v{t0}")
    A(f"v_bfe_u32 v{t2}, v{vLANE}, 1, 1")
    for ft in range(8):
        A(f"v_add_u32 v{vT[3]}, {2*ft}, v{t2}")
        A(f"v_xor_b32 v{vT[3]}, v{vT[3]}, v{t0}")
        A(f"v_lshl_add_u32 v{vWR+ft}, v{vT[3]}, 4, v{t1}")

class Proj:
    def __init__(self, kind, slotmap=None):
        self.kind = kind
        self.slotmap = slotmap or [0, 1, 2, 3, 0, 1, 2]
        self.stride = 8192 if kind == "Q" else 3584
        self.vo = vVOW if kind == "Q" else vVOG
        self.srd = (S_WL, S_WL) if kind == "Q" else (S_WG, S_WU)
    def wgroup(self, j, woff, tmp):
        o = []
        for half in range(2):
            add = j * 64 * self.stride + (256 * half if self.kind == "Q" else 0)
            o.append(("s", f"s_add_u32 s{tmp}, s{woff}, {add}"))
            o.append(("s", f"s_add_u32 m0, s{sWB}, {self.slotmap[j] * 32768 + half*16384}"))
            for q in range(4):
                o.append(("v", f"buffer_load_dwordx4 v{self.vo+q}, s[{self.srd[half]}:{self.srd[half]+3}], s{tmp} offen offset:{q*1024} lds"))
        return o
    def xgroup(self, j, xoff, tmp):
        o = []
        for qt in range(2):
            o.append(("s", f"s_add_u32 s{tmp}, s{xoff}, {qt*14*1024 + j*2048}"))
            for k in range(2):
                r = vXN + ((2*j + k) * 2 + qt) * 4
                o.append(("v", f"buffer_load_dwordx4 v[{r}:{r+3}], v{vL16}, s[{S_X}:{S_X+3}], s{tmp} offen offset:{k*1024}{SC()}"))
        return o
    def issue(self, A, items):
        prev_s = False
        for k, x in items:
            if k == "v" and prev_s: A("s_nop 0")
            A(x); prev_s = (k == "s")
    def rd(self, n, slotoff):
        ks_, dt = n // 16, n % 16
        r = frag(n)
        off = slotoff + (dt // 8) * 16384 + ks_ * 8192
        return [f"ds_read_b64_tr_b16 v[{r}:{r+1}], v{vWR + dt % 8} offset:{off}",
                f"ds_read_b64_tr_b16 v[{r+2}:{r+3}], v{vWR + dt % 8} offset:{off + 1024}"]
    def main(self, A, waits, tails, hooks):
        for n in range(DPRE):
            for x in self.rd(n, 0): A(x)
        for j in range(7):
            slot = self.slotmap[j]
            mf = []
            for n in range(32):
                ks_, dt = n // 16, n % 16
                ks = 2 * j + ks_
                for qt in range(2):
                    acc = (dt * 2 + qt) * 4
                    x = vXN + (ks * 2 + qt) * 4
                    mf.append(f"{MF} {ar(acc,4)}, {vr(frag(n),4)}, {vr(x,4)}, " + ("0" if ks == 0 else ar(acc,4)))
            sc = Sched(mf, f"proj{self.kind}{j}")
            for x in waits[j]: A(x)
            A("s_barrier")
            if j in hooks: hooks[j](A)
            A(f"s_waitcnt lgkmcnt({2*(DPRE-1)})")
            for n in range(32):
                last = 31 if j == 6 else 10**9
                issued = min(last, n - 1 + DPRE)
                if n + 1 <= 31 or j < 6:
                    sc.S(2 * n, f"s_waitcnt lgkmcnt({max(0, 2 * (issued - (n + 1)))})")
                m = n + DPRE
                if m < 32:
                    x = self.rd(m, (slot % 2) * 32768)
                elif j < 6:
                    nslot = self.slotmap[j + 1]
                    x = self.rd(m - 32, (nslot % 2) * 32768)
                    if m == 32 and (nslot // 2) != (slot // 2):
                        d = 65536 * (nslot // 2 - slot // 2)
                        for ft in range(8):
                            sc.V(2 * n - 1 - 2 * (3 - ft // 2) if False else 2 * n - 1, f"v_add_u32 v{vWR+ft}, {d & 0xffffffff}, v{vWR+ft}")
                else:
                    continue
                sc.V(2 * n, x[0]); sc.V(2 * n, x[1])
            items = tails.get(j, [])
            nv = sum(1 for k, _ in items if k == "v")
            if nv:
                gaps = [g for g in range(3, 62, 2) if not sc.v[g]]
                pos = [gaps[int(k * (len(gaps) - 1) / max(1, nv - 1))] for k in range(nv)] if nv > 1 else [gaps[0]]
                k = 0; pend = []
                for kind, x in items:
                    if kind == "s": pend.append(x)
                    else:
                        g = pos[k]; k += 1
                        if pend:
                            tgt = g - 2 if (g - 2 >= 1 and not sc.v[g - 2]) else g - 1
                            sc.s[tgt] += pend; pend = []
                        sc.v[g].append(x)
                assert not pend
            sc.emit(A)
        back = 65536 * (self.slotmap[6] // 2)
        if back:
            for ft in range(8):
                A(f"v_subrev_u32 v{vWR+ft}, {back}, v{vWR+ft}")

def q_convert(A, store=None):
    n = 0
    for qt in range(2):
        for u in range(8):
            b = vF + (n % 4) * 8; n += 1
            for k in range(2):
                for r in range(4):
                    A(f"v_accvgpr_read_b32 v{b+4*k+r}, a{((2*u+k)*2+qt)*4+r}")
            for e in range(4):
                A(f"v_cvt_pk_bf16_f32 v{vQ+(qt*8+u)*4+e}, v{b+2*e}, v{b+2*e+1}")

def o_zero(A):
    for i in range(128):
        A(f"v_accvgpr_write_b32 a{i}, 0")

def flag_set(A, which):
    lab = f"FS_{len(A.L)}"
    A(f"s_cmp_eq_u32 s{sW}, 0")
    A(f"s_cbranch_scc0 {lab}")
    A(f"s_lshl_b32 s{sT0}, s{sPAIR}, 9")
    A(f"s_add_u32 s{sT0}, s{sT0}, {which*256}")
    A(f"v_mov_b32 v{vT[0]}, s{sT0}")
    A(f"v_mov_b32 v{vT[1]}, 1")
    A(f"v_cmp_eq_u32 s[78:79], 0, v{vLANE}")
    A("s_and_saveexec_b64 s[76:77], s[78:79]")
    A(f"s_cbranch_execz {lab}X")
    A(f"buffer_store_dword v{vT[1]}, v{vT[0]}, s[{S_D}:{S_D+3}], 0 offen sc1")
    A.label(lab + "X")
    A("s_mov_b64 exec, s[76:77]")
    A.label(lab)

sPCELL = 88
sPENDK = 89
VPOLL2 = 255
def arrive(A, off_sgpr):
    lab = f"AR_{len(A.L)}"
    A(f"s_cmp_eq_u32 s{sW}, 0")
    A(f"s_cbranch_scc0 {lab}")
    A(f"v_mov_b32 v{vT[0]}, s{off_sgpr}")
    A(f"v_mov_b32 v{vT[1]}, 1")
    A(f"v_cmp_eq_u32 s[78:79], 0, v{vLANE}")
    A("s_and_saveexec_b64 s[76:77], s[78:79]")
    A(f"s_cbranch_execz {lab}X")
    A(f"buffer_atomic_add v{vT[1]}, v{vT[0]}, s[{S_D}:{S_D+3}], 0 offen")
    A.label(lab + "X")
    A("s_mov_b64 exec, s[76:77]")
    A.label(lab)

def af_cell_head(A, dst, rb_sgpr):
    A(f"s_lshl_b32 s{dst}, s{rb_sgpr}, 2")
    A(f"s_cmp_ge_u32 s{sHEAD}, 6"); A(f"s_addc_u32 s{dst}, s{dst}, 0")
    A(f"s_cmp_ge_u32 s{sHEAD}, 12"); A(f"s_addc_u32 s{dst}, s{dst}, 0")
    A(f"s_lshl_b32 s{dst}, s{dst}, 8"); A(f"s_add_u32 s{dst}, s{dst}, {FL_AF}")

def flag_wait(A, which):
    lab = f"FW_{len(A.L)}"
    A(f"s_cmp_eq_u32 s{sW}, 0")
    A(f"s_cbranch_scc0 {lab}_OK")
    A(f"s_lshl_b32 s{sT0}, s{sPAIR}, 9")
    A(f"s_add_u32 s{sT0}, s{sT0}, {which*256}")
    A(f"v_mov_b32 v{vT[0]}, s{sT0}")
    A(f"s_mov_b32 s{sT2}, 0x10000")
    A.label(lab)
    A(f"buffer_load_dword v{vT[1]}, v{vT[0]}, s[{S_D}:{S_D+3}], 0 offen sc1")
    A("s_waitcnt vmcnt(0)")
    A(f"v_readfirstlane_b32 s{sT0}, v{vT[1]}")
    A(f"s_cmp_eq_u32 s{sT0}, 1")
    A(f"s_cbranch_scc1 {lab}_OK")
    A(f"s_sub_u32 s{sT2}, s{sT2}, 1")
    A(f"s_cmp_eq_u32 s{sT2}, 0")
    A(f"s_cbranch_scc1 {lab}_OK")
    A("s_sleep 4")
    A(f"s_branch {lab}")
    A.label(f"{lab}_OK")
    A("s_barrier")

def fin_norm_store(A, srd_, qt_stride, flags=""):
    n = 0
    for qt in range(2):
        for u in range(8):
            b = vF + (n % 4) * 12; n += 1
            for k in range(2):
                for r in range(4):
                    A(f"v_accvgpr_read_b32 v{b+4*k+r}, a{((2*u+k)*2+qt)*4+r}")
            for e in range(8):
                A(f"v_mul_f32 v{b+e}, v{b+e}, v{vT[qt]}")
            for e in range(4):
                A(f"v_cvt_pk_bf16_f32 v{b+8+e}, v{b+2*e}, v{b+2*e+1}")
            if u == 4: A(f"s_add_u32 s{sT0}, s{sT0}, 4096")
            A(f"buffer_store_dwordx4 v[{b+8}:{b+11}], v{vL16}, s[{srd_}:{srd_+3}], s{sT0} offen offset:{(u%4)*1024}{flags}")
        A(f"s_add_u32 s{sT0}, s{sT0}, {qt_stride - 4096}")

def af_off(A):
    A(f"s_mul_i32 s{sT0}, s{sROW0}, {184*1024}")
    A(f"s_lshl_b32 s{sT1}, s{sHEAD}, 13")
    A(f"s_add_u32 s{sT0}, s{sT0}, s{sT1}")

def row0(A, dst, blk):
    A(f"s_lshl_b32 s{dst}, s{blk}, 3")
    A(f"s_lshl_b32 s{sT0}, s{sW}, 1")
    A(f"s_add_u32 s{dst}, s{dst}, s{sT0}")

def h_off(A, base):
    A(f"s_lshl_b32 s{sT0}, s{sPAIR}, 16")
    A(f"s_lshl_b32 s{sT1}, s{sW}, 14")
    A(f"s_add_u32 s{sT0}, s{sT0}, s{sT1}")
    if base: A(f"s_add_u32 s{sT0}, s{sT0}, {base}")

def gu_next_params(A):
    A(f"s_cmp_eq_u32 s{sNG}, 0")
    A(f"s_cselect_b32 s{S_WG+2}, 0, {448*3584}")
    A(f"s_cselect_b32 s{S_WU+2}, 0, {448*3584}")
    A(f"s_lshr_b32 s{sNC}, s{sGI}, 4")
    A(f"s_and_b32 s{sT2}, s{sGI}, 15")
    row0(A, sNROW, sT2)
    A(f"s_mul_i32 s{sNJ}, s{sNROW}, {14*1024}")
    A(f"s_mul_i32 s{sNWOFF}, s{sW}, {16*3584}")
    A(f"s_lshl_b32 s{sT0}, s{sNC}, 8")
    A(f"s_add_u32 s{sNWOFF}, s{sNWOFF}, s{sT0}")

sPRE = 54
vMS = 248
def merge_loads(A):
    A(f"s_lshl_b32 s{sT0}, s{sPAIR}, 12")
    A(f"s_lshl_b32 s{sT1}, s{sW}, 10")
    A(f"s_add_u32 s{sT0}, s{sT0}, s{sT1}")
    A(f"s_add_u32 s{sT0}, s{sT0}, {OPS_OFF}")
    A(f"buffer_load_dwordx4 v[{vMS}:{vMS+3}], v{vL16}, s[{S_H}:{S_H+3}], s{sT0} offen sc1")
    h_off(A, OPB_OFF)
    for k in range(16):
        if k % 4 == 0 and k: A(f"s_add_u32 s{sT0}, s{sT0}, 4096")
        A(f"buffer_load_dwordx4 a[{128+4*k}:{128+4*k+3}], v{vL16}, s[{S_H}:{S_H+3}], s{sT0} offen offset:{(k%4)*1024} sc1")

def k2_body(A):
    PQ, PG = Proj("Q", [0, 1, 2, 3, 4, 0, 1]), Proj("G")
    if G.FUSED:
        A(f"s_load_dwordx4 s[56:59], s[0:1], {KA['wg']}")
    lane_setup(A)
    A("s_and_b32 s3, s2, 7")
    A(f"s_lshr_b32 s{sT0}, s2, 3")
    A(f"s_and_b32 s{sT1}, s{sT0}, 1")
    A(f"s_lshl_b32 s{sHEAD}, s3, 1")
    A(f"s_add_u32 s{sHEAD}, s{sHEAD}, s{sT1}")
    A(f"s_bfe_u32 s{sI_}, s{sT0}, 0x30001")
    A(f"s_lshr_b32 s{sSTATE}, s2, 7")
    A(f"s_lshl_b32 s{sPAIR}, s{sHEAD}, 3")
    A(f"s_add_u32 s{sPAIR}, s{sPAIR}, s{sI_}")
    A(f"s_and_b32 s{sT1}, s{sT0}, 15")
    A(f"s_cmp_lt_u32 s{sT1}, 12")
    A(f"s_cselect_b32 s{sNG}, 2, 1")
    A(f"s_cselect_b32 s{sA}, {A2}, {A1}")
    A(f"s_mul_i32 s{sGI}, s3, 28")
    A(f"s_add_u32 s{sGI}, s{sGI}, s{sT1}")
    A("s_waitcnt lgkmcnt(0)")
    if not G.FUSED:
        srd(A, S_X, sWS, sWS + 1, XN_SIZE, XN_OFF)
        srd(A, S_WL, 54, 55, 448 * 8192)
    A(f"s_sub_u32 s{sT0}, 15, s{sI_}")
    A(f"s_cmp_eq_u32 s{sSTATE}, 0")
    A(f"s_cselect_b32 s{sQB}, s{sT0}, s{sI_}")
    row0(A, sROW0, sQB)
    A(f"s_mul_i32 s{sJ}, s{sROW0}, {14*1024}")
    A(f"s_lshl_b32 s{sWOFFL}, s{sW}, 17")
    A(f"s_lshl_b32 s{sT0}, s{sHEAD}, 9")
    A(f"s_add_u32 s{sWOFFL}, s{sWOFFL}, s{sT0}")
    if not G.FUSED:
        voffs(A, vVOW, 8192)
        for j in range(3):
            PQ.issue(A, PQ.wgroup(j, sWOFFL, sT3) + PQ.xgroup(j, sJ, sT3))
    srd(A, S_K, sWS, sWS + 1, KF_SIZE, KF_OFF)
    srd(A, S_V, sWS, sWS + 1, KF_SIZE, VF_OFF - 16384)
    srd(A, S_AF, sWS, sWS + 1, AF_SIZE, AF_OFF)
    srd(A, S_H, sWS, sWS + 1, 2 * QH_SZ + 128 * 4096, QH_OFF)
    srd(A, S_D, sWS, sWS + 1, FL_SIZE, FL_OFF)
    srd(A, S_WG, 56, 57, 448 * 3584)
    srd(A, S_WU, 58, 59, 448 * 3584)
    wr_setup(A)
    A(f"s_lshl_b32 s{sE}, s{sI_}, 2")
    A(f"s_add_u32 s{sE}, s{sE}, 4")
    A(f"s_cmp_eq_u32 s{sSTATE}, 0")
    A(f"s_cselect_b32 s{sE}, s{sA}, s{sE}")
    A(f"s_mov_b32 s{sF}, 0")
    A(f"s_mov_b32 s{sPEND}, 0")
    A(f"s_mov_b32 s{sPCELL}, 0")
    attn_params(A)
    A("s_waitcnt vmcnt(52)")
    A("s_barrier")
    sv = lambda g: [("s", x) for x in g[0]] + [("v", x) for x in g[1]]
    def kvstores(g0, g1):
        o = []
        for g in range(g0, g1):
            for q in range(4):
                k = 4 * g + q
                data = f"v[{192+4*k}:{192+4*k+3}]" if k < 16 else f"a[{128+4*(k-16)}:{128+4*(k-16)+3}]"
                o.append(("v", f"buffer_store_dwordx4 {data}, v{vL16}, s[12:15], s60 offen offset:{q*1024} sc1"))
            o.append(("s", f"s_add_u32 s60, s60, s{53 if g % 2 == 0 else 52}"))
        return o
    waitsQ = {0: ["s_waitcnt vmcnt(48)"], 1: ["s_waitcnt vmcnt(52)"], 2: ["s_waitcnt vmcnt(63)"], 3: ["s_waitcnt vmcnt(60)"],
              4: ["s_waitcnt vmcnt(24)"], 5: ["s_waitcnt vmcnt(0)"], 6: []}
    st0 = kvstores(0, 4); st1 = kvstores(4, 8)
    tailsQ = {0: st0[:-1], 1: [st0[-1]] + PQ.wgroup(5, sWOFFL, sT3) + st1[:-1], 2: PQ.wgroup(6, sWOFFL, sT3)}
    def h5(A):
        A(f"s_lshl_b32 s{sT0}, s{sHEAD}, 8"); A(f"s_add_u32 s{sT0}, s{sT0}, {FL_KV}")
        arrive(A, sT0)
    def h6(A):
        A(f"s_cmp_eq_u32 s{sW}, 0"); A("s_cbranch_scc0 K2_H3E")
        A(f"s_lshl_b32 s{sT0}, s{sHEAD}, 8"); A(f"s_add_u32 s{sT0}, s{sT0}, {FL_KV}")
        A(f"v_mov_b32 v{vT[0]}, s{sT0}")
        A(f"buffer_load_dword v{VPOLL2}, v{vT[0]}, s[{S_D}:{S_D+3}], 0 offen sc1")
        A.label("K2_H3E")
    fstamp(A, 1)
    PQ.main(A, waitsQ, tailsQ, {5: h5, 6: h6})
    fstamp(A, 2)
    A("s_nop 4")
    q_convert(A)
    A(f"s_cmp_eq_u32 s{sW}, 0"); A("s_cbranch_scc0 K2_KVOK")
    A(f"s_mov_b32 s{sT2}, 0x10000")
    A("s_waitcnt vmcnt(0)")
    A.label("K2_KVP")
    A(f"v_readfirstlane_b32 s{sT0}, v{VPOLL2}")
    A(f"s_cmp_ge_u32 s{sT0}, 16"); A("s_cbranch_scc1 K2_KVOK")
    A(f"s_sub_u32 s{sT2}, s{sT2}, 1"); A(f"s_cmp_eq_u32 s{sT2}, 0"); A("s_cbranch_scc1 K2_KVOK")
    A("s_sleep 1")
    A(f"buffer_load_dword v{VPOLL2}, v{vT[0]}, s[{S_D}:{S_D+3}], 0 offen sc1")
    A("s_waitcnt vmcnt(0)")
    A("s_branch K2_KVP")
    A.label("K2_KVOK")
    A("s_barrier")
    for g in (kv_group("K", 0), kv_group("K", 1)): issue_group(A, g)
    voffs(A, vVOG, 3584)
    A(f"s_mov_b32 s{sHOOK}, -1")
    A(f"s_cmp_eq_u32 s{sSTATE}, 0")
    A(f"s_cbranch_scc0 K2_NOPUBQ")
    A(f"s_sub_u32 s{sHOOK}, s{sREM}, 1")
    A.label("K2_NOPUBQ")
    o_zero(A)
    A("s_waitcnt vmcnt(0)")
    A.label("K2_GO")
    A("s_barrier")
    A.label("K2_CORE")
    def core_hook(A):
        lab = f"CH_{len(A.L)}"
        A(f"s_cmp_eq_u32 s{sSTATE}, 0")
        A(f"s_cbranch_scc0 {lab}")
        flag_set(A, 0)
        A(f"s_mov_b32 s{sHOOK}, -1")
        A(f"s_branch {lab}E")
        A.label(lab)
        A(f"s_cmp_eq_u32 s{sPRE}, 0")
        A(f"s_cbranch_scc0 {lab}P1")
        af_cell_head(A, sT0, sI_)
        arrive(A, sT0)
        A(f"s_mov_b32 s{sPRE}, 1")
        A(f"s_cmp_gt_u32 s{sREM}, 3")
        A(f"s_cselect_b32 s{sHOOK}, 3, -1")
        A(f"s_branch {lab}E")
        A.label(lab + "P1")
        A(f"s_cmp_eq_u32 s{sPRE}, 1")
        A(f"s_cbranch_scc0 {lab}P2")
        A(f"s_lshl_b32 s{sT0}, s{sPAIR}, 9")
        A(f"s_add_u32 s{sT0}, s{sT0}, 256")
        A(f"v_mov_b32 v{vT[0]}, s{sT0}")
        A(f"buffer_load_dword v{VPOLL2}, v{vT[0]}, s[{S_D}:{S_D+3}], 0 offen sc1")
        A(f"s_mov_b32 s{sPRE}, 2")
        A(f"s_mov_b32 s{sHOOK}, 2")
        A(f"s_branch {lab}E")
        A.label(lab + "P2")
        A("s_waitcnt vmcnt(8)")
        A(f"v_readfirstlane_b32 s{sT0}, v{VPOLL2}")
        A(f"s_mov_b32 s{sHOOK}, -1")
        A(f"s_cmp_eq_u32 s{sT0}, 1")
        A(f"s_cbranch_scc0 {lab}E")
        merge_loads(A)
        A(f"s_mov_b32 s{sPRE}, 3")
        A.label(lab + "E")
    def after_first(A):
        A(f"s_cmp_eq_u32 s{sSTATE}, 0")
        A("s_cbranch_scc0 K2_NOQS")
        h_off(A, 0)
        for k in range(16):
            if k % 4 == 0 and k: A(f"s_add_u32 s{sT0}, s{sT0}, 4096")
            A(f"buffer_store_dwordx4 v[{vQ+4*k}:{vQ+4*k+3}], v{vL16}, s[{S_H}:{S_H+3}], s{sT0} offen offset:{(k%4)*1024} sc1")
        A.label("K2_NOQS")
    A(f"s_mov_b32 s{sPRE}, 0")
    attn_core(A, "K2A", core_hook, None, after_first)
    A(f"s_cmp_eq_u32 s{sSTATE}, 1")
    A("s_cbranch_scc1 K2_BLO")
    A(f"s_cmp_eq_u32 s{sSTATE}, 2")
    A("s_cbranch_scc1 K2_MERGE")
    gu_next_params(A)
    for j in range(2):
        PG.issue(A, PG.wgroup(j, sNWOFF, sT3) + PG.xgroup(j, sNJ, sT3))
    A("s_nop 7")
    xreduce(A, [vL, vL + 1], "v_add_f32", [vT[2], vT[3]])
    A(f"v_rcp_f32 v{vT[0]}, v{vL}")
    A(f"v_rcp_f32 v{vT[1]}, v{vL+1}")
    h_off(A, OPB_OFF)
    fin_norm_store(A, S_H, 8192, " sc1")
    A(f"v_mov_b32 v{vF}, v{vNEGM}")
    A(f"v_mov_b32 v{vF+1}, v{vNEGM+4}")
    A(f"v_mov_b32 v{vF+2}, v{vL}")
    A(f"v_mov_b32 v{vF+3}, v{vL+1}")
    A(f"s_lshl_b32 s{sT0}, s{sPAIR}, 12")
    A(f"s_lshl_b32 s{sT1}, s{sW}, 10")
    A(f"s_add_u32 s{sT0}, s{sT0}, s{sT1}")
    A(f"s_add_u32 s{sT0}, s{sT0}, {OPS_OFF}")
    A(f"buffer_store_dwordx4 v[{vF}:{vF+3}], v{vL16}, s[{S_H}:{S_H+3}], s{sT0} offen sc1")
    A(f"s_mov_b32 s{sPEND}, 1")
    A.label("K2_GU")
    A(f"s_mov_b32 s{sC}, s{sNC}")
    A(f"s_mov_b32 s{sROW0}, s{sNROW}")
    A(f"s_mov_b32 s{sWOFFL}, s{sNWOFF}")
    A(f"s_mov_b32 s{sJ}, s{sNJ}")
    A(f"s_sub_u32 s{sNG}, s{sNG}, 1")
    A(f"s_add_u32 s{sGI}, s{sGI}, 16")
    PG.issue(A, PG.wgroup(2, sWOFFL, sT3) + PG.xgroup(2, sJ, sT3))
    A("s_waitcnt vmcnt(32)")
    A("s_barrier")
    def w0(A): pass
    def pend_hook(A):
        lab = f"PH_{len(A.L)}"
        A(f"s_cmp_eq_u32 s{sPEND}, 0")
        A(f"s_cbranch_scc1 {lab}")
        A(f"s_cmp_eq_u32 s{sPEND}, 1")
        A(f"s_cbranch_scc0 {lab}B")
        flag_set(A, 1)
        A(f"s_branch {lab}C")
        A.label(lab + "B")
        arrive(A, sPCELL)
        A.label(lab + "C")
        A(f"s_mov_b32 s{sPEND}, 0")
        A.label(lab)
    def nextp(A):
        gu_next_params_keep(A)
    waitsG = {0: [f"s_cmp_eq_u32 s{sPEND}, 1", "s_cbranch_scc0 K2_W8", "s_waitcnt vmcnt(29)", "s_branch K2_W9", "K2_W8:", "s_waitcnt vmcnt(20)", "K2_W9:"],
              1: ["s_waitcnt vmcnt(12)"], 2: ["s_waitcnt vmcnt(12)"], 3: ["s_waitcnt vmcnt(12)"],
              4: ["s_waitcnt vmcnt(12)"], 5: ["s_waitcnt vmcnt(0)"], 6: []}
    tailsG = {j: PG.wgroup(j + 3, sWOFFL, sT3) + PG.xgroup(j + 3, sJ, sT3) for j in range(4)}
    tailsG[5] = PG.wgroup(0, sNWOFF, sT3) + PG.xgroup(0, sNJ, sT3)
    tailsG[6] = PG.wgroup(1, sNWOFF, sT3) + PG.xgroup(1, sNJ, sT3)
    def hook4(A):
        gu_next_params(A)
        A(f"s_cmp_eq_u32 s{sNG}, 0")
        A(f"s_cselect_b32 s{S_X+2}, 0, {XN_SIZE}")
    PG.main(A, waitsG, tailsG, {1: pend_hook, 4: hook4})
    A(f"s_mul_i32 s{sT0}, s{sROW0}, {184*1024}")
    A(f"s_lshl_b32 s{sT1}, s{sC}, 12")
    A(f"s_add_u32 s{sT0}, s{sT0}, s{sT1}")
    A(f"s_add_u32 s{sT0}, s{sT0}, {128*1024}")
    n = 0
    for qt in range(2):
        for u in range(4):
            b = vF + (n % 2) * 24; n += 1
            for k in range(2):
                ft = 2 * u + k
                for r in range(4):
                    A(f"v_accvgpr_read_b32 v{b+4*k+r}, a{(ft*2+qt)*4+r}")
                    A(f"v_accvgpr_read_b32 v{b+8+4*k+r}, a{((ft+8)*2+qt)*4+r}")
            for e in range(8):
                A(f"v_mul_f32 v{b+e}, v{b+e}, v{b+8+e}")
            for e in range(4):
                A(f"v_cvt_pk_bf16_f32 v{b+16+e}, v{b+2*e}, v{b+2*e+1}")
            A(f"buffer_store_dwordx4 v[{b+16}:{b+19}], v{vL16}, s[{S_AF}:{S_AF+3}], s{sT0} offen offset:{u*1024}{SC()}")
        A(f"s_add_u32 s{sT0}, s{sT0}, {184*1024}")
    if G.FUSED:
        A(f"s_lshr_b32 s{sPCELL}, s{sROW0}, 3"); A(f"s_lshl_b32 s{sPCELL}, s{sPCELL}, 2"); A(f"s_add_u32 s{sPCELL}, s{sPCELL}, 2")
        A(f"s_cmp_ge_u32 s{sC}, 3"); A(f"s_addc_u32 s{sPCELL}, s{sPCELL}, 0")
        A(f"s_lshl_b32 s{sPCELL}, s{sPCELL}, 8"); A(f"s_add_u32 s{sPCELL}, s{sPCELL}, {FL_AF}")
        A(f"s_mov_b32 s{sPEND}, 2")
    A(f"s_cmp_eq_u32 s{sNG}, 0")
    A("s_cbranch_scc0 K2_GU")
    A("s_branch K2_FIN")
    A.label("K2_BLO")
    A(f"s_mov_b32 s{sT3}, s{sROW0}")
    A(f"s_mov_b32 s{sSTATE}, 2")
    A(f"s_sub_u32 s{sQB}, 15, s{sI_}")
    A(f"s_mov_b32 s{sF}, s{sA}")
    A(f"s_lshl_b32 s{sE}, s{sQB}, 2")
    A(f"s_add_u32 s{sE}, s{sE}, 4")
    A(f"s_mov_b32 s{sJ}, s{sROW0}")
    attn_params(A)
    for j in range(2): issue_group(A, kv_group("K", j))
    A("s_nop 7")
    xreduce(A, [vL, vL + 1], "v_add_f32", [vT[2], vT[3]])
    A(f"v_rcp_f32 v{vT[0]}, v{vL}")
    A(f"v_rcp_f32 v{vT[1]}, v{vL+1}")
    af_off(A)
    fin_norm_store(A, S_AF, 184 * 1024, SC())
    row0(A, sROW0, sQB)
    flag_wait(A, 0)
    h_off(A, 0)
    for k in range(16):
        if k % 4 == 0 and k: A(f"s_add_u32 s{sT0}, s{sT0}, 4096")
        A(f"buffer_load_dwordx4 v[{vQ+4*k}:{vQ+4*k+3}], v{vL16}, s[{S_H}:{S_H+3}], s{sT0} offen offset:{(k%4)*1024} sc1")
    A(f"s_mov_b32 s{sHOOK}, s{sREM}")
    o_zero(A)
    A("s_waitcnt vmcnt(0)")
    A("s_branch K2_GO")
    A.label("K2_MERGE")
    A("s_nop 7")
    xreduce(A, [vL, vL + 1], "v_add_f32", [vT[2], vT[3]])
    A(f"s_cmp_eq_u32 s{sPRE}, 3")
    A("s_cbranch_scc1 K2_MRDY")
    A(f"s_lshl_b32 s{sT0}, s{sPAIR}, 9")
    A(f"s_add_u32 s{sT0}, s{sT0}, 256")
    A(f"v_mov_b32 v{vT[0]}, s{sT0}")
    A(f"s_mov_b32 s{sT2}, 0x10000")
    A.label("K2_MP")
    A(f"buffer_load_dword v{vT[1]}, v{vT[0]}, s[{S_D}:{S_D+3}], 0 offen sc1")
    A("s_waitcnt vmcnt(0)")
    A(f"v_readfirstlane_b32 s{sT0}, v{vT[1]}")
    A(f"s_cmp_eq_u32 s{sT0}, 1"); A("s_cbranch_scc1 K2_MPOK")
    A(f"s_sub_u32 s{sT2}, s{sT2}, 1"); A(f"s_cmp_eq_u32 s{sT2}, 0"); A("s_cbranch_scc1 K2_MPOK")
    A("s_sleep 4")
    A("s_branch K2_MP")
    A.label("K2_MPOK")
    merge_loads(A)
    A.label("K2_MRDY")
    A("s_waitcnt vmcnt(0)")
    wA = [76, 77]; wBf = [78, 79]
    for qt in range(2):
        A(f"v_min_f32 v80, v{vMS+qt}, v{vNEGM+4*qt}")
        A(f"v_sub_f32 v81, v80, v{vMS+qt}")
        A(f"v_sub_f32 v82, v80, v{vNEGM+4*qt}")
        A(f"v_exp_f32 v81, v81")
        A(f"v_exp_f32 v82, v82")
        A("s_nop 0")
        A(f"v_mul_f32 v81, v81, v{vMS+2+qt}")
        A(f"v_fma_f32 v83, v82, v{vL+qt}, v81")
        A(f"v_rcp_f32 v83, v83")
        A("s_nop 0")
        A(f"v_mul_f32 v{wA[qt]}, v81, v83")
        A(f"v_mul_f32 v{wBf[qt]}, v82, v83")
    af_off(A)
    n = 0
    for qt in range(2):
        for u in range(8):
            b = 84 + (n % 2) * 24; n += 1
            pa = 128 + (qt * 8 + u) * 4
            for k in range(2):
                for r in range(4):
                    A(f"v_accvgpr_read_b32 v{b+4*k+r}, a{((2*u+k)*2+qt)*4+r}")
            for e in range(4):
                A(f"v_accvgpr_read_b32 v{b+20+e}, a{pa+e}")
            for e in range(8):
                A(f"v_mul_f32 v{b+e}, v{b+e}, v{wBf[qt]}")
            for e in range(4):
                A(f"v_lshlrev_b32 v{b+8+2*e}, 16, v{b+20+e}")
                A(f"v_and_b32 v{b+9+2*e}, 0xffff0000, v{b+20+e}")
            for e in range(8):
                A(f"v_fmac_f32 v{b+e}, v{b+8+e}, v{wA[qt]}")
            for e in range(4):
                A(f"v_cvt_pk_bf16_f32 v{b+16+e}, v{b+2*e}, v{b+2*e+1}")
            if u == 4: A(f"s_add_u32 s{sT0}, s{sT0}, 4096")
            A(f"buffer_store_dwordx4 v[{b+16}:{b+19}], v{vL16}, s[{S_AF}:{S_AF+3}], s{sT0} offen offset:{(u%4)*1024}{SC()}")
        A(f"s_add_u32 s{sT0}, s{sT0}, {184*1024 - 4096}")
    if G.FUSED:
        af_cell_head(A, sPCELL, sQB)
        A(f"s_mov_b32 s{sPEND}, 2")
    A.label("K2_FIN")

def gen_k2(A):
    name = "k2_attn_kernel"
    kernel_header(A, name)
    A("s_cmp_ge_u32 s2, 256")
    A("s_cbranch_scc1 K2_END")
    stamp(A, 0); rstamp(A, 5)
    A(f"s_load_dwordx2 s[{sWS}:{sWS+1}], s[0:1], {KA['ws']}")
    A(f"s_load_dwordx2 s[54:55], s[0:1], {KA['wq']}")
    A(f"s_load_dwordx4 s[56:59], s[0:1], {KA['wg']}")
    A("v_lshrrev_b32 v1, 6, v0")
    A(f"v_and_b32 v{vLANE}, 63, v0")
    A(f"v_readfirstlane_b32 s{sW}, v1")
    k2_body(A)
    if G.STAMP: A("s_waitcnt vmcnt(0) lgkmcnt(0)")
    stamp(A, 4)
    stamp_flush(A, 6, sWS, sWS + 1, sW, kidx=1)
    A.label("K2_END")
    A("s_endpgm")
    return name, NVGPR, 128


def k1_pre_epilogue(A, variant, DBG, pre, pack, post):
    PQ = Proj("Q", [0, 1, 2, 3, 4, 0, 1])
    fstamp(A, 0)
    lab = f"PE{variant}"
    K1POLL = 220
    A("s_waitcnt vmcnt(16)")
    A(f"s_cmp_eq_u32 s{sW}, 0"); A(f"s_cbranch_scc0 {lab}_OK")
    srd(A, 48, DBG, DBG + 1, 256)
    A("v_mov_b32 v11, 0")
    A("s_mov_b32 s52, 0x10000")
    A.label(f"{lab}_P")
    A(f"v_readfirstlane_b32 s53, v{K1POLL}")
    A("s_cmp_ge_u32 s53, 256"); A(f"s_cbranch_scc1 {lab}_OK")
    A("s_sub_u32 s52, s52, 1"); A("s_cmp_eq_u32 s52, 0"); A(f"s_cbranch_scc1 {lab}_OK")
    A("s_sleep 2")
    A(f"buffer_load_dword v{K1POLL}, v11, s[48:51], 0 offen sc1")
    A("s_waitcnt vmcnt(0)")
    A(f"s_branch {lab}_P")
    A.label(f"{lab}_OK")
    A("s_barrier")
    A("s_lshr_b32 s52, s2, 3")
    A("s_bfe_u32 s53, s52, 0x30001")
    A("s_sub_u32 s52, 15, s53")
    A("s_cmp_lt_u32 s2, 128")
    A("s_cselect_b32 s52, s52, s53")
    A("s_lshl_b32 s52, s52, 3"); A(f"s_lshl_b32 s53, s{sW}, 1"); A("s_add_u32 s52, s52, s53")
    A(f"s_mul_i32 s{sJ}, s52, {14*1024}")
    srd(A, S_X, sWS, sWS + 1, XN_SIZE, XN_OFF)
    A(f"v_lshlrev_b32 v{vL16}, 4, v{vLANE}")
    for q in range(4): A(f"v_mov_b32 v{vVOW+q}, v{216+q}")
    A(f"s_lshl_b32 s{sWB}, s{sW}, 12")
    A(f"s_lshl_b32 s46, s{sW}, 17"); A(f"s_lshl_b32 s52, s{sHEAD}, 9"); A("s_add_u32 s46, s46, s52")
    for x in pre: A(x)
    items = (PQ.xgroup(0, sJ, sT3) + PQ.xgroup(1, sJ, sT3) + PQ.wgroup(2, 46, sT3) + PQ.xgroup(2, sJ, sT3) + PQ.wgroup(3, 46, sT3)
             + PQ.xgroup(3, sJ, sT3) + PQ.wgroup(4, 46, sT3) + PQ.xgroup(4, sJ, sT3) + PQ.xgroup(5, sJ, sT3) + PQ.xgroup(6, sJ, sT3))
    nv = sum(1 for k, _ in items if k == "v")
    per = (len(pack) + nv - 1) // nv
    pi = 0; prev_s = False
    for k, x in items:
        if k == "v" and prev_s: A("s_nop 0")
        A(x); prev_s = (k == "s")
        if k == "v":
            for y in pack[pi: pi + per]: A(y)
            pi += per
    for y in pack[pi:]: A(y)
    for x in post: A(x)
G.k1_pre_epilogue = k1_pre_epilogue
```

```python
from gen_common import *
import gen_common as G
import os

MF = "v_mfma_f32_16x16x32_bf16"
vLANE, vL16 = 2, 3
vT = [4, 5, 6, 7, 8, 9]
vVOW = 10
vXO = 12
vWR = 13
vFR = 28
vAF = 60
NFR = 8; DPRE = 5
STG = 32768

(sW, sCB, sRB, sS, sT0, sT1, sT2, sKS, sNST, sST, sAOFF, sWM0, sTT, sKL, sLD, sCOL) = range(30, 46)
sLA = 70
S_A, S_W, S_P, S_X, S_O, S_D = 4, 8, 12, 16, 20, 24
sWS = 28
P3_WG = 4 * 6 * 1024

def k3_body(A):
    fused = G.FUSED
    A(f"s_load_dwordx2 s[{sWS}:{sWS+1}], s[0:1], {KA['ws']}")
    A(f"s_load_dwordx2 s[46:47], s[0:1], {KA['wo']}")
    A(f"s_load_dwordx2 s[48:49], s[0:1], {KA['wd']}")
    A(f"s_load_dwordx2 s[50:51], s[0:1], {KA['x']}")
    A(f"s_load_dwordx4 s[52:55], s[0:1], {KA['out']}")
    A("v_lshrrev_b32 v1, 6, v0")
    A(f"v_and_b32 v{vLANE}, 63, v0")
    A(f"v_readfirstlane_b32 s{sW}, v1")
    A(f"v_lshlrev_b32 v{vL16}, 4, v{vLANE}")
    A("s_and_b32 s3, s2, 7")
    A(f"s_lshr_b32 s{sT0}, s2, 3")
    A(f"s_and_b32 s{sCB}, s{sT0}, 3")
    A(f"s_lshr_b32 s{sRB}, s{sT0}, 2")
    A(f"s_lshr_b32 s{sT1}, s3, 2")
    A(f"s_lshl_b32 s{sT1}, s{sT1}, 3")
    A(f"s_add_u32 s{sRB}, s{sRB}, s{sT1}")
    A(f"s_and_b32 s{sS}, s3, 3")
    A(f"s_lshl_b32 s{sTT}, s{sRB}, 2")
    A(f"s_add_u32 s{sTT}, s{sTT}, s{sCB}")
    A(f"s_mul_i32 s{sKS}, s{sS}, 48")
    A(f"s_cmp_eq_u32 s{sS}, 3")
    A(f"s_cselect_b32 s{sKS}, 140, s{sKS}")
    A(f"s_cmp_ge_u32 s{sS}, 2")
    A(f"s_cselect_b32 s{sNST}, 11, 12")
    A(f"s_mul_i32 s{sCOL}, s{sCB}, 224")
    A(f"s_and_b32 s{sCOL}, s{sCOL}, 0xffffffc0")
    A("s_waitcnt lgkmcnt(0)")
    srd(A, S_A, sWS, sWS + 1, AF_SIZE, AF_OFF)
    srd(A, S_W, 46, 47, 4096 * 896)
    srd(A, S_P, sWS, sWS + 1, 64 * 4 * 3 * 4 * 2048, P3_OFF)
    srd(A, S_X, 50, 51, 2048 * 896)
    srd(A, S_O, 52, 53, 2048 * 896)
    srd(A, S_D, sWS, sWS + 1, 65536, FL_OFF + FL_K3)
    A(f"v_lshrrev_b32 v{vT[0]}, 4, v{vLANE}")
    A(f"v_and_b32 v{vT[1]}, 15, v{vLANE}")
    for par in range(2):
        A(f"v_add_u32 v{vT[2]}, {4*par}, v{vT[0]}")
        A(f"v_lshlrev_b32 v{vT[2]}, 1, v{vT[2]}")
        A(f"v_xor_b32 v{vT[2]}, v{vT[2]}, v{vT[1]}")
        A(f"v_lshlrev_b32 v{vT[2]}, 4, v{vT[2]}")
        A(f"v_mul_u32_u24 v{vT[3]}, 896, v{vT[0]}")
        A(f"v_add_u32 v{vVOW+par}, v{vT[2]}, v{vT[3]}")
    VQ = 220
    for q in range(8):
        A(f"v_add_u32 v{VQ+q}, {q*3584 - (q&3)*1024}, v{vVOW+(q&1)}")
    A(f"v_lshrrev_b32 v{vT[0]}, 4, v{vLANE}")
    A(f"v_bfe_u32 v{vT[1]}, v{vLANE}, 2, 2")
    A(f"v_lshl_add_u32 v{vT[2]}, v{vT[0]}, 2, v{vT[1]}")
    A(f"v_and_b32 v{vT[3]}, 7, v{vT[2]}")
    A(f"v_lshlrev_b32 v{vT[3]}, 1, v{vT[3]}")
    A(f"v_lshlrev_b32 v{vT[2]}, 8, v{vT[2]}")
    A(f"v_and_b32 v{vT[4]}, 1, v{vLANE}")
    A(f"v_lshl_add_u32 v{vT[2]}, v{vT[4]}, 3, v{vT[2]}")
    A(f"v_bfe_u32 v{vT[4]}, v{vLANE}, 1, 1")
    A(f"s_and_b32 s{sT0}, s{sCB}, 1")
    A(f"s_lshl_b32 s{sT0}, s{sT0}, 1")
    A(f"v_add_u32 v{vT[4]}, s{sT0}, v{vT[4]}")
    for ct in range(7):
        A(f"v_add_u32 v{vT[5]}, {2*ct}, v{vT[4]}")
        A(f"v_xor_b32 v{vT[5]}, v{vT[5]}, v{vT[3]}")
        A(f"v_lshl_add_u32 v{vWR+ct}, v{vT[5]}, 4, v{vT[2]}")
        A(f"v_add_u32 v{vWR+7+ct}, 65536, v{vWR+ct}")
    A(f"s_lshl_b32 s{sAOFF}, s{sRB}, 3")
    A(f"s_lshl_b32 s{sT0}, s{sW}, 1")
    A(f"s_add_u32 s{sAOFF}, s{sAOFF}, s{sT0}")
    A(f"s_mul_i32 s{sAOFF}, s{sAOFF}, {184*1024}")
    A(f"s_lshl_b32 s{sT0}, s{sKS}, 10")
    A(f"s_add_u32 s{sAOFF}, s{sAOFF}, s{sT0}")
    A(f"s_lshl_b32 s{sWM0}, s{sW}, 13")
    A(f"s_mov_b32 s{sLD}, 0")
    A(f"s_mov_b32 s{sLA}, 0")
    A("s_and_b32 s57, s47, 0xffff")
    A("s_and_b32 s56, s49, 0xffff")
    A(f"s_mov_b32 s58, {4096*896}")

    def loads(slot, aslot=None):
        aslot = slot if aslot is None else aslot
        o = []
        o.append([f"s_cmp_ge_u32 s{sLD}, s{sNST}",
                  f"s_cselect_b32 s{sKL}, 1, 0"])
        o.append([f"s_cmp_ge_u32 s{sKS}, 128",
                  f"s_cselect_b32 s{S_W}, s48, s46",
                  f"s_cselect_b32 s{S_W+1}, s56, s57"])
        o.append([f"s_cselect_b32 s{S_W+2}, {1792*896}, s58",
                  f"s_cselect_b32 s{sT1}, 128, 0",
                  f"s_sub_u32 s{sT0}, s{sKS}, s{sT1}"])
        o.append([f"s_add_u32 s{sT0}, s{sT0}, s{sW}",
                  f"s_mul_i32 s{sT0}, s{sT0}, {32*896}",
                  f"s_add_u32 s{sT0}, s{sT0}, s{sCOL}"])
        o.append([f"s_cmp_eq_u32 s{sKL}, 1" if not os.environ.get('K3NOW') else f"s_cmp_eq_u32 s{sKL}, s{sKL}",
                  f"s_cselect_b32 s{S_W+2}, 0, s{S_W+2}",
                  f"s_add_u32 m0, s{sWM0}, {slot*STG}"])
        d = []
        for q in range(8):
            if q == 4: d.append(f"s_add_u32 m0, s{sWM0}, {slot*STG + 4096}")
            d.append(f"buffer_load_dwordx4 v{VQ+q}, s[{S_W}:{S_W+3}], s{sT0} offen offset:{(q%4)*1024} lds")
        al = [f"s_cmp_ge_u32 s{sLA}, s{sNST}", f"s_cselect_b32 s{S_A+2}, 0, {0 if os.environ.get('K3NOA') else AF_SIZE}", f"s_add_u32 s{sT2}, s{sAOFF}, {184*1024}"]
        for kk in range(4):
            for rt in range(2):
                r = vAF + ((aslot * 4 + kk) * 2 + rt) * 4
                al.append(f"buffer_load_dwordx4 v[{r}:{r+3}], v{vL16}, s[{S_A}:{S_A+3}], s{sAOFF if rt == 0 else sT2} offen offset:{kk*1024}{' sc1' if fused else ''}")
        adv = [f"s_add_u32 s{sAOFF}, s{sAOFF}, 4096", f"s_add_u32 s{sKS}, s{sKS}, 4", f"s_add_u32 s{sLD}, s{sLD}, 1", f"s_add_u32 s{sLA}, s{sLA}, 1"]
        return o, d, al, adv
    if not fused:
        for slot in range(3):
            o, d, al, adv = loads(slot)
            for grp in o:
                for x in grp: A(x)
            A("s_nop 0")
            for x in d:
                A(x)
                if x.startswith("s_add_u32 m0"): A("s_nop 0")
            for x in al: A(x)
            for x in adv: A(x)
    else:
        fstamp(A, 3)
        A("s_barrier")
        A(f"s_mov_b32 s59, s{sAOFF}")
        for slot in range(3):
            o, d, al, adv = loads(slot)
            for grp in o:
                for x in grp: A(x)
            A("s_nop 0")
            for x in d:
                A(x)
                if x.startswith("s_add_u32 m0"): A("s_nop 0")
            for x in adv[1:3]: A(x)
        A("s_waitcnt vmcnt(24)")
        A("s_barrier")
        G.k2_final_arrive(A)
        A(f"s_cmp_eq_u32 s{sW}, 0"); A("s_cbranch_scc0 K3_AFOK")
        A(f"s_lshl_b32 s{sT0}, s{sRB}, 2"); A(f"s_add_u32 s{sT0}, s{sT0}, s{sS}"); A(f"s_lshl_b32 s{sT0}, s{sT0}, 8")
        A(f"s_add_u32 s{sT0}, s{sT0}, {FL_AF - FL_K3}")
        A(f"v_mov_b32 v{vT[1]}, s{sT0}")
        A(f"s_cmp_ge_u32 s{sS}, 2"); A(f"s_cselect_b32 s{sT1}, 7, 6"); A(f"s_cmp_eq_u32 s{sS}, 3"); A(f"s_cselect_b32 s{sT1}, 11, s{sT1}")
        A(f"s_mov_b32 s{sT2}, 0x10000")
        A.label("K3_AFP")
        A(f"buffer_load_dword v{vT[0]}, v{vT[1]}, s[{S_D}:{S_D+3}], 0 offen sc1")
        A("s_waitcnt vmcnt(0)")
        A(f"v_readfirstlane_b32 s{sT0}, v{vT[0]}")
        A(f"s_cmp_ge_u32 s{sT0}, s{sT1}"); A("s_cbranch_scc1 K3_AFOK")
        A(f"s_sub_u32 s{sT2}, s{sT2}, 1"); A(f"s_cmp_eq_u32 s{sT2}, 0"); A("s_cbranch_scc1 K3_AFOK")
        A("s_sleep 4")
        A("s_branch K3_AFP")
        A.label("K3_AFOK")
        A("s_barrier")
        for slot in range(4):
            o, d, al, adv = loads(0, slot)
            for x in al: A(x)
            A(adv[0]); A(adv[3])
    A(f"s_mov_b32 s{sST}, 0")
    stamp(A, 1)

    def rd(n, slot, ringbase):
        kk, ct = n // 7, n % 7
        r = vFR + 4 * ((ringbase + n) % NFR)
        off = (slot % 2) * 32768 + kk * 8192
        a = vWR + ct + (7 if slot >= 2 else 0)
        return [f"ds_read_b64_tr_b16 v[{r}:{r+1}], v{a} offset:{off}",
                f"ds_read_b64_tr_b16 v[{r+2}:{r+3}], v{a} offset:{off + 4096}"]
    fstamp(A, 4)
    NS = 12
    seq = ["W0", "W1", "W2", "A0", "A1", "A2", "A3"]
    def need(tags):
        last = max(i for i, g in enumerate(seq) if g in tags)
        return 8 * (len(seq) - 1 - last)
    A(f"s_waitcnt vmcnt({need(['W0'])})")
    A("s_barrier")
    for n in range(DPRE):
        for x in rd(n, 0, 0): A(x)
    for st in range(NS):
        slot = st % 4; aslot = st % 5
        mf = []
        for n in range(28):
            kk, ct = n // 7, n % 7
            r = vFR + 4 * ((st * 28 + n) % NFR)
            for rt in range(2):
                acc = (rt * 7 + ct) * 4
                b = vAF + ((aslot * 4 + kk) * 2 + rt) * 4
                mf.append(f"{MF} {ar(acc,4)}, {vr(r,4)}, {vr(b,4)}, " + ("0" if (st == 0 and kk == 0) else ar(acc,4)))
        sc = Sched(mf, f"k3s{st}")
        tags = [f"A{st}"] + ([f"W{st+1}"] if st + 1 < NS else [])
        sc.S(-1, f"s_waitcnt vmcnt({min(63, need(tags))}) lgkmcnt({2*(DPRE-1)})")
        sc.S(-1, "s_barrier")
        for n in range(28):
            m = n + DPRE
            lastn = 27 if st == NS - 1 else 10**9
            issued = min(lastn, n - 1 + DPRE)
            if n + 1 <= 27 or st < NS - 1:
                sc.S(2 * n, f"s_waitcnt lgkmcnt({max(0, 2 * (issued - (n + 1)))})")
            if m < 28: x = rd(m, slot, st * 28)
            elif st < NS - 1: x = rd(m - 28, (slot + 1) % 4, st * 28 + 28)
            else: continue
            sc.V(2 * n, x[0]); sc.V(2 * n, x[1])
        o, d, al, adv = loads((st + 3) % 4, (st + 4) % 5)
        vm = []
        if st + 3 < NS:
            for k, grp in enumerate(o): sc.s[2 * k + 1] += grp
            vm += d; seq.append(f"W{st+3}")
        if st + 4 < NS:
            vm += al; seq.append(f"A{st+4}")
        nvm = sum(1 for x in vm if not x.startswith("s_"))
        k = 0
        for x in vm:
            g = 11 + 2 * int(k * 22 / max(1, nvm - 1)) if nvm > 1 else 11
            if x.startswith("s_"):
                sc.s[g - 1].append(x)
            else:
                sc.v[g].append(x); k += 1
        post = []
        if st + 3 < NS: post += [adv[1], adv[2]]
        if st + 4 < NS: post += [adv[0], adv[3]]
        sc.emit(A)
        for x in post: A(x)
        if st == NS - 2:
            A(f"s_cmp_eq_u32 s{sNST}, {NS-1}")
            A("s_cbranch_scc1 K3_EPI")
    A.label("K3_EPI")
    A("s_waitcnt vmcnt(0) lgkmcnt(0)")
    stamp(A, 2)
    if os.environ.get("K3ST"): fstamp(A, 1)
    A("s_nop 7")
    B = 60
    for t in range(14):
        for r in range(4):
            A(f"v_accvgpr_read_b32 v{B+64+r}, a{t*4+r}") if False else None
    for t in range(16):
        if t < 14:
            for r in range(4):
                A(f"v_accvgpr_read_b32 v{vFR+4*(t%4)+r}, a{t*4+r}")
            A(f"v_cvt_pk_bf16_f32 v{B+PK(t)}, v{vFR+4*(t%4)}, v{vFR+4*(t%4)+1}")
            A(f"v_cvt_pk_bf16_f32 v{B+PK(t)+1}, v{vFR+4*(t%4)+2}, v{vFR+4*(t%4)+3}")
        else:
            A(f"v_mov_b32 v{B+PK(t)}, 0")
            A(f"v_mov_b32 v{B+PK(t)+1}, 0")
    for d in range(4):
        lab = f"K3_SK{d}"
        A(f"s_cmp_eq_u32 s{sS}, {d}")
        A(f"s_cbranch_scc1 {lab}")
        A(f"s_sub_u32 s{sT0}, s{sS}, {d+1}")
        A(f"s_and_b32 s{sT0}, s{sT0}, 3")
        A(f"s_lshl_b32 s{sT1}, s{sTT}, 2")
        A(f"s_add_u32 s{sT1}, s{sT1}, {d}")
        A(f"s_mul_i32 s{sT1}, s{sT1}, 3")
        A(f"s_add_u32 s{sT1}, s{sT1}, s{sT0}")
        A(f"s_lshl_b32 s{sT1}, s{sT1}, 2")
        A(f"s_add_u32 s{sT1}, s{sT1}, s{sW}")
        A(f"s_lshl_b32 s{sT1}, s{sT1}, 11")
        A(f"buffer_store_dwordx4 v[{B+8*d}:{B+8*d+3}], v{vL16}, s[{S_P}:{S_P+3}], s{sT1} offen sc1")
        A(f"buffer_store_dwordx4 v[{B+8*d+4}:{B+8*d+7}], v{vL16}, s[{S_P}:{S_P+3}], s{sT1} offen offset:1024 sc1")
        A.label(lab)
    A(f"v_and_b32 v{vT[0]}, 15, v{vLANE}")
    A(f"s_lshl_b32 s{sT0}, s{sRB}, 7")
    A(f"s_lshl_b32 s{sT1}, s{sW}, 5")
    A(f"s_add_u32 s{sT0}, s{sT0}, s{sT1}")
    A(f"v_add_u32 v{vT[0]}, s{sT0}, v{vT[0]}")
    A(f"v_mul_u32_u24 v{vXO}, 896, v{vT[0]}")
    A(f"v_lshrrev_b32 v{vT[2]}, 4, v{vLANE}")
    A(f"v_lshl_add_u32 v{vXO}, v{vT[2]}, 3, v{vXO}")
    A(f"s_mul_i32 s{sT1}, s{sCB}, 224")
    A(f"v_add_u32 v{vXO}, s{sT1}, v{vXO}")
    for k in range(4):
        A(f"s_add_u32 s{62+k}, s{sS}, {4*k}")
        A(f"s_cmp_ge_u32 s{62+k}, 7")
        A(f"s_cselect_b32 s{sT0}, {16*896 - 7*32}, 0")
        A(f"s_lshl_b32 s{66+k}, s{62+k}, 5")
        A(f"s_add_u32 s{66+k}, s{66+k}, s{sT0}")
    XB = 100
    for k in range(4):
        A(f"buffer_load_dwordx2 v[{XB+2*k}:{XB+2*k+1}], v{vXO}, s[{S_X}:{S_X+3}], s{66+k} offen")
    OW = 108
    for sv in range(4):
        A(f"s_cmp_eq_u32 s{sS}, {sv}")
        A(f"s_cbranch_scc0 K3_OW{sv}")
        for k in range(4):
            t = sv + 4 * k
            for r in range(4):
                if t < 14: A(f"v_accvgpr_read_b32 v{OW+4*k+r}, a{t*4+r}")
                else: A(f"v_mov_b32 v{OW+4*k+r}, 0")
        A.label(f"K3_OW{sv}")
    A("s_waitcnt vmcnt(0)")
    A("s_barrier")
    if os.environ.get("K3ST"): fstamp(A, 0)
    A(f"s_cmp_eq_u32 s{sW}, 0")
    A("s_cbranch_scc0 K3_GO")
    A(f"s_lshl_b32 s{sT0}, s{sTT}, 8")
    A(f"v_mov_b32 v{vT[1]}, s{sT0}")
    A(f"v_mov_b32 v{vT[0]}, 1")
    A(f"v_cmp_eq_u32 vcc, 0, v{vLANE}")
    A("s_and_saveexec_b64 s[60:61], vcc")
    A(f"s_mov_b32 s{sT0}, 0")
    A("s_cbranch_execz K3_ATX")
    A(f"buffer_atomic_add v{vT[0]}, v{vT[1]}, s[{S_D}:{S_D+3}], 0 offen sc0")
    A("s_waitcnt vmcnt(0)")
    A(f"v_readfirstlane_b32 s{sT0}, v{vT[0]}")
    A.label("K3_ATX")
    A("s_mov_b64 exec, s[60:61]")
    A(f"s_cmp_ge_u32 s{sT0}, 3")
    A("s_cbranch_scc1 K3_GO")
    A(f"s_mov_b32 s{sT2}, 0x10000")
    A.label("K3_POLL")
    A(f"buffer_load_dword v{vT[0]}, v{vT[1]}, s[{S_D}:{S_D+3}], 0 offen sc1")
    A("s_waitcnt vmcnt(0)")
    A(f"v_readfirstlane_b32 s{sT0}, v{vT[0]}")
    A(f"s_cmp_ge_u32 s{sT0}, 4")
    A("s_cbranch_scc1 K3_GO")
    A(f"s_sub_u32 s{sT2}, s{sT2}, 1")
    A(f"s_cmp_eq_u32 s{sT2}, 0")
    A("s_cbranch_scc1 K3_GO")
    A("s_sleep 1")
    A("s_branch K3_POLL")
    A.label("K3_GO")
    A("s_barrier")
    if os.environ.get("K3ST"): fstamp(A, 2)
    A(f"s_lshl_b32 s{sT0}, s{sTT}, 2")
    A(f"s_add_u32 s{sT0}, s{sT0}, s{sS}")
    A(f"s_mul_i32 s{sT0}, s{sT0}, 12")
    A(f"s_add_u32 s{sT0}, s{sT0}, s{sW}")
    A(f"s_lshl_b32 s{sT0}, s{sT0}, 11")
    R = 130
    for idx in range(3):
        for h in range(2):
            r = R + (idx * 2 + h) * 4
            A(f"buffer_load_dwordx4 v[{r}:{r+3}], v{vL16}, s[{S_P}:{S_P+3}], s{sT0} offen offset:{h*1024} sc1")
        if idx < 2: A(f"s_add_u32 s{sT0}, s{sT0}, {4*2048}")
    A("s_waitcnt vmcnt(0)")
    for k in range(4):
        if k == 3:
            A(f"s_cmp_ge_u32 s{62+3}, 14")
            A("s_cbranch_scc1 K3_FIN")
        o = OW + 4 * k
        tmp = 160 + 8 * (k % 2)
        for idx in range(3):
            src = R + (idx * 2 + k // 2) * 4 + (k % 2) * 2
            A(f"v_lshlrev_b32 v{tmp}, 16, v{src}")
            A(f"v_and_b32 v{tmp+1}, 0xffff0000, v{src}")
            A(f"v_lshlrev_b32 v{tmp+2}, 16, v{src+1}")
            A(f"v_and_b32 v{tmp+3}, 0xffff0000, v{src+1}")
            for e in range(4):
                A(f"v_add_f32 v{o+e}, v{o+e}, v{tmp+e}")
        x0, x1 = XB + 2 * k, XB + 2 * k + 1
        A(f"v_lshlrev_b32 v{tmp}, 16, v{x0}")
        A(f"v_and_b32 v{tmp+1}, 0xffff0000, v{x0}")
        A(f"v_lshlrev_b32 v{tmp+2}, 16, v{x1}")
        A(f"v_and_b32 v{tmp+3}, 0xffff0000, v{x1}")
        for e in range(4):
            A(f"v_add_f32 v{o+e}, v{o+e}, v{tmp+e}")
        A(f"v_cvt_pk_bf16_f32 v{tmp+4}, v{o}, v{o+1}")
        A(f"v_cvt_pk_bf16_f32 v{tmp+5}, v{o+2}, v{o+3}")
        A(f"buffer_store_dwordx2 v[{tmp+4}:{tmp+5}], v{vXO}, s[{S_O}:{S_O+3}], s{66+k} offen")
    A.label("K3_FIN")

def gen_k3(A):
    name = "k3_out_kernel"
    kernel_header(A, name)
    A("s_cmp_ge_u32 s2, 256")
    A("s_cbranch_scc1 K3_END")
    stamp(A, 0); rstamp(A, 5)
    k3_body(A)
    stamp(A, 3)
    if G.STAMP: A("s_waitcnt vmcnt(0) lgkmcnt(0)")
    stamp(A, 4)
    stamp_flush(A, 6, sWS, sWS + 1, sW, kidx=2)
    A.label("K3_END")
    A("s_endpgm")
    return name, 228, 56

def PK(t):
    return 8 * (t & 3) + 2 * (t >> 2)
```

```python
from gen_common import *
import gen_common as G
import math, os
from gen_attn import *

DYN = not os.environ.get('NODYN')
VPOLL3 = 254
A2 = int(os.environ.get("A2", 27))
A1 = int(os.environ.get("A1", 31))
sSTATE, sPAIR, sI_, sA, sNG, sGI, sC, sPEND, sNC, sNROW = 61, 62, 63, 64, 65, 66, 67, 50, 51, 52
sNWOFF, sNJ = 53, 60
S_H, S_D = 68, 72
S_WG, S_WU = 80, 84
QH_SZ = 128 * 65536
OPB_OFF = QH_SZ
OPS_OFF = 2 * QH_SZ

def frag(i):
    return vFR + 4 * (i % NFR)

def voffs(A, dst, stride):
    t0, t1, t2 = vT[0], vT[1], vT[2]
    A(f"v_lshrrev_b32 v{t0}, 4, v{vLANE}")
    A(f"v_and_b32 v{t1}, 15, v{vLANE}")
    for q in range(4):
        A(f"v_or_b32 v{t2}, {((q>>1)&1)<<2}, v{t0}")
        A(f"v_lshlrev_b32 v{t2}, 1, v{t2}")
        A(f"v_xor_b32 v{t2}, v{t2}, v{t1}")
        A(f"v_lshlrev_b32 v{t2}, 4, v{t2}")
        A(f"v_add_u32 v{dst+q}, {4*q}, v{t0}")
        A(f"v_mul_u32_u24 v{dst+q}, {stride}, v{dst+q}")
        A(f"v_add_u32 v{dst+q}, v{dst+q}, v{t2}")
        A(f"v_subrev_u32 v{dst+q}, {q*1024}, v{dst+q}")

def wr_setup(A):
    t0, t1, t2 = vT[0], vT[1], vT[2]
    A(f"v_bfe_u32 v{t0}, v{vLANE}, 2, 2")
    A(f"v_lshrrev_b32 v{t1}, 4, v{vLANE}")
    A(f"v_lshl_add_u32 v{t1}, v{t1}, 3, v{t0}")
    A(f"v_lshlrev_b32 v{t1}, 8, v{t1}")
    A(f"v_and_b32 v{t2}, 1, v{vLANE}")
    A(f"v_lshl_add_u32 v{t1}, v{t2}, 3, v{t1}")
    A(f"v_bfe_u32 v{t2}, v{vLANE}, 4, 1")
    A(f"v_lshl_add_u32 v{t0}, v{t2}, 2, v{t0}")
    A(f"v_lshlrev_b32 v{t0}, 1, v{t0}")
    A(f"v_bfe_u32 v{t2}, v{vLANE}, 1, 1")
    for ft in range(8):
        A(f"v_add_u32 v{vT[3]}, {2*ft}, v{t2}")
        A(f"v_xor_b32 v{vT[3]}, v{vT[3]}, v{t0}")
        A(f"v_lshl_add_u32 v{vWR+ft}, v{vT[3]}, 4, v{t1}")

class Proj:
    def __init__(self, kind, slotmap=None):
        self.kind = kind
        self.slotmap = slotmap or [0, 1, 2, 3, 0, 1, 2]
        self.stride = 8192 if kind == "Q" else 3584
        self.vo = vVOW if kind == "Q" else vVOG
        self.srd = (S_WL, S_WL) if kind == "Q" else (S_WG, S_WU)
    def wgroup(self, j, woff, tmp):
        o = []
        for half in range(2):
            add = j * 64 * self.stride + (256 * half if self.kind == "Q" else 0)
            o.append(("s", f"s_add_u32 s{tmp}, s{woff}, {add}"))
            o.append(("s", f"s_add_u32 m0, s{sWB}, {self.slotmap[j] * 32768 + half*16384}"))
            for q in range(4):
                o.append(("v", f"buffer_load_dwordx4 v{self.vo+q}, s[{self.srd[half]}:{self.srd[half]+3}], s{tmp} offen offset:{q*1024} lds"))
        return o
    def xgroup(self, j, xoff, tmp):
        o = []
        for qt in range(2):
            o.append(("s", f"s_add_u32 s{tmp}, s{xoff}, {qt*14*1024 + j*2048}"))
            for k in range(2):
                r = vXN + ((2*j + k) * 2 + qt) * 4
                o.append(("v", f"buffer_load_dwordx4 v[{r}:{r+3}], v{vL16}, s[{S_X}:{S_X+3}], s{tmp} offen offset:{k*1024}{SC()}"))
        return o
    def issue(self, A, items):
        prev_s = False
        for k, x in items:
            if k == "v" and prev_s: A("s_nop 0")
            A(x); prev_s = (k == "s")
    def rd(self, n, slotoff):
        ks_, dt = n // 16, n % 16
        r = frag(n)
        off = slotoff + (dt // 8) * 16384 + ks_ * 8192
        return [f"ds_read_b64_tr_b16 v[{r}:{r+1}], v{vWR + dt % 8} offset:{off}",
                f"ds_read_b64_tr_b16 v[{r+2}:{r+3}], v{vWR + dt % 8} offset:{off + 1024}"]
    def main(self, A, waits, tails, hooks):
        for n in range(DPRE):
            for x in self.rd(n, 0): A(x)
        for j in range(7):
            slot = self.slotmap[j]
            mf = []
            for n in range(32):
                ks_, dt = n // 16, n % 16
                ks = 2 * j + ks_
                for qt in range(2):
                    acc = (dt * 2 + qt) * 4
                    x = vXN + (ks * 2 + qt) * 4
                    mf.append(f"{MF} {ar(acc,4)}, {vr(frag(n),4)}, {vr(x,4)}, " + ("0" if ks == 0 else ar(acc,4)))
            sc = Sched(mf, f"proj{self.kind}{j}")
            for x in waits[j]: A(x)
            A("s_barrier")
            if j in hooks: hooks[j](A)
            A(f"s_waitcnt lgkmcnt({2*(DPRE-1)})")
            for n in range(32):
                last = 31 if j == 6 else 10**9
                issued = min(last, n - 1 + DPRE)
                if n + 1 <= 31 or j < 6:
                    sc.S(2 * n, f"s_waitcnt lgkmcnt({max(0, 2 * (issued - (n + 1)))})")
                m = n + DPRE
                if m < 32:
                    x = self.rd(m, (slot % 2) * 32768)
                elif j < 6:
                    nslot = self.slotmap[j + 1]
                    x = self.rd(m - 32, (nslot % 2) * 32768)
                    if m == 32 and (nslot // 2) != (slot // 2):
                        d = 65536 * (nslot // 2 - slot // 2)
                        for ft in range(8):
                            sc.V(2 * n - 1 - 2 * (3 - ft // 2) if False else 2 * n - 1, f"v_add_u32 v{vWR+ft}, {d & 0xffffffff}, v{vWR+ft}")
                else:
                    continue
                sc.V(2 * n, x[0]); sc.V(2 * n, x[1])
            items = tails.get(j, [])
            nv = sum(1 for k, _ in items if k == "v")
            if nv:
                gaps = [g for g in range(3, 62, 2) if not sc.v[g]]
                pos = [gaps[int(k * (len(gaps) - 1) / max(1, nv - 1))] for k in range(nv)] if nv > 1 else [gaps[0]]
                k = 0; pend = []
                for kind, x in items:
                    if kind == "s": pend.append(x)
                    else:
                        g = pos[k]; k += 1
                        if pend:
                            tgt = g - 2 if (g - 2 >= 1 and not sc.v[g - 2]) else g - 1
                            sc.s[tgt] += pend; pend = []
                        sc.v[g].append(x)
                assert not pend
            sc.emit(A)
        back = 65536 * (self.slotmap[6] // 2)
        if back:
            for ft in range(8):
                A(f"v_subrev_u32 v{vWR+ft}, {back}, v{vWR+ft}")

def q_convert(A, store=None):
    n = 0
    for qt in range(2):
        for u in range(8):
            b = vF + (n % 4) * 8; n += 1
            for k in range(2):
                for r in range(4):
                    A(f"v_accvgpr_read_b32 v{b+4*k+r}, a{((2*u+k)*2+qt)*4+r}")
            for e in range(4):
                A(f"v_cvt_pk_bf16_f32 v{vQ+(qt*8+u)*4+e}, v{b+2*e}, v{b+2*e+1}")

def o_zero(A):
    for i in range(128):
        A(f"v_accvgpr_write_b32 a{i}, 0")

def flag_set(A, which):
    lab = f"FS_{len(A.L)}"
    A(f"s_cmp_eq_u32 s{sW}, 0")
    A(f"s_cbranch_scc0 {lab}")
    A(f"s_lshl_b32 s{sT0}, s{sPAIR}, 9")
    A(f"s_add_u32 s{sT0}, s{sT0}, {which*256}")
    A(f"v_mov_b32 v{vT[0]}, s{sT0}")
    A(f"v_mov_b32 v{vT[1]}, 1")
    A(f"v_cmp_eq_u32 s[78:79], 0, v{vLANE}")
    A("s_and_saveexec_b64 s[76:77], s[78:79]")
    A(f"s_cbranch_execz {lab}X")
    A(f"buffer_store_dword v{vT[1]}, v{vT[0]}, s[{S_D}:{S_D+3}], 0 offen sc1")
    A.label(lab + "X")
    A("s_mov_b64 exec, s[76:77]")
    A.label(lab)

sPCELL = 88
sPENDK = 89
VPOLL2 = 255
def arrive(A, off_sgpr):
    lab = f"AR_{len(A.L)}"
    A(f"s_cmp_eq_u32 s{sW}, 0")
    A(f"s_cbranch_scc0 {lab}")
    A(f"v_mov_b32 v{vT[0]}, s{off_sgpr}")
    A(f"v_mov_b32 v{vT[1]}, 1")
    A(f"v_cmp_eq_u32 s[78:79], 0, v{vLANE}")
    A("s_and_saveexec_b64 s[76:77], s[78:79]")
    A(f"s_cbranch_execz {lab}X")
    A(f"buffer_atomic_add v{vT[1]}, v{vT[0]}, s[{S_D}:{S_D+3}], 0 offen")
    A.label(lab + "X")
    A("s_mov_b64 exec, s[76:77]")
    A.label(lab)

def af_cell_head(A, dst, rb_sgpr):
    A(f"s_lshl_b32 s{dst}, s{rb_sgpr}, 2")
    A(f"s_cmp_ge_u32 s{sHEAD}, 6"); A(f"s_addc_u32 s{dst}, s{dst}, 0")
    A(f"s_cmp_ge_u32 s{sHEAD}, 12"); A(f"s_addc_u32 s{dst}, s{dst}, 0")
    A(f"s_lshl_b32 s{dst}, s{dst}, 8"); A(f"s_add_u32 s{dst}, s{dst}, {FL_AF}")

def flag_wait(A, which):
    lab = f"FW_{len(A.L)}"
    A(f"s_cmp_eq_u32 s{sW}, 0")
    A(f"s_cbranch_scc0 {lab}_OK")
    A(f"s_lshl_b32 s{sT0}, s{sPAIR}, 9")
    A(f"s_add_u32 s{sT0}, s{sT0}, {which*256}")
    A(f"v_mov_b32 v{vT[0]}, s{sT0}")
    A(f"s_mov_b32 s{sT2}, 0x10000")
    A.label(lab)
    A(f"buffer_load_dword v{vT[1]}, v{vT[0]}, s[{S_D}:{S_D+3}], 0 offen sc1")
    A("s_waitcnt vmcnt(0)")
    A(f"v_readfirstlane_b32 s{sT0}, v{vT[1]}")
    A(f"s_cmp_eq_u32 s{sT0}, 1")
    A(f"s_cbranch_scc1 {lab}_OK")
    A(f"s_sub_u32 s{sT2}, s{sT2}, 1")
    A(f"s_cmp_eq_u32 s{sT2}, 0")
    A(f"s_cbranch_scc1 {lab}_OK")
    A("s_sleep 4")
    A(f"s_branch {lab}")
    A.label(f"{lab}_OK")
    A("s_barrier")

def fin_norm_store(A, srd_, qt_stride, flags=""):
    n = 0
    for qt in range(2):
        for u in range(8):
            b = vF + (n % 4) * 12; n += 1
            for k in range(2):
                for r in range(4):
                    A(f"v_accvgpr_read_b32 v{b+4*k+r}, a{((2*u+k)*2+qt)*4+r}")
            for e in range(8):
                A(f"v_mul_f32 v{b+e}, v{b+e}, v{vT[qt]}")
            for e in range(4):
                A(f"v_cvt_pk_bf16_f32 v{b+8+e}, v{b+2*e}, v{b+2*e+1}")
            if u == 4: A(f"s_add_u32 s{sT0}, s{sT0}, 4096")
            A(f"buffer_store_dwordx4 v[{b+8}:{b+11}], v{vL16}, s[{srd_}:{srd_+3}], s{sT0} offen offset:{(u%4)*1024}{flags}")
        A(f"s_add_u32 s{sT0}, s{sT0}, {qt_stride - 4096}")

def af_off(A):
    A(f"s_mul_i32 s{sT0}, s{sROW0}, {184*1024}")
    A(f"s_lshl_b32 s{sT1}, s{sHEAD}, 13")
    A(f"s_add_u32 s{sT0}, s{sT0}, s{sT1}")

def row0(A, dst, blk):
    A(f"s_lshl_b32 s{dst}, s{blk}, 3")
    A(f"s_lshl_b32 s{sT0}, s{sW}, 1")
    A(f"s_add_u32 s{dst}, s{dst}, s{sT0}")

def h_off(A, base):
    A(f"s_lshl_b32 s{sT0}, s{sPAIR}, 16")
    A(f"s_lshl_b32 s{sT1}, s{sW}, 14")
    A(f"s_add_u32 s{sT0}, s{sT0}, s{sT1}")
    if base: A(f"s_add_u32 s{sT0}, s{sT0}, {base}")

def gu_next_params(A):
    A(f"s_cmp_eq_u32 s{sNG}, 0")
    A(f"s_cselect_b32 s{S_WG+2}, 0, {448*3584}")
    A(f"s_cselect_b32 s{S_WU+2}, 0, {448*3584}")
    A(f"s_lshr_b32 s{sNC}, s{sGI}, 4")
    A(f"s_and_b32 s{sT2}, s{sGI}, 15")
    row0(A, sNROW, sT2)
    A(f"s_mul_i32 s{sNJ}, s{sNROW}, {14*1024}")
    A(f"s_mul_i32 s{sNWOFF}, s{sW}, {16*3584}")
    A(f"s_lshl_b32 s{sT0}, s{sNC}, 8")
    A(f"s_add_u32 s{sNWOFF}, s{sNWOFF}, s{sT0}")

sPRE = 54
vMS = 248
def merge_loads(A):
    A(f"s_lshl_b32 s{sT0}, s{sPAIR}, 12")
    A(f"s_lshl_b32 s{sT1}, s{sW}, 10")
    A(f"s_add_u32 s{sT0}, s{sT0}, s{sT1}")
    A(f"s_add_u32 s{sT0}, s{sT0}, {OPS_OFF}")
    A(f"buffer_load_dwordx4 v[{vMS}:{vMS+3}], v{vL16}, s[{S_H}:{S_H+3}], s{sT0} offen sc1")
    h_off(A, OPB_OFF)
    for k in range(16):
        if k % 4 == 0 and k: A(f"s_add_u32 s{sT0}, s{sT0}, 4096")
        A(f"buffer_load_dwordx4 a[{128+4*k}:{128+4*k+3}], v{vL16}, s[{S_H}:{S_H+3}], s{sT0} offen offset:{(k%4)*1024} sc1")

def k2_body(A):
    PQ, PG = Proj("Q", [0, 1, 2, 3, 4, 0, 1]), Proj("G")
    if G.FUSED:
        A(f"s_load_dwordx4 s[56:59], s[0:1], {KA['wg']}")
    lane_setup(A)
    A("s_and_b32 s3, s2, 7")
    A(f"s_lshr_b32 s{sT0}, s2, 3")
    A(f"s_and_b32 s{sT1}, s{sT0}, 1")
    A(f"s_lshl_b32 s{sHEAD}, s3, 1")
    A(f"s_add_u32 s{sHEAD}, s{sHEAD}, s{sT1}")
    A(f"s_bfe_u32 s{sI_}, s{sT0}, 0x30001")
    A(f"s_lshr_b32 s{sSTATE}, s2, 7")
    A(f"s_lshl_b32 s{sPAIR}, s{sHEAD}, 3")
    A(f"s_add_u32 s{sPAIR}, s{sPAIR}, s{sI_}")
    A(f"s_and_b32 s{sT1}, s{sT0}, 15")
    A(f"s_cmp_lt_u32 s{sT1}, 12")
    A(f"s_cselect_b32 s{sNG}, 2, 1")
    A(f"s_cselect_b32 s{sA}, {A2}, {A1}")
    A(f"s_mul_i32 s{sGI}, s3, 28")
    A(f"s_add_u32 s{sGI}, s{sGI}, s{sT1}")
    A("s_waitcnt lgkmcnt(0)")
    if not G.FUSED:
        srd(A, S_X, sWS, sWS + 1, XN_SIZE, XN_OFF)
        srd(A, S_WL, 54, 55, 448 * 8192)
    A(f"s_sub_u32 s{sT0}, 15, s{sI_}")
    A(f"s_cmp_eq_u32 s{sSTATE}, 0")
    A(f"s_cselect_b32 s{sQB}, s{sT0}, s{sI_}")
    row0(A, sROW0, sQB)
    A(f"s_mul_i32 s{sJ}, s{sROW0}, {14*1024}")
    A(f"s_lshl_b32 s{sWOFFL}, s{sW}, 17")
    A(f"s_lshl_b32 s{sT0}, s{sHEAD}, 9")
    A(f"s_add_u32 s{sWOFFL}, s{sWOFFL}, s{sT0}")
    if not G.FUSED:
        voffs(A, vVOW, 8192)
        for j in range(3):
            PQ.issue(A, PQ.wgroup(j, sWOFFL, sT3) + PQ.xgroup(j, sJ, sT3))
    srd(A, S_K, sWS, sWS + 1, KF_SIZE, KF_OFF)
    srd(A, S_V, sWS, sWS + 1, KF_SIZE, VF_OFF - 16384)
    srd(A, S_AF, sWS, sWS + 1, AF_SIZE, AF_OFF)
    srd(A, S_H, sWS, sWS + 1, 2 * QH_SZ + 128 * 4096, QH_OFF)
    srd(A, S_D, sWS, sWS + 1, FL_SIZE, FL_OFF)
    srd(A, S_WG, 56, 57, 448 * 3584)
    srd(A, S_WU, 58, 59, 448 * 3584)
    wr_setup(A)
    A(f"s_lshl_b32 s{sE}, s{sI_}, 2")
    A(f"s_add_u32 s{sE}, s{sE}, 4")
    A(f"s_cmp_eq_u32 s{sSTATE}, 0")
    A(f"s_cselect_b32 s{sE}, s{sA}, s{sE}")
    A(f"s_mov_b32 s{sF}, 0")
    A(f"s_mov_b32 s{sPEND}, 0")
    A(f"s_mov_b32 s{sPCELL}, 0")
    attn_params(A)
    A("s_waitcnt vmcnt(52)")
    A("s_barrier")
    sv = lambda g: [("s", x) for x in g[0]] + [("v", x) for x in g[1]]
    def kvstores(g0, g1):
        o = []
        for g in range(g0, g1):
            for q in range(4):
                k = 4 * g + q
                data = f"v[{192+4*k}:{192+4*k+3}]" if k < 16 else f"a[{128+4*(k-16)}:{128+4*(k-16)+3}]"
                o.append(("v", f"buffer_store_dwordx4 {data}, v{vL16}, s[12:15], s60 offen offset:{q*1024} sc1"))
            o.append(("s", f"s_add_u32 s60, s60, s{53 if g % 2 == 0 else 52}"))
        return o
    waitsQ = {0: ["s_waitcnt vmcnt(48)"], 1: ["s_waitcnt vmcnt(52)"], 2: ["s_waitcnt vmcnt(63)"], 3: ["s_waitcnt vmcnt(60)"],
              4: ["s_waitcnt vmcnt(24)"], 5: ["s_waitcnt vmcnt(0)"], 6: []}
    st0 = kvstores(0, 4); st1 = kvstores(4, 8)
    tailsQ = {0: st0[:-1], 1: [st0[-1]] + PQ.wgroup(5, sWOFFL, sT3) + st1[:-1], 2: PQ.wgroup(6, sWOFFL, sT3)}
    def h5(A):
        A(f"s_lshl_b32 s{sT0}, s{sHEAD}, 8"); A(f"s_add_u32 s{sT0}, s{sT0}, {FL_KV}")
        arrive(A, sT0)
    def h6(A):
        A(f"s_cmp_eq_u32 s{sW}, 0"); A("s_cbranch_scc0 K2_H3E")
        A(f"s_lshl_b32 s{sT0}, s{sHEAD}, 8"); A(f"s_add_u32 s{sT0}, s{sT0}, {FL_KV}")
        A(f"v_mov_b32 v{vT[0]}, s{sT0}")
        A(f"buffer_load_dword v{VPOLL2}, v{vT[0]}, s[{S_D}:{S_D+3}], 0 offen sc1")
        if DYN:
            A("s_and_b32 s3, s2, 7"); A(f"s_lshl_b32 s{sT0}, s3, 8"); A(f"s_add_u32 s{sT0}, s{sT0}, {FL_SP}")
            A(f"v_lshlrev_b32 v{vT[2]}, 2, v{vLANE}"); A(f"v_and_b32 v{vT[2]}, 63, v{vT[2]}"); A(f"v_add_u32 v{vT[2]}, s{sT0}, v{vT[2]}")
            A(f"buffer_load_dword v{VPOLL3}, v{vT[2]}, s[{S_D}:{S_D+3}], 0 offen sc1")
        A.label("K2_H3E")
    fstamp(A, 1)
    PQ.main(A, waitsQ, tailsQ, {5: h5, 6: h6})
    fstamp(A, 2)
    A("s_nop 4")
    q_convert(A)
    A(f"s_cmp_eq_u32 s{sW}, 0"); A("s_cbranch_scc0 K2_KVOK")
    A(f"s_mov_b32 s{sT2}, 0x10000")
    A("s_waitcnt vmcnt(0)")
    A.label("K2_KVP")
    A(f"v_readfirstlane_b32 s{sT0}, v{VPOLL2}")
    A(f"s_cmp_ge_u32 s{sT0}, 16"); A("s_cbranch_scc1 K2_KVOK")
    A(f"s_sub_u32 s{sT2}, s{sT2}, 1"); A(f"s_cmp_eq_u32 s{sT2}, 0"); A("s_cbranch_scc1 K2_KVOK")
    A("s_sleep 1")
    A(f"buffer_load_dword v{VPOLL2}, v{vT[0]}, s[{S_D}:{S_D+3}], 0 offen sc1")
    A("s_waitcnt vmcnt(0)")
    A("s_branch K2_KVP")
    A.label("K2_KVOK")
    if DYN:
        A(f"s_cmp_eq_u32 s{sW}, 0"); A("s_cbranch_scc0 K2_DY")
        A("s_waitcnt vmcnt(0)")
        A(f"s_mov_b32 s{sT2}, 0x10000")
        A.label("K2_SPP")
        A(f"v_readlane_b32 s{sT0}, v{VPOLL3}, 8")
        A(f"s_cmp_ge_u32 s{sT0}, 256"); A("s_cbranch_scc1 K2_SPOK")
        A(f"s_sub_u32 s{sT2}, s{sT2}, 1"); A(f"s_cmp_eq_u32 s{sT2}, 0"); A("s_cbranch_scc1 K2_SPOK")
        A("s_sleep 1")
        A(f"buffer_load_dword v{VPOLL3}, v{vT[2]}, s[{S_D}:{S_D+3}], 0 offen sc1")
        A("s_waitcnt vmcnt(0)")
        A("s_branch K2_SPP")
        A.label("K2_SPOK")
        A("s_and_b32 s3, s2, 7")
        A(f"v_readlane_b32 s{sT1}, v{VPOLL3}, s3")
        A(f"s_mov_b32 s{sT2}, 0")
        for gp in range(8):
            A(f"v_readlane_b32 s{sT0}, v{VPOLL3}, {gp}")
            A(f"s_cmp_lt_u32 {gp}, s3"); A(f"s_cselect_b32 s{sT3}, 1, 0")
            A(f"s_add_u32 s{sT0}, s{sT0}, s{sT3}")
            A(f"s_cmp_gt_u32 s{sT0}, s{sT1}"); A(f"s_addc_u32 s{sT2}, s{sT2}, 0")
        A(f"v_mov_b32 v{vT[3]}, s{sT2}")
        A(f"v_mov_b32 v{vT[4]}, 65536")
        A(f"ds_write_b32 v{vT[4]}, v{vT[3]}")
        A("s_waitcnt lgkmcnt(0)")
        A.label("K2_DY")
    A("s_barrier")
    if DYN:
        A(f"v_mov_b32 v{vT[4]}, 65536")
        A(f"ds_read_b32 v{vT[3]}, v{vT[4]}")
        A("s_waitcnt lgkmcnt(0)")
        A(f"v_readfirstlane_b32 s{sT2}, v{vT[3]}")
        A(f"s_lshr_b32 s{sT1}, s2, 3"); A(f"s_and_b32 s{sT1}, s{sT1}, 15")
        A(f"s_cmp_lt_u32 s{sT2}, 2")
        A(f"s_cselect_b32 s{sNG}, 1, 2")
        A(f"s_cselect_b32 s{sA}, {A1}, {A2}")
        A(f"s_lshl_b32 s{sT0}, s{sT2}, 4"); A(f"s_add_u32 s{sT0}, s{sT0}, 192")
        A(f"s_sub_u32 s{sGI}, s{sT2}, 2"); A(f"s_lshl_b32 s{sGI}, s{sGI}, 5")
        A(f"s_cmp_lt_u32 s{sT2}, 2"); A(f"s_cselect_b32 s{sGI}, s{sT0}, s{sGI}")
        A(f"s_add_u32 s{sGI}, s{sGI}, s{sT1}")
        A(f"s_lshl_b32 s{sE}, s{sI_}, 2"); A(f"s_add_u32 s{sE}, s{sE}, 4")
        A(f"s_cmp_eq_u32 s{sSTATE}, 0"); A(f"s_cselect_b32 s{sE}, s{sA}, s{sE}")
        attn_params(A)
    for g in (kv_group("K", 0), kv_group("K", 1)): issue_group(A, g)
    voffs(A, vVOG, 3584)
    A(f"s_mov_b32 s{sHOOK}, -1")
    A(f"s_cmp_eq_u32 s{sSTATE}, 0")
    A(f"s_cbranch_scc0 K2_NOPUBQ")
    A(f"s_sub_u32 s{sHOOK}, s{sREM}, 1")
    A.label("K2_NOPUBQ")
    o_zero(A)
    A("s_waitcnt vmcnt(0)")
    A.label("K2_GO")
    A("s_barrier")
    A.label("K2_CORE")
    def core_hook(A):
        lab = f"CH_{len(A.L)}"
        A(f"s_cmp_eq_u32 s{sSTATE}, 0")
        A(f"s_cbranch_scc0 {lab}")
        flag_set(A, 0)
        A(f"s_mov_b32 s{sHOOK}, -1")
        A(f"s_branch {lab}E")
        A.label(lab)
        A(f"s_cmp_eq_u32 s{sPRE}, 0")
        A(f"s_cbranch_scc0 {lab}P1")
        af_cell_head(A, sT0, sI_)
        arrive(A, sT0)
        A(f"s_mov_b32 s{sPRE}, 1")
        A(f"s_cmp_gt_u32 s{sREM}, 3")
        A(f"s_cselect_b32 s{sHOOK}, 3, -1")
        A(f"s_branch {lab}E")
        A.label(lab + "P1")
        A(f"s_cmp_eq_u32 s{sPRE}, 1")
        A(f"s_cbranch_scc0 {lab}P2")
        A(f"s_lshl_b32 s{sT0}, s{sPAIR}, 9")
        A(f"s_add_u32 s{sT0}, s{sT0}, 256")
        A(f"v_mov_b32 v{vT[0]}, s{sT0}")
        A(f"buffer_load_dword v{VPOLL2}, v{vT[0]}, s[{S_D}:{S_D+3}], 0 offen sc1")
        A(f"s_mov_b32 s{sPRE}, 2")
        A(f"s_mov_b32 s{sHOOK}, 2")
        A(f"s_branch {lab}E")
        A.label(lab + "P2")
        A("s_waitcnt vmcnt(8)")
        A(f"v_readfirstlane_b32 s{sT0}, v{VPOLL2}")
        A(f"s_mov_b32 s{sHOOK}, -1")
        A(f"s_cmp_eq_u32 s{sT0}, 1")
        A(f"s_cbranch_scc0 {lab}E")
        merge_loads(A)
        A(f"s_mov_b32 s{sPRE}, 3")
        A.label(lab + "E")
    def after_first(A):
        A(f"s_cmp_eq_u32 s{sSTATE}, 0")
        A("s_cbranch_scc0 K2_NOQS")
        h_off(A, 0)
        for k in range(16):
            if k % 4 == 0 and k: A(f"s_add_u32 s{sT0}, s{sT0}, 4096")
            A(f"buffer_store_dwordx4 v[{vQ+4*k}:{vQ+4*k+3}], v{vL16}, s[{S_H}:{S_H+3}], s{sT0} offen offset:{(k%4)*1024} sc1")
        A.label("K2_NOQS")
    A(f"s_mov_b32 s{sPRE}, 0")
    attn_core(A, "K2A", core_hook, None, after_first)
    A(f"s_cmp_eq_u32 s{sSTATE}, 1")
    A("s_cbranch_scc1 K2_BLO")
    A(f"s_cmp_eq_u32 s{sSTATE}, 2")
    A("s_cbranch_scc1 K2_MERGE")
    gu_next_params(A)
    for j in range(2):
        PG.issue(A, PG.wgroup(j, sNWOFF, sT3) + PG.xgroup(j, sNJ, sT3))
    A("s_nop 7")
    xreduce(A, [vL, vL + 1], "v_add_f32", [vT[2], vT[3]])
    A(f"v_rcp_f32 v{vT[0]}, v{vL}")
    A(f"v_rcp_f32 v{vT[1]}, v{vL+1}")
    h_off(A, OPB_OFF)
    fin_norm_store(A, S_H, 8192, " sc1")
    A(f"v_mov_b32 v{vF}, v{vNEGM}")
    A(f"v_mov_b32 v{vF+1}, v{vNEGM+4}")
    A(f"v_mov_b32 v{vF+2}, v{vL}")
    A(f"v_mov_b32 v{vF+3}, v{vL+1}")
    A(f"s_lshl_b32 s{sT0}, s{sPAIR}, 12")
    A(f"s_lshl_b32 s{sT1}, s{sW}, 10")
    A(f"s_add_u32 s{sT0}, s{sT0}, s{sT1}")
    A(f"s_add_u32 s{sT0}, s{sT0}, {OPS_OFF}")
    A(f"buffer_store_dwordx4 v[{vF}:{vF+3}], v{vL16}, s[{S_H}:{S_H+3}], s{sT0} offen sc1")
    A(f"s_mov_b32 s{sPEND}, 1")
    A.label("K2_GU")
    A(f"s_mov_b32 s{sC}, s{sNC}")
    A(f"s_mov_b32 s{sROW0}, s{sNROW}")
    A(f"s_mov_b32 s{sWOFFL}, s{sNWOFF}")
    A(f"s_mov_b32 s{sJ}, s{sNJ}")
    A(f"s_sub_u32 s{sNG}, s{sNG}, 1")
    A(f"s_add_u32 s{sGI}, s{sGI}, 16")
    PG.issue(A, PG.wgroup(2, sWOFFL, sT3) + PG.xgroup(2, sJ, sT3))
    A("s_waitcnt vmcnt(32)")
    A("s_barrier")
    def w0(A): pass
    def pend_hook(A):
        lab = f"PH_{len(A.L)}"
        A(f"s_cmp_eq_u32 s{sPEND}, 0")
        A(f"s_cbranch_scc1 {lab}")
        A(f"s_cmp_eq_u32 s{sPEND}, 1")
        A(f"s_cbranch_scc0 {lab}B")
        flag_set(A, 1)
        A(f"s_branch {lab}C")
        A.label(lab + "B")
        arrive(A, sPCELL)
        A.label(lab + "C")
        A(f"s_mov_b32 s{sPEND}, 0")
        A.label(lab)
    def nextp(A):
        gu_next_params_keep(A)
    waitsG = {0: [f"s_cmp_eq_u32 s{sPEND}, 1", "s_cbranch_scc0 K2_W8", "s_waitcnt vmcnt(29)", "s_branch K2_W9", "K2_W8:", "s_waitcnt vmcnt(20)", "K2_W9:"],
              1: ["s_waitcnt vmcnt(12)"], 2: ["s_waitcnt vmcnt(12)"], 3: ["s_waitcnt vmcnt(12)"],
              4: ["s_waitcnt vmcnt(12)"], 5: ["s_waitcnt vmcnt(0)"], 6: []}
    tailsG = {j: PG.wgroup(j + 3, sWOFFL, sT3) + PG.xgroup(j + 3, sJ, sT3) for j in range(4)}
    tailsG[5] = PG.wgroup(0, sNWOFF, sT3) + PG.xgroup(0, sNJ, sT3)
    tailsG[6] = PG.wgroup(1, sNWOFF, sT3) + PG.xgroup(1, sNJ, sT3)
    def hook4(A):
        gu_next_params(A)
        A(f"s_cmp_eq_u32 s{sNG}, 0")
        A(f"s_cselect_b32 s{S_X+2}, 0, {XN_SIZE}")
    PG.main(A, waitsG, tailsG, {1: pend_hook, 4: hook4})
    A(f"s_mul_i32 s{sT0}, s{sROW0}, {184*1024}")
    A(f"s_lshl_b32 s{sT1}, s{sC}, 12")
    A(f"s_add_u32 s{sT0}, s{sT0}, s{sT1}")
    A(f"s_add_u32 s{sT0}, s{sT0}, {128*1024}")
    n = 0
    for qt in range(2):
        for u in range(4):
            b = vF + (n % 2) * 24; n += 1
            for k in range(2):
                ft = 2 * u + k
                for r in range(4):
                    A(f"v_accvgpr_read_b32 v{b+4*k+r}, a{(ft*2+qt)*4+r}")
                    A(f"v_accvgpr_read_b32 v{b+8+4*k+r}, a{((ft+8)*2+qt)*4+r}")
            for e in range(8):
                A(f"v_mul_f32 v{b+e}, v{b+e}, v{b+8+e}")
            for e in range(4):
                A(f"v_cvt_pk_bf16_f32 v{b+16+e}, v{b+2*e}, v{b+2*e+1}")
            A(f"buffer_store_dwordx4 v[{b+16}:{b+19}], v{vL16}, s[{S_AF}:{S_AF+3}], s{sT0} offen offset:{u*1024}{SC()}")
        A(f"s_add_u32 s{sT0}, s{sT0}, {184*1024}")
    if G.FUSED:
        A(f"s_lshr_b32 s{sPCELL}, s{sROW0}, 3"); A(f"s_lshl_b32 s{sPCELL}, s{sPCELL}, 2"); A(f"s_add_u32 s{sPCELL}, s{sPCELL}, 2")
        A(f"s_cmp_ge_u32 s{sC}, 3"); A(f"s_addc_u32 s{sPCELL}, s{sPCELL}, 0")
        A(f"s_lshl_b32 s{sPCELL}, s{sPCELL}, 8"); A(f"s_add_u32 s{sPCELL}, s{sPCELL}, {FL_AF}")
        A(f"s_mov_b32 s{sPEND}, 2")
    A(f"s_cmp_eq_u32 s{sNG}, 0")
    A("s_cbranch_scc0 K2_GU")
    A("s_branch K2_FIN")
    A.label("K2_BLO")
    A(f"s_mov_b32 s{sT3}, s{sROW0}")
    A(f"s_mov_b32 s{sSTATE}, 2")
    A(f"s_sub_u32 s{sQB}, 15, s{sI_}")
    A(f"s_mov_b32 s{sF}, s{sA}")
    A(f"s_lshl_b32 s{sE}, s{sQB}, 2")
    A(f"s_add_u32 s{sE}, s{sE}, 4")
    A(f"s_mov_b32 s{sJ}, s{sROW0}")
    attn_params(A)
    for j in range(2): issue_group(A, kv_group("K", j))
    A("s_nop 7")
    xreduce(A, [vL, vL + 1], "v_add_f32", [vT[2], vT[3]])
    A(f"v_rcp_f32 v{vT[0]}, v{vL}")
    A(f"v_rcp_f32 v{vT[1]}, v{vL+1}")
    af_off(A)
    fin_norm_store(A, S_AF, 184 * 1024, SC())
    row0(A, sROW0, sQB)
    flag_wait(A, 0)
    h_off(A, 0)
    for k in range(16):
        if k % 4 == 0 and k: A(f"s_add_u32 s{sT0}, s{sT0}, 4096")
        A(f"buffer_load_dwordx4 v[{vQ+4*k}:{vQ+4*k+3}], v{vL16}, s[{S_H}:{S_H+3}], s{sT0} offen offset:{(k%4)*1024} sc1")
    A(f"s_mov_b32 s{sHOOK}, s{sREM}")
    o_zero(A)
    A("s_waitcnt vmcnt(0)")
    A("s_branch K2_GO")
    A.label("K2_MERGE")
    A("s_nop 7")
    xreduce(A, [vL, vL + 1], "v_add_f32", [vT[2], vT[3]])
    A(f"s_cmp_eq_u32 s{sPRE}, 3")
    A("s_cbranch_scc1 K2_MRDY")
    A(f"s_lshl_b32 s{sT0}, s{sPAIR}, 9")
    A(f"s_add_u32 s{sT0}, s{sT0}, 256")
    A(f"v_mov_b32 v{vT[0]}, s{sT0}")
    A(f"s_mov_b32 s{sT2}, 0x10000")
    A.label("K2_MP")
    A(f"buffer_load_dword v{vT[1]}, v{vT[0]}, s[{S_D}:{S_D+3}], 0 offen sc1")
    A("s_waitcnt vmcnt(0)")
    A(f"v_readfirstlane_b32 s{sT0}, v{vT[1]}")
    A(f"s_cmp_eq_u32 s{sT0}, 1"); A("s_cbranch_scc1 K2_MPOK")
    A(f"s_sub_u32 s{sT2}, s{sT2}, 1"); A(f"s_cmp_eq_u32 s{sT2}, 0"); A("s_cbranch_scc1 K2_MPOK")
    A("s_sleep 4")
    A("s_branch K2_MP")
    A.label("K2_MPOK")
    merge_loads(A)
    A.label("K2_MRDY")
    A("s_waitcnt vmcnt(0)")
    wA = [76, 77]; wBf = [78, 79]
    for qt in range(2):
        A(f"v_min_f32 v80, v{vMS+qt}, v{vNEGM+4*qt}")
        A(f"v_sub_f32 v81, v80, v{vMS+qt}")
        A(f"v_sub_f32 v82, v80, v{vNEGM+4*qt}")
        A(f"v_exp_f32 v81, v81")
        A(f"v_exp_f32 v82, v82")
        A("s_nop 0")
        A(f"v_mul_f32 v81, v81, v{vMS+2+qt}")
        A(f"v_fma_f32 v83, v82, v{vL+qt}, v81")
        A(f"v_rcp_f32 v83, v83")
        A("s_nop 0")
        A(f"v_mul_f32 v{wA[qt]}, v81, v83")
        A(f"v_mul_f32 v{wBf[qt]}, v82, v83")
    af_off(A)
    n = 0
    for qt in range(2):
        for u in range(8):
            b = 84 + (n % 2) * 24; n += 1
            pa = 128 + (qt * 8 + u) * 4
            for k in range(2):
                for r in range(4):
                    A(f"v_accvgpr_read_b32 v{b+4*k+r}, a{((2*u+k)*2+qt)*4+r}")
            for e in range(4):
                A(f"v_accvgpr_read_b32 v{b+20+e}, a{pa+e}")
            for e in range(8):
                A(f"v_mul_f32 v{b+e}, v{b+e}, v{wBf[qt]}")
            for e in range(4):
                A(f"v_lshlrev_b32 v{b+8+2*e}, 16, v{b+20+e}")
                A(f"v_and_b32 v{b+9+2*e}, 0xffff0000, v{b+20+e}")
            for e in range(8):
                A(f"v_fmac_f32 v{b+e}, v{b+8+e}, v{wA[qt]}")
            for e in range(4):
                A(f"v_cvt_pk_bf16_f32 v{b+16+e}, v{b+2*e}, v{b+2*e+1}")
            if u == 4: A(f"s_add_u32 s{sT0}, s{sT0}, 4096")
            A(f"buffer_store_dwordx4 v[{b+16}:{b+19}], v{vL16}, s[{S_AF}:{S_AF+3}], s{sT0} offen offset:{(u%4)*1024}{SC()}")
        A(f"s_add_u32 s{sT0}, s{sT0}, {184*1024 - 4096}")
    if G.FUSED:
        af_cell_head(A, sPCELL, sQB)
        A(f"s_mov_b32 s{sPEND}, 2")
    A.label("K2_FIN")

def gen_k2(A):
    name = "k2_attn_kernel"
    kernel_header(A, name)
    A("s_cmp_ge_u32 s2, 256")
    A("s_cbranch_scc1 K2_END")
    stamp(A, 0); rstamp(A, 5)
    A(f"s_load_dwordx2 s[{sWS}:{sWS+1}], s[0:1], {KA['ws']}")
    A(f"s_load_dwordx2 s[54:55], s[0:1], {KA['wq']}")
    A(f"s_load_dwordx4 s[56:59], s[0:1], {KA['wg']}")
    A("v_lshrrev_b32 v1, 6, v0")
    A(f"v_and_b32 v{vLANE}, 63, v0")
    A(f"v_readfirstlane_b32 s{sW}, v1")
    k2_body(A)
    if G.STAMP: A("s_waitcnt vmcnt(0) lgkmcnt(0)")
    stamp(A, 4)
    stamp_flush(A, 6, sWS, sWS + 1, sW, kidx=1)
    A.label("K2_END")
    A("s_endpgm")
    return name, NVGPR, 128


def k1_pre_epilogue(A, variant, DBG, pre, pack, post):
    PQ = Proj("Q", [0, 1, 2, 3, 4, 0, 1])
    fstamp(A, 0)
    lab = f"PE{variant}"
    K1POLL = 220
    A("s_waitcnt vmcnt(16)")
    A(f"s_cmp_eq_u32 s{sW}, 0"); A(f"s_cbranch_scc0 {lab}_OK")
    srd(A, 48, DBG, DBG + 1, 256)
    A("v_mov_b32 v11, 0")
    A("s_mov_b32 s52, 0x10000")
    A.label(f"{lab}_P")
    A(f"v_readfirstlane_b32 s53, v{K1POLL}")
    A("s_cmp_ge_u32 s53, 256"); A(f"s_cbranch_scc1 {lab}_OK")
    A("s_sub_u32 s52, s52, 1"); A("s_cmp_eq_u32 s52, 0"); A(f"s_cbranch_scc1 {lab}_OK")
    A("s_sleep 2")
    A(f"buffer_load_dword v{K1POLL}, v11, s[48:51], 0 offen sc1")
    A("s_waitcnt vmcnt(0)")
    A(f"s_branch {lab}_P")
    A.label(f"{lab}_OK")
    if DYN:
        A(f"s_cmp_eq_u32 s{sW}, 0"); A(f"s_cbranch_scc0 {lab}_SP")
        A("s_memrealtime s[52:53]")
        srd(A, 48, sWS, sWS + 1, FL_SIZE, FL_OFF)
        A("s_waitcnt lgkmcnt(0)")
        A("s_sub_u32 s52, s52, s100")
        A("s_and_b32 s53, s2, 7"); A("s_lshl_b32 s53, s53, 2")
        A("v_and_b32 v11, 7, v2"); A("v_lshlrev_b32 v11, 8, v11")
        A("v_add_u32 v12, s53, v11"); A("v_add_u32 v13, 32, v11")
        A("v_cmp_gt_u32 vcc, 8, v2")
        A("v_mov_b32 v14, s52")
        A("s_nop 0")
        A("v_cndmask_b32 v11, v13, v12, vcc")
        A("v_cndmask_b32 v14, 1, v14, vcc")
        A("v_cmp_gt_u32 vcc, 16, v2")
        A("s_and_saveexec_b64 s[52:53], vcc")
        A(f"s_cbranch_execz {lab}_SX")
        A(f"buffer_atomic_add v14, v11, s[48:51], 0 offen offset:0") if False else None
        A(f"s_mov_b32 s46, {FL_SP}")
        A("buffer_atomic_add v14, v11, s[48:51], s46 offen")
        A.label(f"{lab}_SX")
        A("s_mov_b64 exec, s[52:53]")
        A.label(f"{lab}_SP")
    A("s_barrier")
    A("s_lshr_b32 s52, s2, 3")
    A("s_bfe_u32 s53, s52, 0x30001")
    A("s_sub_u32 s52, 15, s53")
    A("s_cmp_lt_u32 s2, 128")
    A("s_cselect_b32 s52, s52, s53")
    A("s_lshl_b32 s52, s52, 3"); A(f"s_lshl_b32 s53, s{sW}, 1"); A("s_add_u32 s52, s52, s53")
    A(f"s_mul_i32 s{sJ}, s52, {14*1024}")
    srd(A, S_X, sWS, sWS + 1, XN_SIZE, XN_OFF)
    A(f"v_lshlrev_b32 v{vL16}, 4, v{vLANE}")
    for q in range(4): A(f"v_mov_b32 v{vVOW+q}, v{216+q}")
    A(f"s_lshl_b32 s{sWB}, s{sW}, 12")
    A(f"s_lshl_b32 s46, s{sW}, 17"); A(f"s_lshl_b32 s52, s{sHEAD}, 9"); A("s_add_u32 s46, s46, s52")
    for x in pre: A(x)
    items = (PQ.xgroup(0, sJ, sT3) + PQ.xgroup(1, sJ, sT3) + PQ.wgroup(2, 46, sT3) + PQ.xgroup(2, sJ, sT3) + PQ.wgroup(3, 46, sT3)
             + PQ.xgroup(3, sJ, sT3) + PQ.wgroup(4, 46, sT3) + PQ.xgroup(4, sJ, sT3) + PQ.xgroup(5, sJ, sT3) + PQ.xgroup(6, sJ, sT3))
    nv = sum(1 for k, _ in items if k == "v")
    per = (len(pack) + nv - 1) // nv
    pi = 0; prev_s = False
    for k, x in items:
        if k == "v" and prev_s: A("s_nop 0")
        A(x); prev_s = (k == "s")
        if k == "v":
            for y in pack[pi: pi + per]: A(y)
            pi += per
    for y in pack[pi:]: A(y)
    for x in post: A(x)
G.k1_pre_epilogue = k1_pre_epilogue
```
